```python
import torch

def _softmax(x, axis=-1):
    return torch.softmax(x, dim=axis)
def _gelu(x):
    return torch.nn.functional.gelu(x, approximate="tanh")
def _silu(x):
    return torch.nn.functional.silu(x)
def _sigmoid(x):
    return torch.sigmoid(x)
def _layernorm(x, axis=-1, eps=1e-5):
    m = x.mean(dim=axis, keepdim=True)
    v = x.var(dim=axis, keepdim=True, unbiased=False)
    return (x - m) / torch.sqrt(v + eps)
def _scatter_add(tgt, idx, src, axis=0):
    return tgt.clone().index_add_(axis, idx, src)
def _segment_sum(src, seg, n):
    out = torch.zeros((n,) + src.shape[1:], dtype=src.dtype)
    return out.index_add_(0, seg, src)
def _pad(x, pw):
    flat = tuple(v for pair in reversed(pw) for v in pair)
    return torch.nn.functional.pad(x, flat)

kernel_name = 'sequential_preLN__gqa_block_cached__swiglu_ffn__decode'

def setup_inputs():

    _w = (lambda a: (lambda t: t.to(torch.bfloat16) if t.is_floating_point() else t)(torch.as_tensor(a)))
    def _A_setup():
        B, Sq, D = 2, 1, 512
        Hq, Hkv, Sk, Dh = 32, 8, 8192, 128
        assert Hq % Hkv == 0, (Hq, Hkv)
        return {
            "x": _w((lambda *s: torch.randn(*s, dtype=torch.bfloat16) * 0.05)(B, Sq, D)),
            "k_cache": _w((lambda *s: torch.randn(*s, dtype=torch.bfloat16) * 3.2)(B, Hkv, Sk, Dh)),
            "v_cache": _w((lambda *s: torch.randn(*s, dtype=torch.bfloat16) * 0.4)(B, Hkv, Sk, Dh)),
            "wq": _w((lambda *s: torch.randn(*s, dtype=torch.bfloat16) * 3.2)(D, Hq * Dh) * (D ** -0.5)),
            "wo": _w((lambda *s: torch.randn(*s, dtype=torch.bfloat16) * 0.4)(Hq * Dh, D) * ((Hq * Dh) ** -0.5)),
        }
    _A_in = _A_setup()

    def _B_setup():
        B, S, D, F = 2, 1, 512, 1792
        return {
            "x": _w((lambda *s: torch.randn(*s, dtype=torch.bfloat16) * 0.05)(B, S, D)),
            "w_gate": _w((lambda *s: torch.randn(*s, dtype=torch.bfloat16) * 0.05)(D, F)),
            "w_up": _w((lambda *s: torch.randn(*s, dtype=torch.bfloat16) * 0.05)(D, F)),
            "w_down": _w((lambda *s: torch.randn(*s, dtype=torch.bfloat16) * 0.05)(F, D)),
        }
    _B_in = _B_setup()

    return {
        "A_x": _A_in["x"],
        "A_k_cache": _A_in["k_cache"],
        "A_v_cache": _A_in["v_cache"],
        "A_wq": _A_in["wq"],
        "A_wo": _A_in["wo"],
        "B_x": _B_in["x"],
        "B_w_gate": _B_in["w_gate"],
        "B_w_up": _B_in["w_up"],
        "B_w_down": _B_in["w_down"],
    }

def reference(A_x, A_k_cache, A_v_cache, A_wq, A_wo, B_x, B_w_gate, B_w_up, B_w_down):
    def _A_ref(x, k_cache, v_cache, wq, wo):
        B, Sq, D = x.shape
        Hq, Dh = 32, 128
        Hkv = k_cache.shape[1]
        rep = Hq // Hkv
        q = (lambda x, *d: x.permute(*d))((x @ wq).reshape(B, Sq, Hq, Dh), 0, 2, 1, 3)
        k = (lambda x, n, axis: torch.repeat_interleave(x, n, dim=axis))(k_cache, rep, axis=1)
        v = (lambda x, n, axis: torch.repeat_interleave(x, n, dim=axis))(v_cache, rep, axis=1)
        scores = torch.einsum("bhqd,bhkd->bhqk", q, k) * (Dh ** -0.5)
        p = _softmax(scores, axis=-1)
        o = torch.einsum("bhqk,bhkd->bhqd", p, v)
        return (lambda x, *d: x.permute(*d))(o, 0, 2, 1, 3).reshape(B, Sq, Hq * Dh) @ wo

    def _B_ref(x, w_gate, w_up, w_down):
        g = _silu(x @ w_gate)
        u = x @ w_up
        return (g * u) @ w_down

    x = A_x
    h = x + _A_ref(_layernorm(x, axis=-1), A_k_cache, A_v_cache, A_wq, A_wo)
    h2 = h + _B_ref(_layernorm(h, axis=-1), B_w_gate, B_w_up, B_w_down)
    return h2
```

```python
import sys

NAME = "sequential_preLN__gqa_block_cached__swiglu_ffn__decode"

QP = 0x00000
ST = 0x40000
OP = 0x80000
YP = 0x100000
AC = 0x110000
TS = 0x200000

XL = 0
XN = XL + 2048
QL = XN + 2048
WST = QL + 1024
GST = WST + 256
RED = GST + 256
R1 = RED + 16384
R2 = R1 + 8192
R3 = R2 + 1024
HN = R3 + 8192
HL = HN + 2048
R4 = HL + 2048
R5 = R4 + 1024
WO_L = 49152
assert R5 + 512 <= WO_L
GU_L = WO_L + 32768
WD_L = GU_L + 16384
LDS_TOTAL = WD_L + 28672

LOG2E = 0x3FB8AA3B
SCALE = 0x3DB504F3
EPS = 0x3727C5AC
INV512 = 0x3B000000
SPIN = 20000


class G:
    def __init__(self):
        self.L = []
        self.nlab = 0

    def __call__(self, s):
        self.L.append("  " + s)

    def label(self, name):
        self.L.append(name + ":")

    def newlabel(self, base):
        self.nlab += 1
        return f"L_{base}_{self.nlab}"


def v(i, n=1):
    return f"v{i}" if n == 1 else f"v[{i}:{i+n-1}]"


DPP = "row_mask:0xf bank_mask:0xf"


def bf16r(g, dst, src, tmp):
    g(f"v_cvt_pk_bf16_f32 {v(tmp)}, {v(src)}, {v(src)}")
    g(f"v_lshlrev_b32 {v(dst)}, 16, {v(tmp)}")


def wave_reduce(g, regs, tmps, op, rows_only=False, stride4=False):
    steps = []
    if not stride4:
        steps += ["quad_perm:[1,0,3,2]", "quad_perm:[2,3,0,1]"]
    steps += ["row_ror:4", "row_ror:8"]
    for st in steps:
        g("s_nop 1")
        for r in regs:
            g(f"{op}_dpp {v(r)}, {v(r)}, {v(r)} {st} {DPP}")
    for sw in ("v_permlane16_swap_b32", "v_permlane32_swap_b32"):
        for r, t in zip(regs, tmps):
            g(f"v_mov_b32 {v(t)}, {v(r)}")
        g("s_nop 1")
        for r, t in zip(regs, tmps):
            g(f"{sw} {v(r)}, {v(t)}")
        g("s_nop 1")
        for r, t in zip(regs, tmps):
            g(f"{op} {v(r)}, {v(r)}, {v(t)}")


def cross_row_reduce(g, regs, tmps, op, both=True):
    sws = ("v_permlane16_swap_b32", "v_permlane32_swap_b32") if both else ("v_permlane16_swap_b32",)
    for sw in sws:
        for r, t in zip(regs, tmps):
            g(f"v_mov_b32 {v(t)}, {v(r)}")
        g("s_nop 1")
        for r, t in zip(regs, tmps):
            g(f"{sw} {v(r)}, {v(t)}")
        g("s_nop 1")
        for r, t in zip(regs, tmps):
            g(f"{op} {v(r)}, {v(r)}, {v(t)}")


def unpack8(g, dst, src):
    for i in range(4):
        g(f"v_lshlrev_b32 {v(dst+2*i)}, 16, {v(src+i)}")
        g(f"v_and_b32 {v(dst+2*i+1)}, 0xffff0000, {v(src+i)}")


def layernorm2(g, F, OUTP, T):
    s0, s1, t0, t1 = T, T + 1, T + 2, T + 3
    D = T + 4
    for b, s in ((0, s0), (1, s1)):
        f = F + 8 * b
        g(f"v_add_f32 {v(s)}, {v(f)}, {v(f+1)}")
        for i in range(2, 8):
            g(f"v_add_f32 {v(s)}, {v(s)}, {v(f+i)}")
    wave_reduce(g, [s0, s1], [t0, t1], "v_add_f32")
    g(f"v_mul_f32 {v(s0)}, {INV512:#x}, {v(s0)}")
    g(f"v_mul_f32 {v(s1)}, {INV512:#x}, {v(s1)}")
    q0, q1 = T + 12, T + 13
    for b, s, q in ((0, s0, q0), (1, s1, q1)):
        f = F + 8 * b
        for i in range(8):
            g(f"v_sub_f32 {v(D+i)}, {v(f+i)}, {v(s)}")
        g(f"v_mul_f32 {v(q)}, {v(D)}, {v(D)}")
        for i in range(1, 8):
            g(f"v_fmac_f32 {v(q)}, {v(D+i)}, {v(D+i)}")
    wave_reduce(g, [q0, q1], [t0, t1], "v_add_f32")
    for s, q in ((s0, q0), (s1, q1)):
        g(f"v_mul_f32 {v(q)}, {INV512:#x}, {v(q)}")
        bf16r(g, q, q, t0)
        g(f"v_add_f32 {v(q)}, {EPS:#x}, {v(q)}")
        bf16r(g, q, q, t0)
        g(f"v_sqrt_f32 {v(q)}, {v(q)}")
        g("s_nop 0")
        bf16r(g, q, q, t0)
        bf16r(g, s, s, t0)
    r0, r1 = T + 14, T + 15
    g(f"v_rcp_f32 {v(r0)}, {v(q0)}")
    g(f"v_rcp_f32 {v(r1)}, {v(q1)}")
    g("s_nop 0")
    for b, s, q, r in ((0, s0, q0, r0), (1, s1, q1, r1)):
        f = F + 8 * b
        for i in range(0, 8, 2):
            g(f"v_sub_f32 {v(D)}, {v(f+i)}, {v(s)}")
            g(f"v_sub_f32 {v(D+1)}, {v(f+i+1)}, {v(s)}")
            g(f"v_cvt_pk_bf16_f32 {v(D+2)}, {v(D)}, {v(D+1)}")
            g(f"v_lshlrev_b32 {v(D)}, 16, {v(D+2)}")
            g(f"v_and_b32 {v(D+1)}, 0xffff0000, {v(D+2)}")
            g(f"v_mul_f32 {v(D+2)}, {v(D)}, {v(r)}")
            g(f"v_mul_f32 {v(D+3)}, {v(D+1)}, {v(r)}")
            g(f"v_fma_f32 {v(D+4)}, -{v(D+2)}, {v(q)}, {v(D)}")
            g(f"v_fma_f32 {v(D+5)}, -{v(D+3)}, {v(q)}, {v(D+1)}")
            g(f"v_fmac_f32 {v(D+2)}, {v(D+4)}, {v(r)}")
            g(f"v_fmac_f32 {v(D+3)}, {v(D+5)}, {v(r)}")
            g(f"v_cvt_pk_bf16_f32 {v(OUTP+4*b+i//2)}, {v(D+2)}, {v(D+3)}")


def poll_loop(g, loads, regs, tmp, name):
    L = g.newlabel(name)
    Ld = g.newlabel(name + "_done")
    g(f"s_mov_b32 s46, {SPIN}")
    g.label(L)
    for l in loads:
        g(l)
    g("s_waitcnt vmcnt(0)")
    rs = list(regs)
    g(f"v_max_u32 {v(tmp)}, {v(rs[0])}, {v(rs[1])}")
    rest = rs[2:]
    while len(rest) >= 2:
        g(f"v_max3_u32 {v(tmp)}, {v(tmp)}, {v(rest[0])}, {v(rest[1])}")
        rest = rest[2:]
    if rest:
        g(f"v_max_u32 {v(tmp)}, {v(tmp)}, {v(rest[0])}")
    g(f"v_cmp_eq_u32 vcc, -1, {v(tmp)}")
    g(f"s_cbranch_vccz {Ld}")
    g("s_sub_u32 s46, s46, 1")
    g("s_cmp_lg_u32 s46, 0")
    g(f"s_cbranch_scc1 {L}")
    g.label(Ld)


def stamp(g, idx, on):
    if not on:
        return
    g("s_memrealtime s[60:61]")
    g("s_waitcnt lgkmcnt(0)")
    g(f"v_mov_b32 v167, s60")
    g(f"v_mov_b32 v166, s62")
    g(f"global_store_dword v166, v167, s[26:27] offset:{4*idx}")


def gen(depth=4, n1=4, n2=10, wnt=True, stamps=False):
    g = G()
    A = g
    hdr = []
    hdr.append(f"; @launch grid=(256,1,1) block=(576,1,1) lds={LDS_TOTAL}")
    hdr.append('.amdgcn_target "amdgcn-amd-amdhsa--gfx950"')
    hdr.append(".text")
    hdr.append(f".globl {NAME}_kernel")
    hdr.append(".p2align 8")
    hdr.append(f".type {NAME}_kernel,@function")
    hdr.append(f"{NAME}_kernel:")
    WNT = " nt" if wnt else ""
    A("s_cmp_ge_u32 s2, 256")
    A("s_cbranch_scc1 L_end")
    A("s_load_dwordx16 s[4:19], s[0:1], 0")
    A("s_load_dwordx8 s[20:27], s[0:1], 64")
    A("v_lshrrev_b32 v1, 6, v0")
    A("v_and_b32 v0, 63, v0")
    A("s_nop 0")
    A("v_readfirstlane_b32 s28, v1")
    A("s_and_b32 s29, s2, 7")
    A("s_bfe_u32 s30, s2, 0x10003")
    A("s_lshr_b32 s31, s2, 4")
    A("s_and_b32 s32, s2, 15")
    A("s_mov_b32 s40, 0xf0f0f0f0")
    A("s_mov_b32 s41, 0xf0f0f0f0")
    A("s_mov_b32 s42, 0xff00ff00")
    A("s_mov_b32 s43, 0xff00ff00")
    A(f"s_mov_b32 s44, {LOG2E:#x}")
    A(f"s_mov_b32 s45, {SCALE:#x}")
    A("s_lshr_b32 s33, s2, 6")
    A("s_lshl_b32 s33, s33, 3")
    A("s_add_u32 s33, s33, s29")
    A("s_bfe_u32 s34, s2, 0x30003")
    A("s_lshl_b32 s50, s33, 6")
    A("s_lshl_b32 s34, s34, 3")
    A("s_add_u32 s50, s50, s34")
    A("s_mov_b32 s51, s33")
    if stamps:
        A("s_mul_i32 s62, s2, 9")
        A("s_add_u32 s62, s62, s28")
        A("s_lshl_b32 s62, s62, 7")
        A(f"s_add_u32 s62, s62, {TS:#x}")
    A("s_waitcnt lgkmcnt(0)")
    A("s_cmp_eq_u32 s28, 8")
    A("s_cbranch_scc1 L_ctrl")

    vK, vV, vM0, vM1, vW = 4, 5, 6, 7, 8
    T0 = 9
    KR = 16
    VR = 84
    QB = 148
    S = 152
    O0, O1 = 152, 156
    stamp(g, 0, stamps)
    A("s_lshl_b32 s33, s32, 21")
    A("s_lshl_b32 s34, s31, 17")
    A("s_add_u32 s33, s33, s34")
    A("s_lshl_b32 s34, s28, 14")
    A("s_add_u32 s33, s33, s34")
    A("v_lshrrev_b32 v1, 4, v0")
    A("v_bfe_u32 v2, v0, 2, 2")
    A("v_and_b32 v3, 3, v0")
    A("v_lshlrev_b32 v9, 6, v1")
    A("v_lshlrev_b32 v10, 8, v2")
    A("v_lshlrev_b32 v11, 4, v3")
    A("v_add3_u32 v9, v9, v10, v11")
    A(f"v_add_u32 {v(vK)}, s33, v9")
    A("v_lshlrev_b32 v9, 4, v0")
    A(f"v_add_u32 {v(vV)}, s33, v9")

    seq = []

    def issue(name):
        kind, m = name
        if len(seq) >= depth and throttle[0]:
            A(f"s_waitcnt vmcnt({depth-1})")
        if kind == "K":
            if m % 4 == 0 and m > 0:
                A(f"v_add_u32 {v(vK)}, 4096, {v(vK)}")
            r = KR + 4 + 4 * m
            A(f"global_load_dwordx4 {v(r,4)}, {v(vK)}, s[6:7] offset:{(m%4)*1024} nt")
        elif kind == "V":
            if m % 4 == 0 and m > 0:
                A(f"v_add_u32 {v(vV)}, 4096, {v(vV)}")
            r = VR + 4 * m
            A(f"global_load_dwordx4 {v(r,4)}, {v(vV)}, s[8:9] offset:{(m%4)*1024} nt")
        elif kind == "W":
            if m > 0:
                A(f"v_add_u32 {v(vW)}, 16384, {v(vW)}")
            A(f"s_add_u32 m0, s35, {m*1024}")
            A("s_nop 0")
            A(f"global_load_lds_dwordx4 {v(vW)}, s[12:13]{WNT}")
        seq.append(name)

    def wait_for(name):
        idx = seq.index(name)
        n = len(seq) - 1 - idx
        A(f"s_waitcnt vmcnt({n})")

    throttle = [True]
    for m in range(16):
        issue(("K", m))
    A("v_cmp_eq_u32 vcc, 0, v2")
    A(f"v_mov_b32 {v(vM0)}, 0")
    A("v_mov_b32 v9, 0xffff")
    A("v_mov_b32 v10, 0xffff0000")
    A(f"v_cndmask_b32 {v(vM0)}, {v(vM0)}, v9, vcc")
    A("v_cmp_eq_u32 vcc, 1, v2")
    A("s_nop 1")
    A(f"v_cndmask_b32 {v(vM0)}, {v(vM0)}, v10, vcc")
    A("v_cmp_eq_u32 vcc, 2, v2")
    A(f"v_mov_b32 {v(vM1)}, 0")
    A("s_nop 0")
    A(f"v_cndmask_b32 {v(vM1)}, {v(vM1)}, v9, vcc")
    A("v_cmp_eq_u32 vcc, 3, v2")
    A("s_nop 1")
    A(f"v_cndmask_b32 {v(vM1)}, {v(vM1)}, v10, vcc")
    A("s_lshl_b32 s33, s29, 19")
    A("s_lshl_b32 s34, s28, 16")
    A("s_add_u32 s33, s33, s34")
    A("s_lshl_b32 s34, s31, 6")
    A("s_add_u32 s33, s33, s34")
    A("v_lshrrev_b32 v9, 2, v0")
    A("v_lshlrev_b32 v9, 10, v9")
    A("v_lshlrev_b32 v10, 4, v3")
    A(f"v_add3_u32 {v(vW)}, v9, v10, s33")
    A("s_lshl_b32 s35, s28, 12")
    if WO_L:
        A(f"s_add_u32 s35, s35, {WO_L}")
    for m in range(n1):
        issue(("V", m))
    stamp(g, 1, False)
    A("s_barrier")
    A("v_lshlrev_b32 v9, 8, v3")
    A("v_lshlrev_b32 v10, 6, v1")
    A("v_lshlrev_b32 v11, 4, v2")
    A("v_add3_u32 v9, v9, v10, v11")
    A(f"ds_read_b128 {v(QB,4)}, v9 offset:{QL}")
    wait_for(("K", 15))
    A("s_waitcnt lgkmcnt(0)")
    for m in range(16):
        A(f"v_mfma_f32_16x16x32_bf16 {v(KR+4*m,4)}, {v(KR+4+4*m,4)}, {v(QB,4)}, 0")
    for m in range(16):
        D = KR + 4 * m
        A(f"v_cndmask_b32 v9, {v(D)}, {v(D+1)}, s[40:41]")
        A(f"v_cndmask_b32 v10, {v(D+2)}, {v(D+3)}, s[40:41]")
        A(f"v_cndmask_b32 {v(S+m)}, v9, v10, s[42:43]")
        if m == 0:
            A("s_nop 7")
    for st in ("row_ror:4", "row_ror:8"):
        for m in range(16):
            A(f"v_add_f32_dpp {v(S+m)}, {v(S+m)}, {v(S+m)} {st} {DPP}")
    for m in range(0, 16, 2):
        A(f"v_cvt_pk_bf16_f32 v9, {v(S+m)}, {v(S+m+1)}")
        A("v_lshlrev_b32 v10, 16, v9")
        A("v_and_b32 v11, 0xffff0000, v9")
        A("v_mul_f32 v10, s45, v10")
        A("v_mul_f32 v11, s45, v11")
        A("v_cvt_pk_bf16_f32 v9, v10, v11")
        A(f"v_lshlrev_b32 {v(S+m)}, 16, v9")
        A(f"v_and_b32 {v(S+m+1)}, 0xffff0000, v9")
    A(f"v_max3_f32 v12, {v(S)}, {v(S+1)}, {v(S+2)}")
    for m in range(3, 15, 2):
        A(f"v_max3_f32 v12, v12, {v(S+m)}, {v(S+m+1)}")
    A(f"v_max_f32 v12, v12, {v(S+15)}")
    cross_row_reduce(g, [12], [9], "v_max_f32")
    for m in range(16):
        A(f"v_sub_f32 {v(KR+m)}, {v(S+m)}, v12")
        A(f"v_mul_f32 {v(KR+m)}, s44, {v(KR+m)}")
        A(f"v_exp_f32 {v(KR+m)}, {v(KR+m)}")
    A("s_nop 0")
    A(f"v_add_f32 v13, {v(KR)}, {v(KR+1)}")
    for m in range(2, 16):
        A(f"v_add_f32 v13, v13, {v(KR+m)}")
    cross_row_reduce(g, [13], [9], "v_add_f32")
    A("s_lshl_b32 s33, s28, 5")
    A("v_lshlrev_b32 v9, 3, v3")
    A("v_add_u32 v9, s33, v9")
    A(f"ds_write_b64 v9, v[12:13] offset:{WST}")
    A("s_waitcnt lgkmcnt(0)")
    A("s_barrier")
    for m in range(n1, n2):
        issue(("V", m))
    for m in range(17):
        A(f"v_mov_b32 {v(KR+4*m)}, 0")
        A(f"v_mov_b32 {v(KR+4*m+1)}, 0")
    A("s_barrier")
    A("v_lshlrev_b32 v9, 3, v3")
    A(f"ds_read_b64 v[12:13], v9 offset:{GST}")
    A("s_waitcnt lgkmcnt(0)")
    for m in range(16):
        t = 9 + (m % 2)
        A(f"v_sub_f32 {v(S+m)}, {v(S+m)}, v12")
        A(f"v_mul_f32 {v(S+m)}, s44, {v(S+m)}")
        A(f"v_exp_f32 {v(S+m)}, {v(S+m)}")
    A("s_nop 0")
    for m in range(16):
        A(f"v_mul_f32 {v(S+m)}, {v(S+m)}, v13")
        A(f"v_cvt_pk_bf16_f32 {v(S+m)}, {v(S+m)}, {v(S+m)}")
        A(f"v_and_b32 {v(KR+4*m+2)}, {v(S+m)}, {v(vM0)}")
        A(f"v_and_b32 {v(KR+4*m+3)}, {v(S+m)}, {v(vM1)}")
    throttle[0] = False
    for m in range(n2, 16):
        issue(("V", m))
    for m in range(4):
        issue(("W", m))
    A("s_nop 1")
    for m in range(16):
        wait_for(("V", m))
        c0 = "0" if m == 0 else v(O0, 4)
        c1 = "0" if m == 0 else v(O1, 4)
        A(f"v_mfma_f32_16x16x32_bf16 {v(O0,4)}, {v(VR+4*m,4)}, {v(KR+4*m+2,4)}, {c0}")
        A(f"v_mfma_f32_16x16x32_bf16 {v(O1,4)}, {v(VR+4*m,4)}, {v(KR+4*m,4)}, {c1}")
    A("s_lshl_b32 s33, s28, 11")
    A("v_lshlrev_b32 v9, 5, v0")
    A("v_add_u32 v9, s33, v9")
    A("s_nop 7")
    A(f"ds_write_b128 v9, {v(O0,4)} offset:{RED}")
    A(f"ds_write_b128 v9, {v(O1,4)} offset:{RED+16}")
    A("s_waitcnt lgkmcnt(0)")
    A("s_barrier")
    Lskip = g.newlabel("skip_opub")
    A("s_cmp_ge_u32 s28, 2")
    A(f"s_cbranch_scc1 {Lskip}")
    A("s_lshl_b32 s33, s28, 10")
    A("v_lshlrev_b32 v9, 4, v0")
    A("v_add_u32 v9, s33, v9")
    for w in range(8):
        A(f"ds_read_b128 {v(16+4*w,4)}, v9 offset:{RED+2048*w}")
    A("s_waitcnt lgkmcnt(0)")
    for w in range(1, 8):
        for i in range(4):
            A(f"v_add_f32 {v(16+i)}, {v(16+i)}, {v(16+4*w+i)}")
    for i in range(4):
        A(f"v_min_u32 {v(16+i)}, 0xfffffffe, {v(16+i)}")
    A("s_lshl_b32 s33, s32, 15")
    A("s_lshl_b32 s34, s31, 11")
    A("s_add_u32 s33, s33, s34")
    A(f"s_add_u32 s33, s33, {OP:#x}")
    A("v_add_u32 v9, s33, v9")
    A(f"global_store_dwordx4 v9, {v(16,4)}, s[26:27] sc1")
    g.label(Lskip)
    A("s_and_b32 s33, s28, 1")
    A("s_lshl_b32 s33, s33, 10")
    A("s_lshr_b32 s34, s28, 1")
    A("s_lshl_b32 s36, s34, 13")
    A("s_lshl_b32 s37, s32, 15")
    A("s_add_u32 s36, s36, s37")
    A("s_add_u32 s36, s36, s33")
    A(f"s_add_u32 s36, s36, {OP+4096:#x}")
    A("v_lshlrev_b32 v9, 4, v0")
    A("v_add_u32 v10, s36, v9")
    loads = [f"global_load_dwordx4 {v(16+4*i,4)}, v10, s[26:27] offset:{-4096+2048*i} sc1" for i in range(4)]
    poll_loop(g, loads, list(range(16, 32)), 11, "t1")
    for i in range(1, 4):
        for k in range(4):
            A(f"v_add_f32 {v(16+k)}, {v(16+k)}, {v(16+4*i+k)}")
    A("s_lshl_b32 s34, s34, 11")
    A("s_add_u32 s34, s34, s33")
    A("v_add_u32 v10, s34, v9")
    A(f"ds_write_b128 v10, {v(16,4)} offset:{R1}")
    A("s_waitcnt lgkmcnt(0)")
    A("s_barrier")
    A("s_lshl_b32 s33, s28, 8")
    A("v_lshlrev_b32 v9, 5, v1")
    A("v_add_u32 v9, s33, v9")
    for kk in range(2):
        for sq in range(4):
            for hf in range(2):
                A(f"ds_read_b128 {v(16+32*kk+8*sq+4*hf,4)}, v9 offset:{R1+2048*sq+128*kk+16*hf}")
    A("s_lshr_b32 s33, s28, 1")
    A("s_lshl_b32 s33, s33, 11")
    A("s_and_b32 s34, s28, 1")
    A("s_lshl_b32 s34, s34, 7")
    A("s_add_u32 s33, s33, s34")
    A(f"s_add_u32 s33, s33, {WO_L}")
    A("v_lshlrev_b32 v10, 13, v1")
    A("v_lshlrev_b32 v11, 9, v2")
    A("v_lshlrev_b32 v12, 3, v3")
    A("v_add3_u32 v10, v10, v11, v12")
    A("v_add_u32 v10, s33, v10")
    BR = 96
    for kk in range(2):
        for n in range(2):
            for u in range(2):
                A(f"ds_read_b64_tr_b16 {v(BR+8*kk+4*n+2*u,2)}, v10 offset:{64*kk+256*u+32*n}")
    A("s_waitcnt lgkmcnt(0)")
    AR = 88
    for kk in range(2):
        base = 16 + 32 * kk
        for i in range(8):
            A(f"v_add_f32 {v(base+i)}, {v(base+i)}, {v(base+8+i)}")
            A(f"v_add_f32 {v(base+16+i)}, {v(base+16+i)}, {v(base+24+i)}")
            A(f"v_add_f32 {v(base+i)}, {v(base+i)}, {v(base+16+i)}")
        for i in range(4):
            A(f"v_cvt_pk_bf16_f32 {v(AR+4*kk+i)}, {v(base+2*i)}, {v(base+2*i+1)}")
    A("s_nop 1")
    DR = 112
    for n in range(2):
        A(f"v_mfma_f32_16x16x32_bf16 {v(DR+4*n,4)}, {v(AR,4)}, {v(BR+4*n,4)}, 0")
    for n in range(2):
        A(f"v_mfma_f32_16x16x32_bf16 {v(DR+4*n,4)}, {v(AR+4,4)}, {v(BR+8+4*n,4)}, {v(DR+4*n,4)}")
    A("s_lshl_b32 s33, s28, 7")
    A("v_and_b32 v9, 15, v0")
    A("v_lshlrev_b32 v9, 2, v9")
    A("v_add_u32 v9, s33, v9")
    A("s_nop 7")
    A(f"ds_write_b32 v9, {v(DR)} offset:{R2}")
    A(f"ds_write_b32 v9, {v(DR+4)} offset:{R2+64}")
    A("s_waitcnt lgkmcnt(0)")
    A("s_barrier")
    Lskip = g.newlabel("skip_ypub")
    A("s_cmp_lg_u32 s28, 0")
    A(f"s_cbranch_scc1 {Lskip}")
    A("v_and_b32 v9, 31, v0")
    A("v_lshlrev_b32 v9, 2, v9")
    for w in range(8):
        A(f"ds_read_b32 {v(16+w)}, v9 offset:{R2+128*w}")
    A("s_waitcnt lgkmcnt(0)")
    for w in range(1, 8):
        A(f"v_add_f32 v16, v16, {v(16+w)}")
    A("v_min_u32 v16, 0xfffffffe, v16")
    A("s_lshl_b32 s33, s29, 12")
    A("s_lshl_b32 s34, s30, 11")
    A("s_add_u32 s33, s33, s34")
    A("s_lshl_b32 s34, s31, 7")
    A("s_add_u32 s33, s33, s34")
    A(f"s_add_u32 s33, s33, {YP:#x}")
    A("v_add_u32 v9, s33, v9")
    A("s_mov_b32 exec_hi, 0")
    A("global_store_dword v9, v16, s[26:27] sc1")
    A("s_mov_b64 exec, -1")
    g.label(Lskip)
    A("s_cmp_ge_u32 s51, 28")
    A("s_cbranch_scc1 L_end")
    A("s_and_b32 s33, s28, 3")
    A("s_lshl_b32 s33, s33, 10")
    A("s_lshr_b32 s34, s28, 2")
    A("s_lshl_b32 s36, s34, 14")
    A("s_add_u32 s36, s36, s33")
    A(f"s_add_u32 s36, s36, {YP+4096:#x}")
    A("v_lshlrev_b32 v9, 4, v0")
    A("v_add_u32 v10, s36, v9")
    A("v_add_u32 v11, 8192, v10")
    loads = [f"global_load_dwordx4 {v(16,4)}, v10, s[26:27] offset:-4096 sc1",
             f"global_load_dwordx4 {v(20,4)}, v10, s[26:27] sc1",
             f"global_load_dwordx4 {v(24,4)}, v11, s[26:27] offset:-4096 sc1",
             f"global_load_dwordx4 {v(28,4)}, v11, s[26:27] sc1"]
    poll_loop(g, loads, list(range(16, 32)), 12, "t2")
    for i in range(1, 4):
        for k in range(4):
            A(f"v_add_f32 {v(16+k)}, {v(16+k)}, {v(16+4*i+k)}")
    A("s_lshl_b32 s34, s34, 12")
    A("s_add_u32 s34, s34, s33")
    A("v_add_u32 v10, s34, v9")
    A(f"ds_write_b128 v10, {v(16,4)} offset:{R3}")
    A("s_waitcnt lgkmcnt(0)")
    A("s_barrier")
    A("v_lshlrev_b32 v9, 5, v0")
    A("v_lshlrev_b32 v10, 4, v0")
    for hh in range(2):
        for b in range(2):
            for hf in range(2):
                A(f"ds_read_b128 {v(16+16*hh+8*b+4*hf,4)}, v9 offset:{R3+4096*hh+2048*b+16*hf}")
    A(f"ds_read_b128 {v(48,4)}, v10 offset:{XL}")
    A(f"ds_read_b128 {v(52,4)}, v10 offset:{XL+1024}")
    A("s_waitcnt lgkmcnt(0)")
    unpack8(g, 56, 48)
    unpack8(g, 64, 52)
    for i in range(0, 16, 2):
        A(f"v_add_f32 {v(16+i)}, {v(16+i)}, {v(32+i)}")
        A(f"v_add_f32 {v(16+i+1)}, {v(16+i+1)}, {v(32+i+1)}")
        A(f"v_cvt_pk_bf16_f32 v11, {v(16+i)}, {v(16+i+1)}")
        A(f"v_lshlrev_b32 {v(16+i)}, 16, v11")
        A(f"v_and_b32 {v(16+i+1)}, 0xffff0000, v11")
        A(f"v_add_f32 {v(16+i)}, {v(16+i)}, {v(56+i)}")
        A(f"v_add_f32 {v(16+i+1)}, {v(16+i+1)}, {v(56+i+1)}")
        A(f"v_cvt_pk_bf16_f32 {v(72+i//2)}, {v(16+i)}, {v(16+i+1)}")
        A(f"v_lshlrev_b32 {v(16+i)}, 16, {v(72+i//2)}")
        A(f"v_and_b32 {v(16+i+1)}, 0xffff0000, {v(72+i//2)}")
    A(f"ds_write_b128 v10, {v(72,4)} offset:{HL}")
    A(f"ds_write_b128 v10, {v(76,4)} offset:{HL+1024}")
    layernorm2(g, 16, 80, 32)
    A(f"ds_write_b128 v10, {v(80,4)} offset:{HN}")
    A(f"ds_write_b128 v10, {v(84,4)} offset:{HN+1024}")
    A("s_lshl_b32 s33, s28, 7")
    A("v_and_b32 v9, 1, v0")
    A("v_lshlrev_b32 v9, 10, v9")
    A("v_lshlrev_b32 v11, 4, v1")
    A("v_add3_u32 v9, v9, v11, s33")
    A("s_lshl_b32 s33, s28, 10")
    A(f"s_add_u32 s33, s33, {GU_L}")
    A("v_lshrrev_b32 v11, 1, v3")
    A("v_lshlrev_b32 v11, 13, v11")
    A("v_lshlrev_b32 v12, 7, v1")
    A("v_lshlrev_b32 v13, 4, v2")
    A("v_add3_u32 v11, v11, v12, v13")
    A("v_and_b32 v12, 1, v3")
    A("v_lshlrev_b32 v12, 3, v12")
    A("v_add3_u32 v11, v11, v12, s33")
    A("s_waitcnt lgkmcnt(0)")
    for kk in range(2):
        A(f"ds_read_b128 {v(AR+4*kk,4)}, v9 offset:{HN+64*kk}")
        for u in range(2):
            A(f"ds_read_b64_tr_b16 {v(BR+4*kk+2*u,2)}, v11 offset:{512*kk+64*u}")
    A("s_waitcnt lgkmcnt(0)")
    A(f"v_mfma_f32_16x16x32_bf16 {v(DR,4)}, {v(AR,4)}, {v(BR,4)}, 0")
    A(f"v_mfma_f32_16x16x32_bf16 {v(DR,4)}, {v(AR+4,4)}, {v(BR+4,4)}, {v(DR,4)}")
    A("s_lshl_b32 s33, s28, 7")
    A("v_and_b32 v9, 15, v0")
    A("v_lshlrev_b32 v9, 2, v9")
    A("v_add_u32 v9, s33, v9")
    A("s_nop 7")
    A(f"ds_write_b32 v9, {v(DR)} offset:{R4}")
    A(f"ds_write_b32 v9, {v(DR+1)} offset:{R4+64}")
    A("s_waitcnt lgkmcnt(0)")
    A("s_barrier")
    Lskip = g.newlabel("skip_apub")
    A("s_cmp_lg_u32 s28, 0")
    A(f"s_cbranch_scc1 {Lskip}")
    A("v_bfe_u32 v9, v0, 2, 1")
    A("v_lshlrev_b32 v10, 6, v9")
    A("v_lshlrev_b32 v11, 3, v3")
    A("v_add_u32 v10, v10, v11")
    for w in range(8):
        A(f"ds_read_b64 {v(16+2*w,2)}, v10 offset:{R4+128*w}")
        A(f"ds_read_b64 {v(32+2*w,2)}, v10 offset:{R4+128*w+32}")
    A("s_waitcnt lgkmcnt(0)")
    for w in range(1, 8):
        for i in range(2):
            A(f"v_add_f32 {v(16+i)}, {v(16+i)}, {v(16+2*w+i)}")
            A(f"v_add_f32 {v(32+i)}, {v(32+i)}, {v(32+2*w+i)}")
    A("v_cvt_pk_bf16_f32 v18, v16, v17")
    A("v_lshlrev_b32 v16, 16, v18")
    A("v_and_b32 v17, 0xffff0000, v18")
    A("v_cvt_pk_bf16_f32 v18, v32, v33")
    A("v_lshlrev_b32 v32, 16, v18")
    A("v_and_b32 v33, 0xffff0000, v18")
    for i in range(2):
        A(f"v_mul_f32 {v(18+i)}, s44, {v(16+i)}")
        A(f"v_exp_f32 {v(18+i)}, -{v(18+i)}")
    A("s_nop 0")
    for i in range(2):
        A(f"v_add_f32 {v(18+i)}, 1.0, {v(18+i)}")
        A(f"v_rcp_f32 {v(20+i)}, {v(18+i)}")
    A("s_nop 0")
    for i in range(2):
        A(f"v_mul_f32 {v(22+i)}, {v(16+i)}, {v(20+i)}")
        A(f"v_fma_f32 {v(24+i)}, -{v(22+i)}, {v(18+i)}, {v(16+i)}")
        A(f"v_fmac_f32 {v(22+i)}, {v(24+i)}, {v(20+i)}")
    for i in range(2):
        A(f"v_mul_f32 {v(24+i)}, {v(16+i)}, {v(20+i)}")
        A("s_mov_b32 s33, 0x200")
        A(f"v_cmp_class_f32 vcc, {v(18+i)}, s33")
        A("s_nop 1")
        A(f"v_cndmask_b32 {v(22+i)}, {v(22+i)}, {v(24+i)}, vcc")
    A("v_cvt_pk_bf16_f32 v18, v22, v23")
    A("v_lshlrev_b32 v22, 16, v18")
    A("v_and_b32 v23, 0xffff0000, v18")
    A("v_mul_f32 v22, v22, v32")
    A("v_mul_f32 v23, v23, v33")
    A("v_cvt_pk_bf16_f32 v18, v22, v23")
    A("v_min_u32 v18, 0xfffffffe, v18")
    A("s_lshl_b32 s33, s50, 1")
    A(f"s_add_u32 s33, s33, {AC:#x}")
    A("v_mul_u32_u24 v9, 3584, v9")
    A("v_lshlrev_b32 v10, 2, v3")
    A("v_add3_u32 v9, v9, v10, s33")
    A("s_mov_b64 exec, 0xff")
    A("global_store_dword v9, v18, s[26:27] sc1")
    A("s_mov_b64 exec, -1")
    g.label(Lskip)
    A("s_cmp_ge_u32 s2, 64")
    A("s_cbranch_scc1 L_end")
    A("s_mul_i32 s33, s28, 448")
    A(f"s_add_u32 s33, s33, {AC:#x}")
    A("v_and_b32 v9, 1, v0")
    A("v_mul_u32_u24 v9, 3584, v9")
    A("v_lshlrev_b32 v10, 4, v1")
    A("v_add3_u32 v9, v9, v10, s33")
    A("s_mul_i32 s33, s28, 3584")
    A(f"s_add_u32 s33, s33, {WD_L}")
    A("v_lshlrev_b32 v11, 7, v1")
    A("v_lshlrev_b32 v12, 4, v2")
    A("v_and_b32 v13, 1, v3")
    A("v_lshlrev_b32 v13, 3, v13")
    A("v_add3_u32 v11, v11, v12, v13")
    A("v_add_u32 v11, s33, v11")
    for kk in range(7):
        for u in range(2):
            A(f"ds_read_b64_tr_b16 {v(48+4*kk+2*u,2)}, v11 offset:{512*kk+64*u}")
    loads = [f"global_load_dwordx4 {v(16+4*kk,4)}, v9, s[26:27] offset:{64*kk} sc1" for kk in range(7)]
    poll_loop(g, loads, list(range(16, 44)), 12, "t3")
    A("s_waitcnt lgkmcnt(0)")
    for kk in range(7):
        c = "0" if kk == 0 else v(DR, 4)
        A(f"v_mfma_f32_16x16x32_bf16 {v(DR,4)}, {v(16+4*kk,4)}, {v(48+4*kk,4)}, {c}")
    A("s_lshl_b32 s33, s28, 6")
    A("v_and_b32 v9, 7, v0")
    A("v_lshlrev_b32 v9, 2, v9")
    A("v_add_u32 v9, s33, v9")
    A("s_nop 7")
    A(f"ds_write_b32 v9, {v(DR)} offset:{R5}")
    A(f"ds_write_b32 v9, {v(DR+1)} offset:{R5+32}")
    A("s_waitcnt lgkmcnt(0)")
    A("s_barrier")
    A("s_cmp_lg_u32 s28, 0")
    A("s_cbranch_scc1 L_end")
    A("v_and_b32 v9, 15, v0")
    A("v_lshlrev_b32 v10, 2, v9")
    for w in range(8):
        A(f"ds_read_b32 {v(16+w)}, v10 offset:{R5+64*w}")
    A("v_lshrrev_b32 v11, 3, v9")
    A("v_lshlrev_b32 v11, 10, v11")
    A("v_and_b32 v12, 7, v0")
    A("v_lshlrev_b32 v12, 1, v12")
    A("s_lshl_b32 s33, s50, 1")
    A("v_add3_u32 v11, v11, v12, s33")
    A(f"ds_read_u16 v24, v11 offset:{HL}")
    A("s_waitcnt lgkmcnt(0)")
    for w in range(1, 8):
        A(f"v_add_f32 v16, v16, {v(16+w)}")
    bf16r(g, 16, 16, 17)
    A("v_lshlrev_b32 v24, 16, v24")
    A("v_add_f32 v16, v16, v24")
    A("v_cvt_pk_bf16_f32 v16, v16, v16")
    A("s_mov_b64 exec, 0xffff")
    A("global_store_short v11, v16, s[22:23]")
    A("s_mov_b64 exec, -1")
    A("s_branch L_end")

    g.label("L_ctrl")
    stamp(g, 0, stamps)
    A("v_lshlrev_b32 v1, 4, v0")
    A("global_load_dwordx4 v[4:7], v1, s[4:5]")
    A("global_load_dwordx4 v[8:11], v1, s[4:5] offset:1024")
    A("s_bfe_u32 s33, s2, 0x20003")
    A("s_lshl_b32 s34, s29, 2")
    A("s_add_u32 s36, s33, s34")
    A("s_lshr_b32 s37, s2, 5")
    A("s_lshl_b32 s33, s37, 19")
    A("s_lshl_b32 s34, s36, 8")
    A("s_add_u32 s33, s33, s34")
    A("v_lshrrev_b32 v2, 4, v0")
    A("v_and_b32 v3, 15, v0")
    A("v_lshlrev_b32 v12, 13, v2")
    A("v_lshlrev_b32 v13, 4, v3")
    A("v_add3_u32 v12, v12, v13, s33")
    WQR = 16
    for i in range(16):
        if i:
            A("v_add_u32 v12, 0x8000, v12")
        A(f"global_load_dwordx4 {v(WQR+4*i,4)}, v12, s[10:11] nt")
    for i in range(4):
        A(f"v_mov_b32 {v(12+i)}, -1")
    A("s_lshl_b32 s33, s32, 4")
    A("s_add_u32 s33, s33, s31")
    A("s_lshl_b32 s34, s33, 11")
    A(f"s_add_u32 s34, s34, {OP:#x}")
    A("v_add_u32 v80, s34, v1")
    A("global_store_dwordx4 v80, v[12:15], s[26:27] sc1")
    A("global_store_dwordx4 v80, v[12:15], s[26:27] offset:1024 sc1")
    A("s_lshl_b32 s34, s33, 5")
    A(f"s_add_u32 s34, s34, {ST:#x}")
    A("v_add_u32 v80, s34, v1")
    A("s_mov_b64 exec, 0x3")
    A("global_store_dwordx4 v80, v[12:15], s[26:27] sc1")
    A("s_mov_b64 exec, -1")
    A("s_lshl_b32 s34, s29, 12")
    A("s_lshl_b32 s35, s30, 11")
    A("s_add_u32 s34, s34, s35")
    A("s_lshl_b32 s35, s31, 7")
    A("s_add_u32 s34, s34, s35")
    A(f"s_add_u32 s34, s34, {YP:#x}")
    A("v_add_u32 v80, s34, v1")
    A("s_mov_b64 exec, 0xff")
    A("global_store_dwordx4 v80, v[12:15], s[26:27] sc1")
    A("s_mov_b64 exec, -1")
    Lskip = g.newlabel("skip_acs")
    A("s_cmp_ge_u32 s51, 28")
    A(f"s_cbranch_scc1 {Lskip}")
    A("s_lshl_b32 s34, s50, 1")
    A(f"s_add_u32 s34, s34, {AC:#x}")
    A("v_mul_u32_u24 v80, 3584, v0")
    A("v_add_u32 v80, s34, v80")
    A("s_mov_b64 exec, 0x3")
    A("global_store_dwordx4 v80, v[12:15], s[26:27] sc1")
    A("s_mov_b64 exec, -1")
    g.label(Lskip)
    A("s_waitcnt vmcnt(20)")
    A(f"ds_write_b128 v1, v[4:7] offset:{XL}")
    A(f"ds_write_b128 v1, v[8:11] offset:{XL+1024}")
    unpack8(g, 96, 4)
    unpack8(g, 104, 8)
    layernorm2(g, 96, 112, 120)
    A(f"ds_write_b128 v1, {v(112,4)} offset:{XN}")
    A(f"ds_write_b128 v1, {v(116,4)} offset:{XN+1024}")
    A("v_bfe_u32 v4, v0, 3, 1")
    A("v_lshlrev_b32 v4, 10, v4")
    A("v_lshlrev_b32 v5, 1, v2")
    A("s_lshl_b32 s33, s37, 7")
    A("v_add3_u32 v4, v4, v5, s33")
    A("s_waitcnt lgkmcnt(0)")
    for i in range(16):
        A(f"ds_read_u16 {v(96+i)}, v4 offset:{XN+8*i}")
    A("v_and_b32 v5, 7, v0")
    A("v_mov_b32 v6, 0xffff")
    A("v_mov_b32 v7, 0xffff0000")
    for d in range(4):
        A(f"v_mov_b32 {v(8+d)}, 0")
        A(f"v_cmp_eq_u32 vcc, {2*d}, v5")
        A("s_nop 1")
        A(f"v_cndmask_b32 {v(8+d)}, {v(8+d)}, v6, vcc")
        A(f"v_cmp_eq_u32 vcc, {2*d+1}, v5")
        A("s_nop 1")
        A(f"v_cndmask_b32 {v(8+d)}, {v(8+d)}, v7, vcc")
    A("s_waitcnt lgkmcnt(0)")
    A("s_waitcnt vmcnt(4)")
    QD = 84
    for i in range(16):
        Bq = 112 + 4 * (i % 4)
        A(f"v_lshl_or_b32 {v(96+i)}, {v(96+i)}, 16, {v(96+i)}")
        for d in range(4):
            A(f"v_and_b32 {v(Bq+d)}, {v(96+i)}, {v(8+d)}")
        A("s_nop 1")
        c = "0" if i == 0 else v(QD, 4)
        A(f"v_mfma_f32_16x16x32_bf16 {v(QD,4)}, {v(WQR+4*i,4)}, {v(Bq,4)}, {c}")
    A("s_lshl_b32 s33, s37, 5")
    A("s_add_u32 s33, s33, s36")
    A("s_lshl_b32 s33, s33, 10")
    A("v_add_u32 v80, s33, v1")
    A("s_nop 7")
    A(f"global_store_dwordx4 v80, {v(QD,4)}, s[26:27] offset:{QP} sc1")
    A("s_waitcnt vmcnt(0)")
    A("v_mov_b32 v12, 1")
    A("v_mov_b32 v13, s2")
    A("s_mov_b64 exec, 0x1")
    A("global_store_byte v13, v12, s[24:25] sc1")
    A("s_mov_b64 exec, -1")
    stamp(g, 1, stamps)
    A("v_lshlrev_b32 v13, 2, v0")
    L = g.newlabel("fl")
    Ld = g.newlabel("fl_done")
    A(f"s_mov_b32 s46, {SPIN}")
    A("s_mov_b32 s47, 0x01010101")
    g.label(L)
    A("global_load_dword v12, v13, s[24:25] sc1")
    A("s_waitcnt vmcnt(0)")
    A("v_cmp_ne_u32 vcc, s47, v12")
    A(f"s_cbranch_vccz {Ld}")
    A("s_sub_u32 s46, s46, 1")
    A("s_cmp_lg_u32 s46, 0")
    A(f"s_cbranch_scc1 {L}")
    g.label(Ld)
    stamp(g, 2, stamps)
    A("v_lshrrev_b32 v4, 5, v0")
    A("v_bfe_u32 v5, v0, 3, 2")
    A("v_and_b32 v6, 7, v0")
    A("s_lshl_b32 s33, s29, 12")
    A("s_lshl_b32 s34, s30, 7")
    A("s_add_u32 s33, s33, s34")
    A("v_lshlrev_b32 v7, 10, v4")
    A("v_lshlrev_b32 v8, 8, v5")
    A("v_lshlrev_b32 v9, 4, v6")
    A("v_add3_u32 v7, v7, v8, v9")
    A("v_add_u32 v7, s33, v7")
    for ks in range(8):
        if ks:
            A("v_add_u32 v7, 0x8000, v7")
        for hp in range(2):
            A(f"global_load_dwordx4 {v(16+8*ks+4*hp,4)}, v7, s[26:27] offset:{QP+2048*hp} sc1")
    A("s_waitcnt vmcnt(0)")
    for ks in range(1, 8):
        for i in range(8):
            A(f"v_add_f32 {v(16+i)}, {v(16+i)}, {v(16+8*ks+i)}")
    A("v_lshlrev_b32 v7, 8, v4")
    A("v_lshlrev_b32 v8, 6, v5")
    A("v_lshlrev_b32 v9, 1, v6")
    A("v_add3_u32 v7, v7, v8, v9")
    for hp in range(2):
        for r in range(4):
            A(f"v_cvt_pk_bf16_f32 {v(24+4*hp+r)}, {v(16+4*hp+r)}, {v(16+4*hp+r)}")
            A(f"ds_write_b16 v7, {v(24+4*hp+r)} offset:{QL+512*hp+16*r}")
    A("s_waitcnt lgkmcnt(0)")
    stamp(g, 3, stamps)
    A("s_barrier")
    A("s_barrier")
    stamp(g, 4, stamps)
    A("v_and_b32 v4, 31, v0")
    A("v_lshlrev_b32 v4, 3, v4")
    A(f"ds_read_b64 v[12:13], v4 offset:{WST}")
    A("s_waitcnt lgkmcnt(0)")
    A("v_mov_b32 v14, v12")

    def red_s4(reg, tmp, op, full):
        for st in ("row_ror:4", "row_ror:8"):
            A("s_nop 1")
            A(f"{op}_dpp {v(reg)}, {v(reg)}, {v(reg)} {st} {DPP}")
        cross_row_reduce(g, [reg], [tmp], op, both=full)

    red_s4(14, 15, "v_max_f32", False)
    A("v_sub_f32 v12, v12, v14")
    A("v_mul_f32 v12, s44, v12")
    A("v_exp_f32 v12, v12")
    A("s_nop 0")
    A("v_mul_f32 v13, v13, v12")
    red_s4(13, 15, "v_add_f32", False)
    A("v_min_u32 v12, 0xfffffffe, v14")
    A("v_min_u32 v13, 0xfffffffe, v13")
    A("s_lshl_b32 s33, s32, 9")
    A("s_lshl_b32 s34, s31, 5")
    A(f"s_add_u32 s33, s33, {ST:#x}")
    A("s_add_u32 s34, s34, s33")
    A("v_lshlrev_b32 v5, 3, v0")
    A("v_add_u32 v6, s34, v5")
    A("s_mov_b64 exec, 0xf")
    A("global_store_dwordx2 v6, v[12:13], s[26:27] sc1")
    A("s_mov_b64 exec, -1")
    A("v_add_u32 v6, s33, v5")
    poll_loop(g, ["global_load_dwordx2 v[12:13], v6, s[26:27] sc1"], [12, 13], 14, "st")
    stamp(g, 5, stamps)
    A("v_mov_b32 v14, v12")
    red_s4(14, 15, "v_max_f32", True)
    A("v_sub_f32 v12, v12, v14")
    A("v_mul_f32 v12, s44, v12")
    A("v_exp_f32 v12, v12")
    A("s_nop 0")
    A("v_mul_f32 v13, v13, v12")
    red_s4(13, 15, "v_add_f32", True)
    A("v_rcp_f32 v15, v13")
    A("s_nop 0")
    A("v_fma_f32 v12, -v13, v15, 1.0")
    A("v_fmac_f32 v15, v12, v15")
    A("v_mov_b32 v12, v14")
    A("v_mov_b32 v13, v15")
    A("v_and_b32 v4, 3, v0")
    A("v_lshlrev_b32 v4, 3, v4")
    A(f"ds_write_b64 v4, v[12:13] offset:{GST}")
    A("s_waitcnt lgkmcnt(0)")
    A("s_barrier")
    stamp(g, 6, stamps)
    Lnog = g.newlabel("nogu")
    A("s_cmp_ge_u32 s51, 28")
    A(f"s_cbranch_scc1 {Lnog}")
    A("s_lshl_b32 s33, s50, 1")
    A("v_mul_u32_u24 v4, 3584, v0")
    A("v_add_u32 v4, s33, v4")
    A("s_mov_b32 s34, 229376")
    for q in range(8):
        if q:
            A("v_add_u32 v4, s34, v4")
        A(f"s_mov_b32 m0, {GU_L+1024*q}")
        A("s_nop 0")
        A(f"global_load_lds_dwordx4 v4, s[16:17]{WNT}")
        A(f"s_mov_b32 m0, {GU_L+8192+1024*q}")
        A("s_nop 0")
        A(f"global_load_lds_dwordx4 v4, s[18:19]{WNT}")
    Lnod = g.newlabel("nod")
    A("s_cmp_ge_u32 s2, 64")
    A(f"s_cbranch_scc1 {Lnod}")
    A("v_lshlrev_b32 v4, 10, v0")
    A("v_add_u32 v4, s33, v4")
    for q in range(28):
        if q:
            A("v_add_u32 v4, 0x10000, v4")
        A(f"s_mov_b32 m0, {WD_L+1024*q}")
        A("s_nop 0")
        A(f"global_load_lds_dwordx4 v4, s[20:21]{WNT}")
    g.label(Lnod)
    g.label(Lnog)
    A("s_barrier")
    stamp(g, 7, stamps)
    A("s_barrier")
    stamp(g, 8, stamps)
    A("s_barrier")
    stamp(g, 9, stamps)
    A("s_cmp_ge_u32 s51, 28")
    A("s_cbranch_scc1 L_end")
    A("s_waitcnt vmcnt(0)")
    A("s_barrier")
    stamp(g, 10, stamps)
    A("s_barrier")
    stamp(g, 11, stamps)
    A("s_cmp_ge_u32 s2, 64")
    A("s_cbranch_scc1 L_end")
    A("s_barrier")
    stamp(g, 12, stamps)
    g.label("L_end")
    A("s_endpgm")

    tail = []
    tail.append('.section .rodata,"a"')
    tail.append(".p2align 6")
    tail.append(f".amdhsa_kernel {NAME}_kernel")
    tail.append("  .amdhsa_next_free_vgpr 168")
    tail.append("  .amdhsa_next_free_sgpr 102")
    tail.append("  .amdhsa_accum_offset 168")
    tail.append("  .amdhsa_group_segment_fixed_size 0")
    tail.append("  .amdhsa_kernarg_size 96")
    tail.append("  .amdhsa_user_sgpr_count 2")
    tail.append("  .amdhsa_user_sgpr_kernarg_segment_ptr 1")
    tail.append("  .amdhsa_system_sgpr_workgroup_id_x 1")
    tail.append(".end_amdhsa_kernel")
    return "\n".join(hdr + g.L + tail) + "\n"


if __name__ == "__main__":
    import argparse
    ap = argparse.ArgumentParser()
    ap.add_argument("-o", default="k.s")
    ap.add_argument("--depth", type=int, default=4)
    ap.add_argument("--n1", type=int, default=4)
    ap.add_argument("--n2", type=int, default=10)
    ap.add_argument("--wnt", type=int, default=1)
    ap.add_argument("--stamps", type=int, default=0)
    a = ap.parse_args()
    open(a.o, "w").write(gen(a.depth, a.n1, a.n2, bool(a.wnt), bool(a.stamps)))
```

```python
import sys

NAME = "sequential_preLN__gqa_block_cached__swiglu_ffn__decode"

QP = 0x00000
ST = 0x40000
OP = 0x80000
YP = 0x100000
AC = 0x110000
FL = 0x120000
F1 = 0x121000
F2 = 0x122000
F3 = 0x123000
TS = 0x200000
GT = 0x300000
DT = 0x700000

XL = 0
XN = XL + 2048
QL = XN + 2048
WST = QL + 1024
GST = WST + 256
RED = GST + 256
AO = RED + 16384
R2 = AO + 1024
LS = R2 + 1024
HN = LS + 256
HL = HN + 2048
R4 = HL + 2048
R5 = R4 + 1024
WO_L = 32768
assert R5 + 512 <= WO_L
GU_L = WO_L + 32768
WD_L = GU_L + 16384
LDS_TOTAL = WD_L + 28672

LOG2E = 0x3FB8AA3B
SCALE = 0x3DB504F3
EPS = 0x3727C5AC
INV512 = 0x3B000000
SPIN = 20000


class G:
    def __init__(self):
        self.L = []
        self.nlab = 0

    def __call__(self, s):
        self.L.append("  " + s)

    def label(self, name):
        self.L.append(name + ":")

    def newlabel(self, base):
        self.nlab += 1
        return f"L_{base}_{self.nlab}"


def v(i, n=1):
    return f"v{i}" if n == 1 else f"v[{i}:{i+n-1}]"


DPP = "row_mask:0xf bank_mask:0xf"


def bf16r(g, dst, src, tmp):
    g(f"v_cvt_pk_bf16_f32 {v(tmp)}, {v(src)}, {v(src)}")
    g(f"v_lshlrev_b32 {v(dst)}, 16, {v(tmp)}")


def dpp_steps(g, regs, op, steps):
    for st in steps:
        if len(regs) < 3:
            g("s_nop 1")
        for r in regs:
            g(f"{op}_dpp {v(r)}, {v(r)}, {v(r)} {st} {DPP}")


def swap_reduce(g, regs, tmps, op, which):
    for sw in which:
        ins = {16: "v_permlane16_swap_b32", 32: "v_permlane32_swap_b32"}[sw]
        for r, t in zip(regs, tmps):
            g(f"v_mov_b32 {v(t)}, {v(r)}")
        g("s_nop 1")
        for r, t in zip(regs, tmps):
            g(f"{ins} {v(r)}, {v(t)}")
        for r, t in zip(regs, tmps):
            g(f"{op} {v(r)}, {v(r)}, {v(t)}")


def wave_reduce(g, regs, tmps, op):
    dpp_steps(g, regs, op, ["quad_perm:[1,0,3,2]", "quad_perm:[2,3,0,1]", "row_ror:4", "row_ror:8"])
    swap_reduce(g, regs, tmps, op, (16, 32))


def unpack8(g, dst, src):
    for i in range(4):
        g(f"v_lshlrev_b32 {v(dst+2*i)}, 16, {v(src+i)}")
        g(f"v_and_b32 {v(dst+2*i+1)}, 0xffff0000, {v(src+i)}")


def ln_finish_pair(g, f0, f1, mean_b, den, rc, D, out):
    g(f"v_sub_f32 {v(D[0])}, {v(f0)}, {v(mean_b)}")
    g(f"v_sub_f32 {v(D[1])}, {v(f1)}, {v(mean_b)}")
    g(f"v_cvt_pk_bf16_f32 {v(D[2])}, {v(D[0])}, {v(D[1])}")
    g(f"v_lshlrev_b32 {v(D[0])}, 16, {v(D[2])}")
    g(f"v_and_b32 {v(D[1])}, 0xffff0000, {v(D[2])}")
    g(f"v_mul_f32 {v(D[2])}, {v(D[0])}, {v(rc)}")
    g(f"v_mul_f32 {v(D[3])}, {v(D[1])}, {v(rc)}")
    g(f"v_fma_f32 {v(D[4])}, -{v(D[2])}, {v(den)}, {v(D[0])}")
    g(f"v_fma_f32 {v(D[5])}, -{v(D[3])}, {v(den)}, {v(D[1])}")
    g(f"v_fmac_f32 {v(D[2])}, {v(D[4])}, {v(rc)}")
    g(f"v_fmac_f32 {v(D[3])}, {v(D[5])}, {v(rc)}")
    g(f"v_cvt_pk_bf16_f32 {v(out)}, {v(D[2])}, {v(D[3])}")


def ln_scalars(g, mean, var, rc, t):
    bf16r(g, var, var, t)
    g(f"v_add_f32 {v(var)}, {EPS:#x}, {v(var)}")
    bf16r(g, var, var, t)
    g(f"v_sqrt_f32 {v(var)}, {v(var)}")
    bf16r(g, mean, mean, t)
    bf16r(g, var, var, t)
    g(f"v_rcp_f32 {v(rc)}, {v(var)}")
    g("s_nop 0")


def layernorm2(g, F, OUTP, T):
    s0, s1, q0, q1, r0, r1 = T[:6]
    D = T[6:12]
    t0, t1 = D[0], D[1]
    for b, s in ((0, s0), (1, s1)):
        f = F + 8 * b
        g(f"v_add_f32 {v(s)}, {v(f)}, {v(f+1)}")
        for i in range(2, 8):
            g(f"v_add_f32 {v(s)}, {v(s)}, {v(f+i)}")
    wave_reduce(g, [s0, s1], [t0, t1], "v_add_f32")
    g(f"v_mul_f32 {v(s0)}, {INV512:#x}, {v(s0)}")
    g(f"v_mul_f32 {v(s1)}, {INV512:#x}, {v(s1)}")
    for b, s, q in ((0, s0, q0), (1, s1, q1)):
        f = F + 8 * b
        for i in range(8):
            d = D[i % 4]
            g(f"v_sub_f32 {v(d)}, {v(f+i)}, {v(s)}")
            if i == 0:
                g(f"v_mul_f32 {v(q)}, {v(d)}, {v(d)}")
            else:
                g(f"v_fmac_f32 {v(q)}, {v(d)}, {v(d)}")
    wave_reduce(g, [q0, q1], [t0, t1], "v_add_f32")
    for s, q, r in ((s0, q0, r0), (s1, q1, r1)):
        g(f"v_mul_f32 {v(q)}, {INV512:#x}, {v(q)}")
        ln_scalars(g, s, q, r, t0)
    for b, s, q, r in ((0, s0, q0, r0), (1, s1, q1, r1)):
        f = F + 8 * b
        for i in range(0, 8, 2):
            ln_finish_pair(g, f + i, f + i + 1, s, q, r, D, OUTP + 4 * b + i // 2)


def poll_loop(g, loads, regs, tmp, name):
    L = g.newlabel(name)
    Ld = g.newlabel(name + "_done")
    g(f"s_mov_b32 s46, {SPIN}")
    g.label(L)
    for l in loads:
        g(l)
    g("s_waitcnt vmcnt(0)")
    rs = list(regs)
    g(f"v_max_u32 {v(tmp)}, {v(rs[0])}, {v(rs[1])}")
    rest = rs[2:]
    while len(rest) >= 2:
        g(f"v_max3_u32 {v(tmp)}, {v(tmp)}, {v(rest[0])}, {v(rest[1])}")
        rest = rest[2:]
    if rest:
        g(f"v_max_u32 {v(tmp)}, {v(tmp)}, {v(rest[0])}")
    g(f"v_cmp_eq_u32 vcc, -1, {v(tmp)}")
    g(f"s_cbranch_vccz {Ld}")
    g("s_sub_u32 s46, s46, 1")
    g("s_cmp_lg_u32 s46, 0")
    g(f"s_cbranch_scc1 {L}")
    g.label(Ld)


def poll_tag(g, loads, regs, tmp, name):
    L = g.newlabel(name)
    Ld = g.newlabel(name + "_done")
    g(f"s_mov_b32 s46, {SPIN}")
    g.label(L)
    for l in loads:
        g(l)
    g("s_waitcnt vmcnt(0)")
    rs = list(regs)
    if len(rs) == 1:
        g(f"v_cmp_ne_u32 vcc, s47, {v(rs[0])}")
    else:
        g(f"v_xor_b32 {v(tmp)}, s47, {v(rs[0])}")
        for r in rs[1:]:
            g(f"v_xor_b32 {v(tmp+1)}, s47, {v(r)}")
            g(f"v_or_b32 {v(tmp)}, {v(tmp)}, {v(tmp+1)}")
        g(f"v_cmp_ne_u32 vcc, 0, {v(tmp)}")
    g(f"s_cbranch_vccz {Ld}")
    g("s_sub_u32 s46, s46, 1")
    g("s_cmp_lg_u32 s46, 0")
    g(f"s_cbranch_scc1 {L}")
    g.label(Ld)


def stamp(g, idx, on):
    if not on:
        return
    g("s_memrealtime s[60:61]")
    g("s_waitcnt lgkmcnt(0)")
    g(f"s_mov_b32 s{64+idx}, s60")


def gen(depth=3, n1=3, n2=10, wnt=True, stamps=False, b0=True, rp=1):
    g = G()
    A = g
    hdr = []
    hdr.append(f"; @launch grid=(256,1,1) block=(576,1,1) lds={LDS_TOTAL}")
    hdr.append('.amdgcn_target "amdgcn-amd-amdhsa--gfx950"')
    hdr.append(".text")
    hdr.append(f".globl {NAME}_kernel")
    hdr.append(".p2align 8")
    hdr.append(f".type {NAME}_kernel,@function")
    hdr.append(f"{NAME}_kernel:")
    WNT = " nt" if wnt else ""
    A("s_cmp_ge_u32 s2, 256")
    A("s_cbranch_scc1 L_end")
    A("s_load_dwordx16 s[4:19], s[0:1], 0")
    A("s_load_dwordx8 s[20:27], s[0:1], 64")
    A("v_lshrrev_b32 v1, 6, v0")
    A("v_and_b32 v0, 63, v0")
    A("s_nop 0")
    A("v_readfirstlane_b32 s28, v1")
    A("s_and_b32 s29, s2, 7")
    A("s_bfe_u32 s30, s2, 0x10003")
    A("s_lshr_b32 s31, s2, 4")
    A("s_and_b32 s32, s2, 15")
    A(f"s_mov_b32 s44, {LOG2E:#x}")
    A(f"s_mov_b32 s45, {SCALE:#x}")
    A("s_lshr_b32 s33, s2, 6")
    A("s_lshl_b32 s33, s33, 3")
    A("s_add_u32 s33, s33, s29")
    A("s_bfe_u32 s34, s2, 0x30003")
    A("s_lshl_b32 s50, s33, 6")
    A("s_lshl_b32 s34, s34, 3")
    A("s_add_u32 s50, s50, s34")
    A("s_mov_b32 s51, s33")
    if stamps:
        A("s_mul_i32 s62, s2, 9")
        A("s_add_u32 s62, s62, s28")
        A("s_lshl_b32 s62, s62, 7")
        A(f"s_add_u32 s62, s62, {TS:#x}")
        for i in range(32):
            A(f"s_mov_b32 s{64+i}, 0")
    A("s_waitcnt lgkmcnt(0)")
    A("s_cmp_eq_u32 s28, 8")
    A("s_cbranch_scc1 L_ctrl")

    vK, vV, vML, vMH, vW = 4, 5, 6, 7, 8
    KR = 16
    VR = 84
    QB = 148
    Z = 152
    O0, O1 = 156, 160
    stamp(g, 0, stamps)
    A("s_lshl_b32 s33, s32, 21")
    A("s_lshl_b32 s34, s31, 17")
    A("s_add_u32 s33, s33, s34")
    A("s_lshl_b32 s34, s28, 14")
    A("s_add_u32 s33, s33, s34")
    A("v_lshrrev_b32 v1, 4, v0")
    A("v_bfe_u32 v2, v0, 2, 2")
    A("v_and_b32 v3, 3, v0")
    A("v_lshlrev_b32 v9, 6, v1")
    A("v_lshlrev_b32 v10, 8, v2")
    A("v_lshlrev_b32 v11, 4, v3")
    A("v_add3_u32 v9, v9, v10, v11")
    A(f"v_add_u32 {v(vK)}, s33, v9")
    A("v_lshlrev_b32 v9, 4, v0")
    A(f"v_add_u32 {v(vV)}, s33, v9")
    A(f"v_mov_b32 {v(vML)}, 0xffff")
    A(f"v_mov_b32 {v(vMH)}, 0xffff0000")

    seq = []

    def issue(name):
        kind, m = name
        if len(seq) >= depth and throttle[0]:
            A(f"s_waitcnt vmcnt({depth-1})")
        if kind == "K":
            if m % 4 == 0 and m > 0:
                A(f"v_add_u32 {v(vK)}, 4096, {v(vK)}")
            r = KR + 4 + 4 * m
            A(f"global_load_dwordx4 {v(r,4)}, {v(vK)}, s[6:7] offset:{(m%4)*1024} nt")
        elif kind == "V":
            if m % 4 == 0 and m > 0:
                A(f"v_add_u32 {v(vV)}, 4096, {v(vV)}")
            r = VR + 4 * m
            A(f"global_load_dwordx4 {v(r,4)}, {v(vV)}, s[8:9] offset:{(m%4)*1024} nt")
        elif kind == "W":
            if m > 0:
                A(f"v_add_u32 {v(vW)}, 16384, {v(vW)}")
            A(f"s_add_u32 m0, s35, {m*1024}")
            A("s_nop 0")
            A(f"global_load_lds_dwordx4 {v(vW)}, s[12:13]{WNT}")
        elif kind == "R":
            RPb = RP + 4 * m
            addr = "v11" if m < 2 else "v12"
            base = ("s[16:17]", "s[18:19]", "s[20:21]")[m]
            A(f"global_load_dwordx4 {v(RPb,4)}, {addr}, {base} nt")
        seq.append(name)

    def wait_for(name):
        idx = seq.index(name)
        n = len(seq) - 1 - idx
        A(f"s_waitcnt vmcnt({n})")

    throttle = [True]
    RP = VR + 52
    A("s_min_u32 s33, s28, 6")
    A("s_and_b32 s34, s2, 3")
    A("s_mul_i32 s34, s34, 7")
    A("s_add_u32 s34, s34, s33")
    A("s_lshr_b32 s35, s2, 2")
    A("v_lshrrev_b32 v9, 3, v0")
    A("v_and_b32 v10, 7, v0")
    A("s_mul_i32 s36, s35, 28672")
    A("s_lshl_b32 s37, s34, 7")
    A("s_add_u32 s36, s36, s37")
    A("v_mul_u32_u24 v11, 3584, v10")
    A("v_lshlrev_b32 v12, 4, v9")
    A("v_add3_u32 v11, v11, v12, s36")
    A("s_lshl_b32 s36, s34, 17")
    A("s_lshl_b32 s37, s35, 7")
    A("s_add_u32 s36, s36, s37")
    A(f"s_add_u32 s36, s36, {GT+4096:#x}")
    A("v_lshlrev_b32 v13, 14, v9")
    A("v_lshlrev_b32 v14, 4, v10")
    A("v_add3_u32 v13, v13, v14, s36")
    A("s_mul_i32 s34, s2, 7")
    A("s_add_u32 s34, s34, s33")
    A("s_lshr_b32 s35, s34, 3")
    A("s_and_b32 s34, s34, 7")
    A("s_lshl_b32 s36, s35, 13")
    A("s_lshl_b32 s37, s34, 7")
    A("s_add_u32 s36, s36, s37")
    A("v_lshlrev_b32 v15, 10, v10")
    A("v_add3_u32 v12, v15, v12, s36")
    A("s_mul_i32 s36, s34, 229376")
    A("s_lshl_b32 s37, s35, 7")
    A("s_add_u32 s36, s36, s37")
    A(f"s_add_u32 s36, s36, {DT:#x}")
    A("v_mul_u32_u24 v15, 28672, v9")
    A("v_add3_u32 v15, v15, v14, s36")
    A("s_lshl_b32 s33, s29, 19")
    A("s_lshl_b32 s34, s28, 16")
    A("s_add_u32 s33, s33, s34")
    A("s_lshl_b32 s34, s31, 6")
    A("s_add_u32 s33, s33, s34")
    A("v_lshrrev_b32 v9, 2, v0")
    A("v_lshlrev_b32 v9, 10, v9")
    A("v_lshlrev_b32 v10, 4, v3")
    A(f"v_add3_u32 {v(vW)}, v9, v10, s33")
    A("s_lshl_b32 s35, s28, 12")
    A(f"s_add_u32 s35, s35, {WO_L}")
    if b0:
        A("s_barrier")
    for m in range(16):
        issue(("K", m))
    for m in range(3):
        if rp >= 1:
            issue(("R", m))
        else:
            seq.append(("R", m)); A("global_load_dword v9, v4, s[6:7]")
    def rstores():
        wait_for(("R", 2))
        if rp == 1 or rp == 3:
            sc = " sc1" if rp == 1 else ""
            A(f"global_store_dwordx4 v13, {v(RP,4)}, s[26:27] offset:-4096{sc}")
            A("v_add_u32 v13, 4096, v13")
            A(f"global_store_dwordx4 v13, {v(RP+4,4)}, s[26:27]{sc}")
            A(f"global_store_dwordx4 v15, {v(RP+8,4)}, s[26:27]{sc}")
        else:
            for _ in range(3):
                A("global_load_dword v9, v4, s[6:7]")
        seq.append(("RS", 0)); seq.append(("RS", 1)); seq.append(("RS", 2))
    nr = min(n1, depth)
    for m in range(nr):
        issue(("V", m))
    rstores()
    for m in range(nr, n1):
        issue(("V", m))
    A("v_lshlrev_b32 v9, 8, v3")
    A("v_lshlrev_b32 v10, 6, v1")
    A("v_lshlrev_b32 v11, 4, v2")
    A("v_add3_u32 v9, v9, v10, v11")
    stamp(g, 1, stamps)
    A("s_barrier")
    stamp(g, 2, stamps)
    A(f"ds_read_b128 {v(QB,4)}, v9 offset:{QL}")
    A("s_waitcnt lgkmcnt(0)")
    for m in range(16):
        A(f"v_mfma_f32_16x16x32_bf16 {v(KR+4*m,4)}, {v(KR+4+4*m,4)}, {v(QB,4)}, 0")
    A("s_nop 3")
    for step in range(3):
        for m in range(16):
            D = KR + 4 * m
            beta = m & 3
            k = m >> 2
            e = (beta + 1 + step) & 3
            rot = (4 * (beta - e)) & 15
            if step < 2:
                A(f"v_add_f32_dpp {v(D+beta)}, {v(D+e)}, {v(D+beta)} row_ror:{rot} {DPP}")
            else:
                A(f"v_add_f32_dpp {v(Z+k)}, {v(D+e)}, {v(D+beta)} row_ror:{rot} row_mask:0xf bank_mask:{1<<beta:#x}")
    for m in range(0, 4, 2):
        A(f"v_cvt_pk_bf16_f32 v9, {v(Z+m)}, {v(Z+m+1)}")
        A("v_lshlrev_b32 v10, 16, v9")
        A("v_and_b32 v11, 0xffff0000, v9")
        A("v_mul_f32 v10, s45, v10")
        A("v_mul_f32 v11, s45, v11")
        A("v_cvt_pk_bf16_f32 v9, v10, v11")
        A(f"v_lshlrev_b32 {v(Z+m)}, 16, v9")
        A(f"v_and_b32 {v(Z+m+1)}, 0xffff0000, v9")
    A(f"v_max3_f32 v12, {v(Z)}, {v(Z+1)}, {v(Z+2)}")
    A(f"v_max_f32 v12, v12, {v(Z+3)}")
    dpp_steps(g, [12], "v_max_f32", ["row_ror:4", "row_ror:8"])
    swap_reduce(g, [12], [9], "v_max_f32", (16, 32))
    for m in range(4):
        A(f"v_sub_f32 {v(KR+m)}, {v(Z+m)}, v12")
        A(f"v_mul_f32 {v(KR+m)}, s44, {v(KR+m)}")
        A(f"v_exp_f32 {v(KR+m)}, {v(KR+m)}")
    A("s_nop 0")
    A(f"v_add_f32 v13, {v(KR)}, {v(KR+1)}")
    A(f"v_add_f32 v13, v13, {v(KR+2)}")
    A(f"v_add_f32 v13, v13, {v(KR+3)}")
    dpp_steps(g, [13], "v_add_f32", ["row_ror:4", "row_ror:8"])
    swap_reduce(g, [13], [9], "v_add_f32", (16, 32))
    A("s_lshl_b32 s33, s28, 5")
    A("v_lshlrev_b32 v9, 3, v3")
    A("v_add_u32 v9, s33, v9")
    A(f"ds_write_b64 v9, v[12:13] offset:{WST}")
    wait_for(("RS", 2))
    A("s_waitcnt lgkmcnt(0)")
    stamp(g, 4, stamps)
    A("s_barrier")
    for m in range(n1, n2):
        issue(("V", m))
    for i in range(66):
        A(f"v_mov_b32 {v(KR+i)}, 0")
    A("v_lshlrev_b32 v9, 3, v3")
    stamp(g, 5, stamps)
    A("s_barrier")
    stamp(g, 6, stamps)
    A(f"ds_read_b64 v[12:13], v9 offset:{GST}")
    throttle[0] = False
    for m in range(n2, 16):
        issue(("V", m))
    for m in range(4):
        issue(("W", m))
    A("s_waitcnt lgkmcnt(0)")
    for m in range(4):
        A(f"v_sub_f32 {v(Z+m)}, {v(Z+m)}, v12")
        A(f"v_mul_f32 {v(Z+m)}, s44, {v(Z+m)}")
        A(f"v_exp_f32 {v(Z+m)}, {v(Z+m)}")
    A("s_nop 0")
    for m in range(4):
        A(f"v_mul_f32 {v(Z+m)}, {v(Z+m)}, v13")
        A(f"v_cvt_pk_bf16_f32 {v(Z+m)}, {v(Z+m)}, {v(Z+m)}")
    A("s_nop 1")
    for m in range(16):
        beta = m & 3
        k = m >> 2
        for j in range(4):
            rot = (4 * (j - beta)) & 15
            dst = KR + 4 * m + 2 + (j >> 1)
            msk = vMH if (j & 1) else vML
            ctl = f"row_ror:{rot}" if rot else "quad_perm:[0,1,2,3]"
            A(f"v_and_b32_dpp {v(dst)}, {v(Z+k)}, {v(msk)} {ctl} row_mask:0xf bank_mask:{1<<j:#x}")
    stamp(g, 7, stamps)
    A("s_nop 1")
    for m in range(16):
        wait_for(("V", m))
        c0 = "0" if m == 0 else v(O0, 4)
        c1 = "0" if m == 0 else v(O1, 4)
        A(f"v_mfma_f32_16x16x32_bf16 {v(O0,4)}, {v(VR+4*m,4)}, {v(KR+4*m+2,4)}, {c0}")
        A(f"v_mfma_f32_16x16x32_bf16 {v(O1,4)}, {v(VR+4*m,4)}, {v(KR+4*m,4)}, {c1}")
    stamp(g, 8, stamps)
    A("s_lshl_b32 s33, s28, 11")
    A("v_lshlrev_b32 v9, 5, v0")
    A("v_add_u32 v9, s33, v9")
    A("s_nop 6")
    A(f"ds_write_b128 v9, {v(O0,4)} offset:{RED}")
    A(f"ds_write_b128 v9, {v(O1,4)} offset:{RED+16}")
    A("s_waitcnt lgkmcnt(0)")
    A("s_barrier")
    A("s_lshl_b32 s36, s32, 15")
    A("s_lshl_b32 s37, s28, 8")
    A("s_add_u32 s36, s36, s37")
    A(f"s_add_u32 s36, s36, {OP:#x}")
    A("v_lshlrev_b32 v9, 11, v1")
    A("v_and_b32 v4, 15, v0")
    A("v_lshlrev_b32 v10, 4, v4")
    A("v_add3_u32 v10, v9, v10, s36")
    for i in range(1, 4):
        A(f"v_add_u32 {v(10+i)}, {8192*i}, v10")
    A("s_lshr_b32 s33, s28, 1")
    A("s_lshl_b32 s33, s33, 11")
    A("s_and_b32 s34, s28, 1")
    A("s_lshl_b32 s34, s34, 7")
    A("s_add_u32 s33, s33, s34")
    A(f"s_add_u32 s33, s33, {WO_L}")
    A("v_lshlrev_b32 v5, 13, v1")
    A("v_lshlrev_b32 v6, 9, v2")
    A("v_lshlrev_b32 v7, 3, v3")
    A("v_add3_u32 v5, v5, v6, v7")
    A("v_add_u32 v5, s33, v5")
    A("s_lshl_b32 s33, s28, 7")
    A("v_lshlrev_b32 v6, 3, v4")
    A("v_add_u32 v6, s33, v6")
    A("v_lshlrev_b32 v7, 4, v1")
    A("v_add_u32 v7, s33, v7")
    A("s_waitcnt vmcnt(0)")
    stamp(g, 9, stamps)
    A("s_barrier")
    BR = 96
    AR = 88
    DR = 112
    for kk in range(2):
        for n in range(2):
            for u in range(2):
                A(f"ds_read_b64_tr_b16 {v(BR+8*kk+4*n+2*u,2)}, v5 offset:{64*kk+256*u+32*n}")
    loads = [f"global_load_dwordx4 {v(16+4*i,4)}, {v(10+i)}, s[26:27] sc1" for i in range(4)]
    poll_loop(g, loads, list(range(16, 32)), 9, "t1")
    stamp(g, 10, stamps)
    for k in range(4):
        A(f"v_add_f32 {v(16+k)}, {v(16+k)}, {v(20+k)}")
        A(f"v_add_f32 {v(24+k)}, {v(24+k)}, {v(28+k)}")
    for k in range(4):
        A(f"v_add_f32 {v(16+k)}, {v(16+k)}, {v(24+k)}")
    swap_reduce(g, [16, 17, 18, 19], [20, 21, 22, 23], "v_add_f32", (16, 32))
    A("v_cvt_pk_bf16_f32 v16, v16, v17")
    A("v_cvt_pk_bf16_f32 v17, v18, v19")
    A(f"ds_write_b64 v6, v[16:17] offset:{AO}")
    for kk in range(2):
        A(f"ds_read_b128 {v(AR+4*kk,4)}, v7 offset:{AO+64*kk}")
    A("s_waitcnt lgkmcnt(0)")
    for n in range(2):
        A(f"v_mfma_f32_16x16x32_bf16 {v(DR+4*n,4)}, {v(AR,4)}, {v(BR+4*n,4)}, 0")
    for n in range(2):
        A(f"v_mfma_f32_16x16x32_bf16 {v(DR+4*n,4)}, {v(AR+4,4)}, {v(BR+8+4*n,4)}, {v(DR+4*n,4)}")
    A("s_lshl_b32 s33, s28, 7")
    A("v_lshlrev_b32 v9, 2, v4")
    A("v_add_u32 v9, s33, v9")
    A("s_nop 6")
    A(f"ds_write_b32 v9, {v(DR)} offset:{R2}")
    A(f"ds_write_b32 v9, {v(DR+4)} offset:{R2+64}")
    A("s_waitcnt lgkmcnt(0)")
    A("s_barrier")
    A("s_cmp_ge_u32 s51, 28")
    A("s_cbranch_scc1 L_end")
    A("s_lshl_b32 s36, s28, 8")
    A(f"s_add_u32 s36, s36, {YP:#x}")
    A("v_lshrrev_b32 v5, 5, v0")
    A("v_and_b32 v6, 1, v1")
    A("v_lshlrev_b32 v9, 11, v5")
    A("v_lshlrev_b32 v10, 12, v6")
    A("v_lshlrev_b32 v11, 4, v4")
    A("v_add3_u32 v10, v9, v10, v11")
    A("v_add_u32 v10, s36, v10")
    for i in range(1, 4):
        A(f"v_add_u32 {v(10+i)}, {8192*i}, v10")
    A("s_lshl_b32 s33, s28, 7")
    A("v_lshlrev_b32 v6, 10, v5")
    A("v_lshlrev_b32 v7, 3, v4")
    A("v_add3_u32 v6, v6, v7, s33")
    A(f"ds_read_b64 v[40:41], v6 offset:{XL}")
    A("v_lshlrev_b32 v7, 10, v5")
    A(f"ds_read_u16 v42, v7 offset:{XL}")
    A("s_lshl_b32 s34, s28, 3")
    A("v_lshlrev_b32 v7, 6, v5")
    A("v_add_u32 v8, s34, v7")
    A("v_and_b32 v9, 7, v0")
    A("v_lshlrev_b32 v9, 3, v9")
    A("v_add_u32 v7, v7, v9")
    A("s_lshl_b32 s34, s28, 8")
    A("v_lshlrev_b32 v14, 7, v5")
    A("v_lshlrev_b32 v15, 3, v4")
    A("v_add3_u32 v14, v14, v15, s34")
    A("v_and_b32 v15, 1, v0")
    A("v_lshlrev_b32 v15, 7, v15")
    A("v_lshlrev_b32 v9, 4, v1")
    A("v_add3_u32 v15, v15, v9, s34")
    A("s_lshl_b32 s33, s28, 10")
    A(f"s_add_u32 s33, s33, {GU_L}")
    A("v_lshrrev_b32 v44, 1, v3")
    A("v_lshlrev_b32 v44, 13, v44")
    A("v_lshlrev_b32 v45, 7, v1")
    A("v_lshlrev_b32 v46, 4, v2")
    A("v_add3_u32 v44, v44, v45, v46")
    A("v_and_b32 v45, 1, v3")
    A("v_lshlrev_b32 v45, 3, v45")
    A("v_add3_u32 v44, v44, v45, s33")
    A("s_waitcnt lgkmcnt(0)")
    A("v_lshlrev_b32 v36, 16, v40")
    A("v_and_b32 v37, 0xffff0000, v40")
    A("v_lshlrev_b32 v38, 16, v41")
    A("v_and_b32 v39, 0xffff0000, v41")
    A("v_lshlrev_b32 v42, 16, v42")
    stamp(g, 11, stamps)
    A("s_barrier")
    for kk in range(2):
        for u in range(2):
            A(f"ds_read_b64_tr_b16 {v(BR+4*kk+2*u,2)}, v44 offset:{512*kk+64*u}")
    loads = [f"global_load_dwordx4 {v(16+4*i,4)}, {v(10+i)}, s[26:27] sc1" for i in range(4)]
    poll_loop(g, loads, list(range(16, 32)), 9, "t2")
    stamp(g, 12, stamps)
    for k in range(4):
        A(f"v_add_f32 {v(16+k)}, {v(16+k)}, {v(20+k)}")
        A(f"v_add_f32 {v(24+k)}, {v(24+k)}, {v(28+k)}")
    for k in range(4):
        A(f"v_add_f32 {v(16+k)}, {v(16+k)}, {v(24+k)}")
    swap_reduce(g, [16, 17, 18, 19], [20, 21, 22, 23], "v_add_f32", (16,))
    for i in (0, 2):
        A(f"v_cvt_pk_bf16_f32 v20, {v(16+i)}, {v(17+i)}")
        A(f"v_lshlrev_b32 {v(16+i)}, 16, v20")
        A(f"v_and_b32 {v(17+i)}, 0xffff0000, v20")
        A(f"v_add_f32 {v(16+i)}, {v(16+i)}, {v(36+i)}")
        A(f"v_add_f32 {v(17+i)}, {v(17+i)}, {v(37+i)}")
        A(f"v_cvt_pk_bf16_f32 {v(24+i//2)}, {v(16+i)}, {v(17+i)}")
        A(f"v_lshlrev_b32 {v(16+i)}, 16, {v(24+i//2)}")
        A(f"v_and_b32 {v(17+i)}, 0xffff0000, {v(24+i//2)}")
    A(f"ds_write_b64 v6, v[24:25] offset:{HL}")
    for i in range(4):
        A(f"v_sub_f32 {v(20+i)}, {v(16+i)}, v42")
    A("v_add_f32 v26, v20, v21")
    A("v_mul_f32 v27, v20, v20")
    A("v_add_f32 v26, v26, v22")
    A("v_fmac_f32 v27, v21, v21")
    A("v_add_f32 v26, v26, v23")
    A("v_fmac_f32 v27, v22, v22")
    A("v_fmac_f32 v27, v23, v23")
    dpp_steps(g, [26, 27], "v_add_f32", ["quad_perm:[1,0,3,2]", "quad_perm:[2,3,0,1]", "row_ror:4", "row_ror:8"])
    A(f"ds_write_b64 v8, v[26:27] offset:{LS}")
    A("s_waitcnt lgkmcnt(0)")
    A("s_barrier")
    A(f"ds_read_b64 v[26:27], v7 offset:{LS}")
    A("s_waitcnt lgkmcnt(0)")
    dpp_steps(g, [26, 27], "v_add_f32", ["quad_perm:[1,0,3,2]", "quad_perm:[2,3,0,1]", "row_ror:4"])
    A(f"v_mul_f32 v26, {INV512:#x}, v26")
    A(f"v_mul_f32 v27, {INV512:#x}, v27")
    A("v_fma_f32 v27, -v26, v26, v27")
    A("v_max_f32 v27, 0, v27")
    A("v_add_f32 v26, v26, v42")
    ln_scalars(g, 26, 27, 28, 29)
    ln_finish_pair(g, 16, 17, 26, 27, 28, [30, 31, 32, 33, 34, 35], 24)
    ln_finish_pair(g, 18, 19, 26, 27, 28, [30, 31, 32, 33, 34, 35], 25)
    A(f"ds_write_b64 v14, v[24:25] offset:{HN}")
    for kk in range(2):
        A(f"ds_read_b128 {v(AR+4*kk,4)}, v15 offset:{HN+64*kk}")
    A("s_waitcnt lgkmcnt(0)")
    A(f"v_mfma_f32_16x16x32_bf16 {v(DR,4)}, {v(AR,4)}, {v(BR,4)}, 0")
    A(f"v_mfma_f32_16x16x32_bf16 {v(DR,4)}, {v(AR+4,4)}, {v(BR+4,4)}, {v(DR,4)}")
    A("s_lshl_b32 s33, s28, 7")
    A("v_lshlrev_b32 v9, 2, v4")
    A("v_add_u32 v9, s33, v9")
    A("s_nop 6")
    A(f"ds_write_b32 v9, {v(DR)} offset:{R4}")
    A(f"ds_write_b32 v9, {v(DR+1)} offset:{R4+64}")
    A("s_waitcnt lgkmcnt(0)")
    A("s_barrier")
    A("s_cmp_ge_u32 s2, 64")
    A("s_cbranch_scc1 L_end")
    A("s_mul_i32 s33, s28, 448")
    A(f"s_add_u32 s33, s33, {AC:#x}")
    A("v_and_b32 v9, 1, v0")
    A("v_mul_u32_u24 v9, 3584, v9")
    A("v_lshlrev_b32 v10, 4, v1")
    A("v_add3_u32 v9, v9, v10, s33")
    A("s_mul_i32 s33, s28, 3584")
    A(f"s_add_u32 s33, s33, {WD_L}")
    A("v_lshlrev_b32 v11, 7, v1")
    A("v_lshlrev_b32 v12, 4, v2")
    A("v_and_b32 v13, 1, v3")
    A("v_lshlrev_b32 v13, 3, v13")
    A("v_add3_u32 v11, v11, v12, v13")
    A("v_add_u32 v11, s33, v11")
    for kk in range(7):
        for u in range(2):
            A(f"ds_read_b64_tr_b16 {v(48+4*kk+2*u,2)}, v11 offset:{512*kk+64*u}")
    A("s_lshl_b32 s33, s28, 6")
    A("v_and_b32 v10, 7, v0")
    A("v_lshlrev_b32 v10, 2, v10")
    A("v_add_u32 v10, s33, v10")
    stamp(g, 13, stamps)
    A("s_barrier")
    loads = [f"global_load_dwordx4 {v(16+4*kk,4)}, v9, s[26:27] offset:{64*kk} sc1" for kk in range(7)]
    poll_loop(g, loads, list(range(16, 44)), 12, "t3")
    stamp(g, 14, stamps)
    A("s_waitcnt lgkmcnt(0)")
    for kk in range(7):
        c = "0" if kk == 0 else v(DR, 4)
        A(f"v_mfma_f32_16x16x32_bf16 {v(DR,4)}, {v(16+4*kk,4)}, {v(48+4*kk,4)}, {c}")
    A("s_nop 7")
    A(f"ds_write_b32 v10, {v(DR)} offset:{R5}")
    A(f"ds_write_b32 v10, {v(DR+1)} offset:{R5+32}")
    A("s_waitcnt lgkmcnt(0)")
    A("s_barrier")
    A("s_branch L_end")

    g.label("L_ctrl")
    stamp(g, 0, stamps)
    Ln = g.newlabel("nonce")
    A("s_cmp_lg_u32 s2, 255")
    A(f"s_cbranch_scc1 {Ln}")
    A("s_memrealtime s[52:53]")
    A("s_waitcnt lgkmcnt(0)")
    A("s_or_b32 s52, s52, 1")
    A("v_mov_b32 v12, s52")
    A("v_mov_b32 v13, 0")
    A("s_mov_b64 exec, 0x1")
    A("global_store_dword v13, v12, s[24:25] sc1")
    A("s_mov_b64 exec, -1")
    g.label(Ln)
    A("v_lshlrev_b32 v1, 4, v0")
    A("global_load_dwordx4 v[4:7], v1, s[4:5]")
    A("global_load_dwordx4 v[8:11], v1, s[4:5] offset:1024")
    A("s_bfe_u32 s33, s2, 0x20003")
    A("s_lshl_b32 s34, s29, 2")
    A("s_add_u32 s36, s33, s34")
    A("s_bfe_u32 s37, s2, 0x20005")
    A("v_lshrrev_b32 v2, 4, v0")
    A("v_and_b32 v3, 15, v0")
    WQR = 16
    Lnp = g.newlabel("noprod_a")
    A("s_cmp_ge_u32 s2, 128")
    A(f"s_cbranch_scc1 {Lnp}")
    A("s_lshl_b32 s33, s37, 20")
    A("s_lshl_b32 s34, s36, 8")
    A("s_add_u32 s33, s33, s34")
    A("v_lshlrev_b32 v12, 13, v2")
    A("v_lshlrev_b32 v13, 4, v3")
    A("v_add3_u32 v12, v12, v13, s33")
    for i in range(32):
        if i:
            A("v_add_u32 v12, 0x8000, v12")
        A(f"global_load_dwordx4 {v(WQR+4*i,4)}, v12, s[10:11] nt")
    g.label(Lnp)
    if b0:
        A("s_barrier")
    for i in range(4):
        A(f"v_mov_b32 {v(12+i)}, -1")
    A("s_lshl_b32 s33, s32, 4")
    A("s_add_u32 s33, s33, s31")
    A("s_lshl_b32 s34, s33, 11")
    A(f"s_add_u32 s34, s34, {OP:#x}")
    A("v_add_u32 v160, s34, v1")
    A("global_store_dwordx4 v160, v[12:15], s[26:27] sc1")
    A("global_store_dwordx4 v160, v[12:15], s[26:27] offset:1024 sc1")
    A("s_lshl_b32 s34, s29, 12")
    A("s_lshl_b32 s35, s30, 11")
    A("s_add_u32 s34, s34, s35")
    A("s_lshl_b32 s35, s31, 7")
    A("s_add_u32 s34, s34, s35")
    A(f"s_add_u32 s38, s34, {YP:#x}")
    A("v_add_u32 v160, s38, v1")
    A("s_mov_b64 exec, 0xff")
    A("global_store_dwordx4 v160, v[12:15], s[26:27] sc1")
    A("s_mov_b64 exec, -1")
    Lskip = g.newlabel("skip_acs")
    A("s_cmp_ge_u32 s51, 28")
    A(f"s_cbranch_scc1 {Lskip}")
    A("s_lshl_b32 s34, s50, 1")
    A(f"s_add_u32 s34, s34, {AC:#x}")
    A("v_mul_u32_u24 v160, 3584, v0")
    A("v_add_u32 v160, s34, v160")
    A("s_mov_b64 exec, 0x3")
    A("global_store_dwordx4 v160, v[12:15], s[26:27] sc1")
    A("s_mov_b64 exec, -1")
    g.label(Lskip)
    Lnp = g.newlabel("noprod_b")
    Lnp2 = g.newlabel("noprod_c")
    A("s_cmp_ge_u32 s2, 128")
    A(f"s_cbranch_scc1 {Lnp}")
    A("s_waitcnt vmcnt(35)")
    stamp(g, 13, stamps)
    A(f"ds_write_b128 v1, v[4:7] offset:{XL}")
    A(f"ds_write_b128 v1, v[8:11] offset:{XL+1024}")
    unpack8(g, 144, 4)
    unpack8(g, 152, 8)
    layernorm2(g, 144, 4, [12, 13, 14, 15] + list(range(160, 168)))
    A(f"ds_write_b128 v1, {v(4,4)} offset:{XN}")
    A(f"ds_write_b128 v1, {v(8,4)} offset:{XN+1024}")
    A("v_bfe_u32 v160, v0, 3, 1")
    A("v_lshlrev_b32 v160, 10, v160")
    A("v_lshlrev_b32 v161, 1, v2")
    A("s_lshl_b32 s33, s37, 8")
    A("v_add3_u32 v160, v160, v161, s33")
    A("s_waitcnt lgkmcnt(0)")
    A("v_and_b32 v5, 7, v0")
    A("v_mov_b32 v6, 0xffff")
    A("v_mov_b32 v7, 0xffff0000")
    for d in range(4):
        A(f"v_mov_b32 {v(8+d)}, 0")
        A(f"v_cmp_eq_u32 vcc, {2*d}, v5")
        A("s_nop 1")
        A(f"v_cndmask_b32 {v(8+d)}, {v(8+d)}, v6, vcc")
        A(f"v_cmp_eq_u32 vcc, {2*d+1}, v5")
        A("s_nop 1")
        A(f"v_cndmask_b32 {v(8+d)}, {v(8+d)}, v7, vcc")
    QD = 12
    for half in range(2):
        for i in range(16):
            A(f"ds_read_u16 {v(144+i)}, v160 offset:{XN+8*(16*half+i)}")
        A("s_waitcnt lgkmcnt(0)")
        if half == 0:
            A("s_waitcnt vmcnt(19)")
        else:
            A("s_waitcnt vmcnt(3)")
        stamp(g, 14 + half, stamps)
        for i in range(16):
            ii = 16 * half + i
            Bq = 160 + 4 * (i % 2)
            A(f"v_lshl_or_b32 {v(144+i)}, {v(144+i)}, 16, {v(144+i)}")
            for d in range(4):
                A(f"v_and_b32 {v(Bq+d)}, {v(144+i)}, {v(8+d)}")
            A("s_nop 1")
            c = "0" if ii == 0 else v(QD, 4)
            A(f"v_mfma_f32_16x16x32_bf16 {v(QD,4)}, {v(WQR+4*ii,4)}, {v(Bq,4)}, {c}")
        if half == 0:
            A("v_bfe_u32 v160, v0, 3, 1")
            A("v_lshlrev_b32 v160, 10, v160")
            A("v_lshlrev_b32 v161, 1, v2")
            A("v_add3_u32 v160, v160, v161, s33")
    A(f"s_branch {Lnp2}")
    g.label(Lnp)
    A("s_waitcnt vmcnt(3)")
    A(f"ds_write_b128 v1, v[4:7] offset:{XL}")
    A(f"ds_write_b128 v1, v[8:11] offset:{XL+1024}")
    g.label(Lnp2)
    stamp(g, 16, stamps)
    L = g.newlabel("nn")
    Ld = g.newlabel("nn_done")
    A("v_mov_b32 v5, 0")
    A(f"s_mov_b32 s46, {SPIN}")
    g.label(L)
    A("global_load_dword v4, v5, s[24:25] sc1")
    A("s_waitcnt vmcnt(0)")
    A("v_readfirstlane_b32 s47, v4")
    A("s_cmp_lg_u32 s47, 0")
    A(f"s_cbranch_scc1 {Ld}")
    A("s_sub_u32 s46, s46, 1")
    A("s_cmp_lg_u32 s46, 0")
    A(f"s_cbranch_scc1 {L}")
    g.label(Ld)
    stamp(g, 1, stamps)
    Lnp = g.newlabel("noprod_d")
    A("s_cmp_ge_u32 s2, 128")
    A(f"s_cbranch_scc1 {Lnp}")
    A("s_lshl_b32 s33, s37, 5")
    A("s_add_u32 s33, s33, s36")
    A("s_lshl_b32 s33, s33, 11")
    A("v_add_u32 v160, s33, v1")
    A(f"v_mov_b32 v16, {v(QD+3)}")
    A("v_mov_b32 v17, s47")
    A("v_mov_b32 v18, s47")
    A("v_mov_b32 v19, s47")
    A(f"v_mov_b32 {v(QD+3)}, s47")
    A(f"global_store_dwordx4 v160, {v(QD,4)}, s[26:27] offset:{QP} sc1")
    A(f"global_store_dwordx4 v160, v[16:19], s[26:27] offset:{QP+1024} sc1")
    g.label(Lnp)
    A("v_bfe_u32 v4, v0, 2, 2")
    A("v_and_b32 v5, 3, v0")
    A("v_lshlrev_b32 v4, 16, v4")
    A("v_lshlrev_b32 v5, 11, v5")
    A("s_lshl_b32 s33, s29, 13")
    A("v_add3_u32 v4, v4, v5, s33")
    poll_tag(g, [f"global_load_dword v5, v4, s[26:27] offset:{QP+2044} sc1"], [5], 16, "ql")
    A("v_lshrrev_b32 v4, 5, v0")
    A("v_bfe_u32 v5, v0, 3, 2")
    A("v_and_b32 v6, 7, v0")
    A("s_lshl_b32 s34, s30, 7")
    A("s_add_u32 s33, s33, s34")
    A("v_lshlrev_b32 v7, 11, v4")
    A("v_lshlrev_b32 v8, 8, v5")
    A("v_lshlrev_b32 v9, 4, v6")
    A("v_add3_u32 v7, v7, v8, v9")
    A("v_add_u32 v7, s33, v7")
    for k in range(1, 8):
        A(f"v_add_u32 {v(7+k)}, {4096*(k%2) + 65536*(k//2)}, v7")
    loads = []
    for ks in range(4):
        for hp in range(2):
            for gr in range(2):
                loads.append(f"global_load_dwordx4 {v(24+16*ks+8*hp+4*gr,4)}, {v(7+2*ks+hp)}, s[26:27] offset:{QP+1024*gr} sc1")
    poll_tag(g, loads, [24 + 4 * k + 3 for k in range(16)], 16, "qg")
    stamp(g, 2, stamps)
    for ks in range(4):
        for hp in range(2):
            A(f"v_mov_b32 {v(24+16*ks+8*hp+3)}, {v(24+16*ks+8*hp+4)}")
    for ks in range(1, 4):
        for hp in range(2):
            for i in range(4):
                A(f"v_add_f32 {v(24+8*hp+i)}, {v(24+8*hp+i)}, {v(24+16*ks+8*hp+i)}")
    A("v_lshlrev_b32 v7, 8, v4")
    A("v_lshlrev_b32 v8, 6, v5")
    A("v_lshlrev_b32 v9, 1, v6")
    A("v_add3_u32 v7, v7, v8, v9")
    for hp in range(2):
        for r in range(4):
            A(f"v_cvt_pk_bf16_f32 {v(16+4*hp+r)}, {v(24+8*hp+r)}, {v(24+8*hp+r)}")
            A(f"ds_write_b16 v7, {v(16+4*hp+r)} offset:{QL+512*hp+16*r}")
    A("s_waitcnt lgkmcnt(0)")
    stamp(g, 3, stamps)
    A("s_barrier")
    A("v_and_b32 v4, 31, v0")
    A("v_lshlrev_b32 v4, 3, v4")
    A("s_lshl_b32 s33, s32, 10")
    A("s_lshl_b32 s34, s31, 6")
    A(f"s_add_u32 s33, s33, {ST:#x}")
    A("s_add_u32 s34, s34, s33")
    A("v_add_u32 v6, s34, v1")
    A("v_add_u32 v7, s33, v1")
    A("s_lshl_b32 s33, s2, 2")
    A(f"s_add_u32 s33, s33, {FL:#x}")
    A("v_mov_b32 v8, s33")
    A("v_mov_b32 v9, s47")
    A("s_barrier")
    stamp(g, 4, stamps)
    A(f"ds_read_b64 v[12:13], v4 offset:{WST}")
    A("s_waitcnt lgkmcnt(0)")
    A("v_mov_b32 v14, v12")

    def red_s4(reg, tmp, op, full):
        dpp_steps(g, [reg], op, ["row_ror:4", "row_ror:8"])
        swap_reduce(g, [reg], [tmp], op, (16, 32) if full else (16,))

    red_s4(14, 15, "v_max_f32", False)
    A("v_sub_f32 v12, v12, v14")
    A("v_mul_f32 v12, s44, v12")
    A("v_exp_f32 v12, v12")
    A("s_nop 0")
    A("v_mul_f32 v13, v13, v12")
    red_s4(13, 15, "v_add_f32", False)
    A("v_mov_b32 v12, v14")
    A("v_mov_b32 v14, s47")
    A("v_mov_b32 v15, s47")
    A("s_mov_b64 exec, 0xf")
    A("global_store_dwordx4 v6, v[12:15], s[26:27] sc1")
    A("s_mov_b64 exec, 0x1")
    A("global_store_dword v8, v9, s[26:27] sc1")
    A("s_mov_b64 exec, -1")
    poll_tag(g, ["global_load_dwordx4 v[12:15], v7, s[26:27] sc1"], [15], 16, "st")
    stamp(g, 5, stamps)
    A("v_mov_b32 v14, v12")
    red_s4(14, 15, "v_max_f32", True)
    A("v_sub_f32 v12, v12, v14")
    A("v_mul_f32 v12, s44, v12")
    A("v_exp_f32 v12, v12")
    A("s_nop 0")
    A("v_mul_f32 v13, v13, v12")
    red_s4(13, 15, "v_add_f32", True)
    A("v_rcp_f32 v15, v13")
    A("s_nop 0")
    A("v_fma_f32 v12, -v13, v15, 1.0")
    A("v_fmac_f32 v15, v12, v15")
    A("v_mov_b32 v12, v14")
    A("v_mov_b32 v13, v15")
    A("v_and_b32 v4, 3, v0")
    A("v_lshlrev_b32 v4, 3, v4")
    A(f"ds_write_b64 v4, v[12:13] offset:{GST}")
    A("s_waitcnt lgkmcnt(0)")
    A("s_barrier")
    stamp(g, 6, stamps)
    Lnog = g.newlabel("nogu")
    A("s_cmp_ge_u32 s51, 28")
    A(f"s_cbranch_scc1 {Lnog}")
    A(f"v_add_u32 v6, {FL:#x}, v1")
    poll_tag(g, ["global_load_dwordx4 v[12:15], v6, s[26:27] sc1"], [12, 13, 14, 15], 16, "fl")
    A("s_lshr_b32 s33, s50, 3")
    A("s_lshl_b32 s34, s33, 14")
    A(f"s_add_u32 s34, s34, {GT:#x}")
    A("v_add_u32 v4, s34, v1")
    for q in range(16):
        if q % 4 == 0:
            if q:
                A("v_add_u32 v4, 4096, v4")
            A(f"s_mov_b32 m0, {GU_L+1024*q}")
            A("s_nop 0")
        A(f"global_load_lds_dwordx4 v4, s[26:27] offset:{1024*(q%4)} sc1")
    Lnod = g.newlabel("nod")
    A("s_cmp_ge_u32 s2, 64")
    A(f"s_cbranch_scc1 {Lnod}")
    A("s_mul_i32 s34, s33, 28672")
    A(f"s_add_u32 s34, s34, {DT:#x}")
    A("v_add_u32 v4, s34, v1")
    for q in range(28):
        if q % 4 == 0:
            if q:
                A("v_add_u32 v4, 4096, v4")
            A(f"s_mov_b32 m0, {WD_L+1024*q}")
            A("s_nop 0")
        A(f"global_load_lds_dwordx4 v4, s[26:27] offset:{1024*(q%4)} sc1")
    g.label(Lnod)
    g.label(Lnog)
    A("s_lshl_b32 s33, s32, 15")
    A("s_lshl_b32 s34, s31, 11")
    A("s_add_u32 s33, s33, s34")
    A(f"s_add_u32 s33, s33, {OP:#x}")
    A("v_add_u32 v6, s33, v1")
    A("s_lshl_b32 s33, s32, 8")
    A(f"s_add_u32 s33, s33, {F1:#x}")
    A("s_lshl_b32 s34, s31, 2")
    A("s_add_u32 s34, s34, s33")
    A("v_mov_b32 v8, s34")
    A("v_lshlrev_b32 v7, 2, v3")
    A("v_add_u32 v7, s33, v7")
    A("v_mov_b32 v9, s47")
    A("s_barrier")
    stamp(g, 7, stamps)
    for c in range(2):
        for w in range(8):
            A(f"ds_read_b128 {v(16+32*c+4*w,4)}, v1 offset:{RED+2048*w+1024*c}")
    for c in range(2):
        A(f"s_waitcnt lgkmcnt({8*(1-c)})")
        b = 16 + 32 * c
        for i in range(4):
            A(f"v_add_f32 {v(b+i)}, {v(b+i)}, {v(b+4+i)}")
            A(f"v_add_f32 {v(b+8+i)}, {v(b+8+i)}, {v(b+12+i)}")
            A(f"v_add_f32 {v(b+16+i)}, {v(b+16+i)}, {v(b+20+i)}")
            A(f"v_add_f32 {v(b+24+i)}, {v(b+24+i)}, {v(b+28+i)}")
        for i in range(4):
            A(f"v_add_f32 {v(b+i)}, {v(b+i)}, {v(b+8+i)}")
            A(f"v_add_f32 {v(b+16+i)}, {v(b+16+i)}, {v(b+24+i)}")
        for i in range(4):
            A(f"v_add_f32 {v(b+i)}, {v(b+i)}, {v(b+16+i)}")
            A(f"v_min_u32 {v(b+i)}, 0xfffffffe, {v(b+i)}")
        A(f"global_store_dwordx4 v6, {v(b,4)}, s[26:27] offset:{1024*c} sc1")
    A("s_mov_b64 exec, 0x1")
    A("global_store_dword v8, v9, s[26:27] sc1")
    A("s_mov_b64 exec, -1")
    poll_tag(g, ["global_load_dword v12, v7, s[26:27] sc1"], [12], 16, "f1")
    stamp(g, 8, stamps)
    A("s_barrier")
    A("v_and_b32 v4, 31, v0")
    A("v_lshlrev_b32 v4, 2, v4")
    A("v_add_u32 v6, s38, v4")
    A("s_lshl_b32 s33, s2, 2")
    A(f"s_add_u32 s33, s33, {F2:#x}")
    A("v_mov_b32 v8, s33")
    A(f"v_add_u32 v7, {F2:#x}, v1")
    A("s_barrier")
    stamp(g, 9, stamps)
    for w in range(8):
        A(f"ds_read_b32 {v(16+w)}, v4 offset:{R2+128*w}")
    A("s_waitcnt lgkmcnt(0)")
    for w in range(0, 8, 2):
        A(f"v_add_f32 {v(16+w)}, {v(16+w)}, {v(17+w)}")
    A("v_add_f32 v16, v16, v18")
    A("v_add_f32 v20, v20, v22")
    A("v_add_f32 v16, v16, v20")
    A("v_min_u32 v16, 0xfffffffe, v16")
    A("s_mov_b32 exec_hi, 0")
    A("global_store_dword v6, v16, s[26:27] sc1")
    A("s_mov_b64 exec, 0x1")
    A("global_store_dword v8, v9, s[26:27] sc1")
    A("s_mov_b64 exec, -1")
    A("s_cmp_ge_u32 s51, 28")
    A("s_cbranch_scc1 L_end")
    poll_tag(g, ["global_load_dwordx4 v[12:15], v7, s[26:27] sc1"], [12, 13, 14, 15], 16, "f2")
    stamp(g, 10, stamps)
    A("s_barrier")
    A("v_bfe_u32 v4, v0, 2, 1")
    A("v_and_b32 v5, 3, v0")
    A("v_lshlrev_b32 v10, 6, v4")
    A("v_lshlrev_b32 v11, 3, v5")
    A("v_add_u32 v10, v10, v11")
    A("s_lshl_b32 s33, s50, 1")
    A(f"s_add_u32 s33, s33, {AC:#x}")
    A("v_mul_u32_u24 v6, 3584, v4")
    A("v_lshlrev_b32 v11, 2, v5")
    A("v_add3_u32 v6, v6, v11, s33")
    A("s_lshr_b32 s33, s50, 3")
    A("s_lshl_b32 s33, s33, 2")
    A(f"s_add_u32 s33, s33, {F3:#x}")
    A("v_mov_b32 v8, s33")
    A("v_min_u32 v7, 55, v0")
    A("v_lshlrev_b32 v7, 4, v7")
    A(f"v_add_u32 v7, {F3:#x}, v7")
    A("s_mov_b32 s39, 0x200")
    A("s_barrier")
    A("s_barrier")
    stamp(g, 11, stamps)
    for w in range(8):
        A(f"ds_read_b64 {v(16+2*w,2)}, v10 offset:{R4+128*w}")
        A(f"ds_read_b64 {v(32+2*w,2)}, v10 offset:{R4+128*w+32}")
    A("s_waitcnt lgkmcnt(0)")
    for base in (16, 32):
        for i in range(2):
            for w in range(0, 8, 2):
                A(f"v_add_f32 {v(base+2*w+i)}, {v(base+2*w+i)}, {v(base+2*w+2+i)}")
            A(f"v_add_f32 {v(base+i)}, {v(base+i)}, {v(base+4+i)}")
            A(f"v_add_f32 {v(base+8+i)}, {v(base+8+i)}, {v(base+12+i)}")
            A(f"v_add_f32 {v(base+i)}, {v(base+i)}, {v(base+8+i)}")
    A("v_cvt_pk_bf16_f32 v18, v16, v17")
    A("v_lshlrev_b32 v16, 16, v18")
    A("v_and_b32 v17, 0xffff0000, v18")
    A("v_cvt_pk_bf16_f32 v18, v32, v33")
    A("v_lshlrev_b32 v32, 16, v18")
    A("v_and_b32 v33, 0xffff0000, v18")
    for i in range(2):
        A(f"v_mul_f32 {v(18+i)}, s44, {v(16+i)}")
        A(f"v_exp_f32 {v(18+i)}, -{v(18+i)}")
    A("s_nop 0")
    for i in range(2):
        A(f"v_add_f32 {v(18+i)}, 1.0, {v(18+i)}")
        A(f"v_rcp_f32 {v(20+i)}, {v(18+i)}")
    A("s_nop 0")
    for i in range(2):
        A(f"v_mul_f32 {v(22+i)}, {v(16+i)}, {v(20+i)}")
        A(f"v_mov_b32 {v(26+i)}, {v(22+i)}")
        A(f"v_fma_f32 {v(24+i)}, -{v(22+i)}, {v(18+i)}, {v(16+i)}")
        A(f"v_fmac_f32 {v(22+i)}, {v(24+i)}, {v(20+i)}")
    for i in range(2):
        A(f"v_cmp_class_f32 vcc, {v(18+i)}, s39")
        A("s_nop 1")
        A(f"v_cndmask_b32 {v(22+i)}, {v(22+i)}, {v(26+i)}, vcc")
    A("v_cvt_pk_bf16_f32 v18, v22, v23")
    A("v_lshlrev_b32 v22, 16, v18")
    A("v_and_b32 v23, 0xffff0000, v18")
    A("v_mul_f32 v22, v22, v32")
    A("v_mul_f32 v23, v23, v33")
    A("v_cvt_pk_bf16_f32 v18, v22, v23")
    A("v_min_u32 v18, 0xfffffffe, v18")
    A("s_mov_b64 exec, 0xff")
    A("global_store_dword v6, v18, s[26:27] sc1")
    A("s_mov_b64 exec, 0x1")
    A("global_store_dword v8, v9, s[26:27] sc1")
    A("s_mov_b64 exec, -1")
    A("s_cmp_ge_u32 s2, 64")
    A("s_cbranch_scc1 L_end")
    poll_tag(g, ["global_load_dwordx4 v[12:15], v7, s[26:27] sc1"], [12, 13, 14, 15], 16, "f3")
    stamp(g, 12, stamps)
    A("s_barrier")
    A("v_lshlrev_b32 v10, 2, v3")
    A("v_lshrrev_b32 v11, 3, v3")
    A("v_lshlrev_b32 v11, 10, v11")
    A("v_and_b32 v12, 7, v0")
    A("v_lshlrev_b32 v12, 1, v12")
    A("s_lshl_b32 s33, s50, 1")
    A("v_add3_u32 v11, v11, v12, s33")
    A(f"ds_read_u16 v24, v11 offset:{HL}")
    A("s_barrier")
    stamp(g, 17, stamps)
    for w in range(8):
        A(f"ds_read_b32 {v(16+w)}, v10 offset:{R5+64*w}")
    A("s_waitcnt lgkmcnt(0)")
    for w in range(0, 8, 2):
        A(f"v_add_f32 {v(16+w)}, {v(16+w)}, {v(17+w)}")
    A("v_add_f32 v16, v16, v18")
    A("v_add_f32 v20, v20, v22")
    A("v_add_f32 v16, v16, v20")
    bf16r(g, 16, 16, 17)
    A("v_lshlrev_b32 v24, 16, v24")
    A("v_add_f32 v16, v16, v24")
    A("v_cvt_pk_bf16_f32 v16, v16, v16")
    A("s_mov_b64 exec, 0xffff")
    A("global_store_short v11, v16, s[22:23]")
    A("s_mov_b64 exec, -1")
    g.label("L_end")
    if stamps:
        A("s_cmp_ge_u32 s2, 256")
        A("s_cbranch_scc1 L_end2")
        A("s_waitcnt vmcnt(0)")
        stamp(g, 31, True)
        A("v_mov_b32 v166, s62")
        for i in range(32):
            A(f"v_mov_b32 v167, s{64+i}")
            A(f"global_store_dword v166, v167, s[26:27] offset:{4*i}")
        g.label("L_end2")
    A("s_endpgm")

    tail = []
    tail.append('.section .rodata,"a"')
    tail.append(".p2align 6")
    tail.append(f".amdhsa_kernel {NAME}_kernel")
    tail.append("  .amdhsa_next_free_vgpr 168")
    tail.append("  .amdhsa_next_free_sgpr 102")
    tail.append("  .amdhsa_accum_offset 168")
    tail.append("  .amdhsa_group_segment_fixed_size 0")
    tail.append("  .amdhsa_kernarg_size 96")
    tail.append("  .amdhsa_user_sgpr_count 2")
    tail.append("  .amdhsa_user_sgpr_kernarg_segment_ptr 1")
    tail.append("  .amdhsa_system_sgpr_workgroup_id_x 1")
    tail.append(".end_amdhsa_kernel")
    return "\n".join(hdr + g.L + tail) + "\n"


if __name__ == "__main__":
    import argparse
    ap = argparse.ArgumentParser()
    ap.add_argument("-o", default="k.s")
    ap.add_argument("--depth", type=int, default=3)
    ap.add_argument("--n1", type=int, default=3)
    ap.add_argument("--n2", type=int, default=10)
    ap.add_argument("--wnt", type=int, default=1)
    ap.add_argument("--stamps", type=int, default=0)
    ap.add_argument("--b0", type=int, default=1)
    ap.add_argument("--rp", type=int, default=1)
    a = ap.parse_args()
    open(a.o, "w").write(gen(a.depth, a.n1, a.n2, bool(a.wnt), bool(a.stamps), bool(a.b0), a.rp))
```

```python
import sys

NAME = "sequential_preLN__gqa_block_cached__swiglu_ffn__decode"

QP = 0x00000
ST = 0x40000
OP = 0x80000
YP = 0x100000
AC = 0x110000
FL = 0x120000
F1 = 0x121000
F2 = 0x122000
F3 = 0x123000
TS = 0x200000
GT = 0x300000
DT = 0x700000

XL = 0
XN = XL + 2048
QL = XN + 2048
WST = QL + 1024
GST = WST + 256
FLG = GST + 128
RED = GST + 256
AO = RED + 16384
R2 = AO + 1024
LS = R2 + 1024
HN = LS + 256
R4 = HN + 2048
R5 = R4
WO_L = 32768
assert R4 + 4096 <= WO_L
GU_L = WO_L + 32768
WD_L = GU_L
LDS_TOTAL = GU_L + 57344

LOG2E = 0x3FB8AA3B
SCALE = 0x3DB504F3
EPS = 0x3727C5AC
INV512 = 0x3B000000
SPIN = 20000
PK = 3
SLP = 0
SLP2 = 0


class G:
    def __init__(self):
        self.L = []
        self.nlab = 0

    def __call__(self, s):
        self.L.append("  " + s)

    def label(self, name):
        self.L.append(name + ":")

    def newlabel(self, base):
        self.nlab += 1
        return f"L_{base}_{self.nlab}"


def v(i, n=1):
    return f"v{i}" if n == 1 else f"v[{i}:{i+n-1}]"


DPP = "row_mask:0xf bank_mask:0xf"


def bf16r(g, dst, src, tmp):
    g(f"v_cvt_pk_bf16_f32 {v(tmp)}, {v(src)}, {v(src)}")
    g(f"v_lshlrev_b32 {v(dst)}, 16, {v(tmp)}")


def dpp_steps(g, regs, op, steps):
    for st in steps:
        if len(regs) < 3:
            g("s_nop 1")
        for r in regs:
            g(f"{op}_dpp {v(r)}, {v(r)}, {v(r)} {st} {DPP}")


def swap_reduce(g, regs, tmps, op, which):
    for sw in which:
        ins = {16: "v_permlane16_swap_b32", 32: "v_permlane32_swap_b32"}[sw]
        for r, t in zip(regs, tmps):
            g(f"v_mov_b32 {v(t)}, {v(r)}")
        g("s_nop 1")
        for r, t in zip(regs, tmps):
            g(f"{ins} {v(r)}, {v(t)}")
        for r, t in zip(regs, tmps):
            g(f"{op} {v(r)}, {v(r)}, {v(t)}")


def wave_reduce(g, regs, tmps, op):
    dpp_steps(g, regs, op, ["quad_perm:[1,0,3,2]", "quad_perm:[2,3,0,1]", "row_ror:4", "row_ror:8"])
    swap_reduce(g, regs, tmps, op, (16, 32))


def unpack8(g, dst, src):
    for i in range(4):
        g(f"v_lshlrev_b32 {v(dst+2*i)}, 16, {v(src+i)}")
        g(f"v_and_b32 {v(dst+2*i+1)}, 0xffff0000, {v(src+i)}")


def ln_finish_pair(g, f0, f1, mean_b, den, rc, D, out):
    g(f"v_sub_f32 {v(D[0])}, {v(f0)}, {v(mean_b)}")
    g(f"v_sub_f32 {v(D[1])}, {v(f1)}, {v(mean_b)}")
    g(f"v_cvt_pk_bf16_f32 {v(D[2])}, {v(D[0])}, {v(D[1])}")
    g(f"v_lshlrev_b32 {v(D[0])}, 16, {v(D[2])}")
    g(f"v_and_b32 {v(D[1])}, 0xffff0000, {v(D[2])}")
    g(f"v_mul_f32 {v(D[2])}, {v(D[0])}, {v(rc)}")
    g(f"v_mul_f32 {v(D[3])}, {v(D[1])}, {v(rc)}")
    g(f"v_fma_f32 {v(D[4])}, -{v(D[2])}, {v(den)}, {v(D[0])}")
    g(f"v_fma_f32 {v(D[5])}, -{v(D[3])}, {v(den)}, {v(D[1])}")
    g(f"v_fmac_f32 {v(D[2])}, {v(D[4])}, {v(rc)}")
    g(f"v_fmac_f32 {v(D[3])}, {v(D[5])}, {v(rc)}")
    g(f"v_cvt_pk_bf16_f32 {v(out)}, {v(D[2])}, {v(D[3])}")


def ln_scalars(g, mean, var, rc, t):
    bf16r(g, var, var, t)
    g(f"v_add_f32 {v(var)}, {EPS:#x}, {v(var)}")
    bf16r(g, var, var, t)
    g(f"v_sqrt_f32 {v(var)}, {v(var)}")
    bf16r(g, mean, mean, t)
    bf16r(g, var, var, t)
    g(f"v_rcp_f32 {v(rc)}, {v(var)}")
    g("s_nop 0")


def layernorm2(g, F, OUTP, T):
    s0, s1, q0, q1, r0, r1 = T[:6]
    D = T[6:12]
    t0, t1 = D[0], D[1]
    for b, s in ((0, s0), (1, s1)):
        f = F + 8 * b
        g(f"v_add_f32 {v(s)}, {v(f)}, {v(f+1)}")
        for i in range(2, 8):
            g(f"v_add_f32 {v(s)}, {v(s)}, {v(f+i)}")
    wave_reduce(g, [s0, s1], [t0, t1], "v_add_f32")
    g(f"v_mul_f32 {v(s0)}, {INV512:#x}, {v(s0)}")
    g(f"v_mul_f32 {v(s1)}, {INV512:#x}, {v(s1)}")
    for b, s, q in ((0, s0, q0), (1, s1, q1)):
        f = F + 8 * b
        for i in range(8):
            d = D[i % 4]
            g(f"v_sub_f32 {v(d)}, {v(f+i)}, {v(s)}")
            if i == 0:
                g(f"v_mul_f32 {v(q)}, {v(d)}, {v(d)}")
            else:
                g(f"v_fmac_f32 {v(q)}, {v(d)}, {v(d)}")
    wave_reduce(g, [q0, q1], [t0, t1], "v_add_f32")
    for s, q, r in ((s0, q0, r0), (s1, q1, r1)):
        g(f"v_mul_f32 {v(q)}, {INV512:#x}, {v(q)}")
        ln_scalars(g, s, q, r, t0)
    for b, s, q, r in ((0, s0, q0, r0), (1, s1, q1, r1)):
        f = F + 8 * b
        for i in range(0, 8, 2):
            ln_finish_pair(g, f + i, f + i + 1, s, q, r, D, OUTP + 4 * b + i // 2)


def poll_loop(g, loads, regs, tmp, name, slp=False):
    L = g.newlabel(name)
    Ld = g.newlabel(name + "_done")
    g(f"s_mov_b32 s46, {SPIN}")
    g.label(L)
    for l in loads:
        g(l)
    g("s_waitcnt vmcnt(0)")
    rs = list(regs)
    g(f"v_max_u32 {v(tmp)}, {v(rs[0])}, {v(rs[1])}")
    rest = rs[2:]
    while len(rest) >= 2:
        g(f"v_max3_u32 {v(tmp)}, {v(tmp)}, {v(rest[0])}, {v(rest[1])}")
        rest = rest[2:]
    if rest:
        g(f"v_max_u32 {v(tmp)}, {v(tmp)}, {v(rest[0])}")
    g(f"v_cmp_eq_u32 vcc, -1, {v(tmp)}")
    g(f"s_cbranch_vccz {Ld}")
    if slp and SLP2:
        g(f"s_sleep {SLP2}")
    g("s_sub_u32 s46, s46, 1")
    g("s_cmp_lg_u32 s46, 0")
    g(f"s_cbranch_scc1 {L}")
    g.label(Ld)


def poll_tag(g, loads, regs, tmp, name):
    L = g.newlabel(name)
    Ld = g.newlabel(name + "_done")
    g(f"s_mov_b32 s46, {SPIN}")
    g.label(L)
    for l in loads:
        g(l)
    g("s_waitcnt vmcnt(0)")
    rs = list(regs)
    if len(rs) == 1:
        g(f"v_cmp_ne_u32 vcc, s47, {v(rs[0])}")
    else:
        g(f"v_xor_b32 {v(tmp)}, s47, {v(rs[0])}")
        for r in rs[1:]:
            g(f"v_xor_b32 {v(tmp+1)}, s47, {v(r)}")
            g(f"v_or_b32 {v(tmp)}, {v(tmp)}, {v(tmp+1)}")
        g(f"v_cmp_ne_u32 vcc, 0, {v(tmp)}")
    g(f"s_cbranch_vccz {Ld}")
    g("s_sub_u32 s46, s46, 1")
    g("s_cmp_lg_u32 s46, 0")
    g(f"s_cbranch_scc1 {L}")
    g.label(Ld)


def poll_pipe(g, mk_load, nreg, sb, K, chk, tmp, name, dst=None, anyok=False, slp=True):
    K = min(K, PK)
    Ld = g.newlabel(name + "_done")
    L = g.newlabel(name)
    g(f"s_mov_b32 s46, {SPIN}")
    for k in range(K):
        g(mk_load(sb + nreg * k))
    g.label(L)
    outs = []
    for k in range(K):
        r = sb + nreg * k
        g(f"s_waitcnt vmcnt({K-1})")
        if len(chk) == 1:
            g(f"v_cmp_ne_u32 vcc, s47, {v(r+chk[0])}")
        else:
            g(f"v_xor_b32 {v(tmp)}, s47, {v(r+chk[0])}")
            for c in chk[1:]:
                g(f"v_xor_b32 {v(tmp+1)}, s47, {v(r+c)}")
                g(f"v_or_b32 {v(tmp)}, {v(tmp)}, {v(tmp+1)}")
            g(f"v_cmp_ne_u32 vcc, 0, {v(tmp)}")
        Lk = g.newlabel(name + f"_ok{k}")
        outs.append((Lk, r))
        if anyok:
            g("s_cmp_lg_u64 vcc, -1")
            g(f"s_cbranch_scc1 {Lk}")
        else:
            g(f"s_cbranch_vccz {Lk}")
        if SLP and slp:
            g(f"s_sleep {SLP}")
        g(mk_load(r))
    g("s_sub_u32 s46, s46, 1")
    g("s_cmp_lg_u32 s46, 0")
    g(f"s_cbranch_scc1 {L}")
    g(f"s_branch {Ld}")
    for n, (Lk, r) in enumerate(outs):
        g.label(Lk)
        if dst is not None:
            for i in range(nreg):
                g(f"v_mov_b32 {v(dst+i)}, {v(r+i)}")
        if n != len(outs) - 1:
            g(f"s_branch {Ld}")
    g.label(Ld)


def stamp(g, idx, on):
    if not on:
        return
    g("s_memrealtime s[60:61]")
    g("s_waitcnt lgkmcnt(0)")
    g(f"s_mov_b32 s{64+idx}, s60")


def gen(depth=3, n1=3, n2=10, wnt=True, stamps=False, b0=1, rp=1, qany=1, rpos=0, now=0, bare=0, rpg=1, rpd=1, gnt=0, wpos=0, dsw=99, depth2=3, mp=0, tpos=0):
    g = G()
    A = g
    hdr = []
    hdr.append(f"; @launch grid=(256,1,1) block=(576,1,1) lds={LDS_TOTAL}")
    hdr.append('.amdgcn_target "amdgcn-amd-amdhsa--gfx950"')
    hdr.append(".text")
    hdr.append(f".globl {NAME}_kernel")
    hdr.append(".p2align 8")
    hdr.append(f".type {NAME}_kernel,@function")
    hdr.append(f"{NAME}_kernel:")
    WNT = " nt" if wnt else ""
    A("s_cmp_ge_u32 s2, 256")
    A("s_cbranch_scc1 L_end2")
    A("s_load_dwordx16 s[4:19], s[0:1], 0")
    A("s_load_dwordx8 s[20:27], s[0:1], 64")
    A("v_lshrrev_b32 v1, 6, v0")
    A("v_and_b32 v0, 63, v0")
    A("s_nop 0")
    A("v_readfirstlane_b32 s28, v1")
    A("s_and_b32 s58, s2, 7")
    if mp == 0:
        A("s_and_b32 s29, s2, 7")
        A("s_bfe_u32 s30, s2, 0x10003")
        A("s_lshr_b32 s31, s2, 4")
        A("s_and_b32 s32, s2, 15")
    else:
        A("s_bfe_u32 s29, s2, 0x30004")
        A("s_lshr_b32 s30, s2, 7")
        A("s_and_b32 s31, s2, 15")
        A("s_lshr_b32 s32, s2, 4")
    A(f"s_mov_b32 s44, {LOG2E:#x}")
    A(f"s_mov_b32 s45, {SCALE:#x}")
    A("s_and_b32 s33, s31, 7")
    A("s_lshl_b32 s33, s33, 1")
    A("s_lshr_b32 s34, s31, 3")
    A("s_or_b32 s59, s33, s34")
    A("s_lshl_b32 s50, s2, 4")
    A("s_mov_b32 s51, 0")
    A("s_cmp_lt_u32 s2, 144")
    A("s_cselect_b32 s51, 2, 0")
    A("s_sub_u32 s33, s50, 1792")
    A("s_cmp_lt_u32 s2, 112")
    A("s_cselect_b32 s51, 1, s51")
    A("s_cselect_b32 s50, s50, s33")
    if stamps:
        A("s_mul_i32 s62, s2, 9")
        A("s_add_u32 s62, s62, s28")
        A("s_lshl_b32 s62, s62, 7")
        A(f"s_add_u32 s62, s62, {TS:#x}")
        for i in range(32):
            A(f"s_mov_b32 s{64+i}, 0")
    A("s_waitcnt lgkmcnt(0)")
    A("s_cmp_eq_u32 s28, 8")
    A("s_cbranch_scc1 L_ctrl")

    vK, vV, vML, vMH, vW = 4, 5, 6, 7, 8
    KR = 16
    VR = 84
    QB = 148
    Z = 152
    O0, O1 = 156, 160
    stamp(g, 0, stamps)
    A("s_lshl_b32 s33, s32, 21")
    A("s_lshl_b32 s34, s31, 17")
    A("s_add_u32 s33, s33, s34")
    A("s_lshl_b32 s34, s28, 14")
    A("s_add_u32 s33, s33, s34")
    A("v_lshrrev_b32 v1, 4, v0")
    A("v_bfe_u32 v2, v0, 2, 2")
    A("v_and_b32 v3, 3, v0")
    A("v_lshlrev_b32 v9, 6, v1")
    A("v_lshlrev_b32 v10, 8, v2")
    A("v_lshlrev_b32 v11, 4, v3")
    A("v_add3_u32 v9, v9, v10, v11")
    A(f"v_add_u32 {v(vK)}, s33, v9")
    A("v_lshlrev_b32 v9, 4, v0")
    A(f"v_add_u32 {v(vV)}, s33, v9")
    A(f"v_mov_b32 {v(vML)}, 0xffff")
    A(f"v_mov_b32 {v(vMH)}, 0xffff0000")

    seq = []

    def issue(name):
        kind, m = name
        dd = depth if len(seq) < dsw else depth2
        if len(seq) >= dd and throttle[0]:
            A(f"s_waitcnt vmcnt({dd-1})")
        if kind == "K":
            if m % 4 == 0 and m > 0:
                A(f"v_add_u32 {v(vK)}, 4096, {v(vK)}")
            r = KR + 4 + 4 * m
            A(f"global_load_dwordx4 {v(r,4)}, {v(vK)}, s[6:7] offset:{(m%4)*1024} nt")
        elif kind == "V":
            if m % 4 == 0 and m > 0:
                A(f"v_add_u32 {v(vV)}, 4096, {v(vV)}")
            r = VR + 4 * m
            A(f"global_load_dwordx4 {v(r,4)}, {v(vV)}, s[8:9] offset:{(m%4)*1024} nt")
        elif kind == "W":
            if m > 0:
                A(f"v_add_u32 {v(vW)}, 16384, {v(vW)}")
            A(f"s_add_u32 m0, s35, {m*1024}")
            A("s_nop 0")
            A(f"global_load_lds_dwordx4 {v(vW)}, s[12:13]{WNT}")
        elif kind == "R":
            RPb = RP + 4 * m
            addr = "v11" if m < 2 else "v12"
            base = ("s[16:17]", "s[18:19]", "s[20:21]")[m]
            A(f"global_load_dwordx4 {v(RPb,4)}, {addr}, {base} nt")
        elif kind == "Rold":
            if m == 0:
                A("s_min_u32 s33, s28, 6")
                A("s_and_b32 s34, s2, 3")
                A("s_mul_i32 s34, s34, 7")
                A("s_add_u32 s34, s34, s33")
                A("s_lshr_b32 s36, s2, 2")
                A("s_mul_i32 s36, s36, 28672")
                A("s_lshl_b32 s37, s34, 7")
                A("s_add_u32 s36, s36, s37")
                A("v_lshrrev_b32 v9, 3, v0")
                A("v_and_b32 v10, 7, v0")
                A("v_mul_u32_u24 v11, 3584, v10")
                A("v_lshlrev_b32 v9, 4, v9")
                A("v_add3_u32 v11, v11, v9, s36")
                A("s_mul_i32 s34, s2, 7")
                A("s_add_u32 s34, s34, s33")
                A("s_lshr_b32 s36, s34, 3")
                A("s_and_b32 s34, s34, 7")
                A("s_lshl_b32 s36, s36, 13")
                A("s_lshl_b32 s37, s34, 7")
                A("s_add_u32 s36, s36, s37")
                A("v_lshlrev_b32 v10, 10, v10")
                A("v_add3_u32 v10, v10, v9, s36")
                A("s_mul_i32 s36, s28, 3072")
                A(f"s_add_u32 s36, s36, {GU_L}")
            addr = "v11" if m < 2 else "v10"
            base = ("s[16:17]", "s[18:19]", "s[20:21]")[m]
            A(f"s_add_u32 m0, s36, {1024*m}")
            A("s_nop 0")
            A(f"global_load_lds_dwordx4 {addr}, {base} nt")
        seq.append(name)

    def wait_for(name):
        idx = seq.index(name)
        n = len(seq) - 1 - idx
        A(f"s_waitcnt vmcnt({n})")

    throttle = [True]
    RP = VR + 52
    A("s_min_u32 s33, s28, 6")
    A("s_and_b32 s34, s2, 3")
    A("s_mul_i32 s34, s34, 7")
    A("s_add_u32 s34, s34, s33")
    A("s_lshr_b32 s35, s2, 2")
    A("v_bfe_u32 v10, v0, 1, 3")
    A("v_and_b32 v9, 1, v0")
    A("v_lshlrev_b32 v9, 4, v9")
    A("v_lshlrev_b32 v14, 5, v1")
    A("v_add_u32 v14, v14, v9")
    A("s_mul_i32 s36, s35, 28672")
    A("s_lshl_b32 s37, s34, 7")
    A("s_add_u32 s36, s36, s37")
    A("v_mul_u32_u24 v11, 3584, v10")
    A("v_add3_u32 v11, v11, v14, s36")
    A("s_lshl_b32 s36, s34, 17")
    A("s_lshl_b32 s37, s35, 8")
    A("s_add_u32 s36, s36, s37")
    A(f"s_add_u32 s36, s36, {GT:#x}")
    A("v_lshlrev_b32 v13, 15, v1")
    A("v_lshlrev_b32 v15, 5, v10")
    A("v_add_u32 v15, v15, v9")
    A("v_add3_u32 v13, v13, v15, s36")
    A("s_mul_i32 s34, s2, 7")
    A("s_add_u32 s34, s34, s33")
    A("s_lshr_b32 s35, s34, 3")
    A("s_and_b32 s34, s34, 7")
    A("s_lshl_b32 s36, s35, 13")
    A("s_lshl_b32 s37, s34, 7")
    A("s_add_u32 s36, s36, s37")
    A("v_lshlrev_b32 v12, 10, v10")
    A("v_add3_u32 v12, v12, v14, s36")
    A("s_mul_i32 s36, s34, 229376")
    A("s_lshl_b32 s37, s35, 8")
    A("s_add_u32 s36, s36, s37")
    A(f"s_add_u32 s36, s36, {DT:#x}")
    A("v_mul_u32_u24 v14, 57344, v1")
    A("v_add3_u32 v15, v14, v15, s36")
    A("v_add_u32 v14, 16384, v13")
    A("s_lshl_b32 s33, s29, 19")
    A("s_lshl_b32 s34, s28, 16")
    A("s_add_u32 s33, s33, s34")
    A("s_lshl_b32 s34, s59, 6")
    A("s_add_u32 s33, s33, s34")
    A("v_lshrrev_b32 v9, 2, v0")
    A("v_lshlrev_b32 v9, 10, v9")
    A("v_lshlrev_b32 v10, 4, v3")
    A(f"v_add3_u32 {v(vW)}, v9, v10, s33")
    A("s_lshl_b32 s35, s28, 12")
    A(f"s_add_u32 s35, s35, {WO_L}")
    A("v_mov_b32 v164, 0")
    A("s_mov_b32 s49, 1")
    A("s_getpc_b64 s[56:57]")
    g.label("L_pc0")
    A("s_add_u32 s56, s56, L_qk-L_pc0")
    A("s_addc_u32 s57, s57, 0")
    A("s_barrier")
    GNT = " nt" if gnt else ""

    def tile_gu():
        A("s_lshl_b32 s33, s50, 11")
        A("s_lshl_b32 s34, s28, 11")
        A("s_add_u32 s33, s33, s34")
        A(f"s_add_u32 s33, s33, {GT:#x}")
        A("v_lshlrev_b32 v9, 4, v0")
        A("v_add_u32 v9, s33, v9")
        A("v_add_u32 v10, 16384, v9")
        A(f"s_add_u32 m0, s34, {GU_L}")
        A("s_nop 0")
        A("global_load_lds_dwordx4 v9, s[26:27] sc1")
        A("global_load_lds_dwordx4 v9, s[26:27] offset:1024 sc1")
        A(f"s_add_u32 m0, s34, {GU_L+16384}")
        A("s_nop 0")
        A("global_load_lds_dwordx4 v10, s[26:27] sc1")
        A("global_load_lds_dwordx4 v10, s[26:27] offset:1024 sc1")

    def tile_dn():
        A("s_mul_i32 s33, s50, 3584")
        A("s_mul_i32 s34, s28, 7168")
        A("s_add_u32 s33, s33, s34")
        A(f"s_add_u32 s33, s33, {DT:#x}")
        A("v_lshlrev_b32 v9, 4, v0")
        A("v_add_u32 v9, s33, v9")
        A("v_add_u32 v10, 4096, v9")
        A(f"s_add_u32 m0, s34, {WD_L}")
        A("s_nop 0")
        for i in range(4):
            A(f"global_load_lds_dwordx4 v9, s[26:27] offset:{1024*i} sc1")
        A(f"s_add_u32 m0, s34, {WD_L+4096}")
        A("s_nop 0")
        for i in range(3):
            A(f"global_load_lds_dwordx4 v10, s[26:27] offset:{1024*i} sc1")

    def tiles():
        Lx = g.newlabel("notile")
        Ld2 = g.newlabel("dtile")
        A("s_cmp_eq_u32 s51, 0")
        A(f"s_cbranch_scc1 {Lx}")
        A("s_cmp_eq_u32 s51, 2")
        A(f"s_cbranch_scc1 {Ld2}")
        tile_gu()
        A(f"s_branch {Lx}")
        g.label(Ld2)
        tile_dn()
        g.label(Lx)

    if tpos == 1:
        tiles()

    def check():
        Ls = g.newlabel("nocall")
        A(f"ds_read_b32 v165, v164 offset:{FLG}")
        A("s_waitcnt lgkmcnt(0)")
        A("v_readfirstlane_b32 s48, v165")
        A("s_cmp_eq_u32 s48, s49")
        A(f"s_cbranch_scc0 {Ls}")
        A("s_swappc_b64 s[54:55], s[56:57]")
        g.label(Ls)

    def rstores():
        wait_for(("R", 2))
        A(f"global_store_dwordx4 v13, {v(RP,4)}, s[26:27] sc1")
        A(f"global_store_dwordx4 v14, {v(RP+4,4)}, s[26:27] sc1")
        A(f"global_store_dwordx4 v15, {v(RP+8,4)}, s[26:27] sc1")
        seq.append(("RS", 0)); seq.append(("RS", 1)); seq.append(("RS", 2))

    order = []
    order += [("K", m) for m in range(rpos)]
    order += [("R", m) for m in range(3)]
    order += [("K", m) for m in range(rpos, 16)]
    order += [("V", m) for m in range(16)]
    r2 = order.index(("R", 2))
    k15 = order.index(("K", 15))
    rs_at = r2 + depth
    first_check = max(k15, rs_at) + depth
    for i, op in enumerate(order):
        issue(op)
        if i == rs_at:
            rstores()
        if i == first_check:
            wait_for(("K", 15))
            wait_for(("RS", 2))
        if i >= first_check:
            check()
    stamp(g, 1, stamps)
    L = g.newlabel("wq")
    Ld = g.newlabel("wq_done")
    A(f"s_mov_b32 s46, {SPIN*16}")
    g.label(L)
    A("s_cmp_eq_u32 s49, 2")
    A(f"s_cbranch_scc1 {Ld}")
    check()
    A("s_sub_u32 s46, s46, 1")
    A("s_cmp_lg_u32 s46, 0")
    A(f"s_cbranch_scc1 {L}")
    g.label(Ld)
    for i in range(66):
        A(f"v_mov_b32 {v(KR+i)}, 0")
    A("v_lshlrev_b32 v9, 3, v3")
    stamp(g, 5, stamps)
    L = g.newlabel("wg")
    Ld = g.newlabel("wg_done")
    A(f"s_mov_b32 s46, {SPIN*16}")
    g.label(L)
    A(f"ds_read_b32 v165, v164 offset:{FLG+8}")
    A("s_waitcnt lgkmcnt(0)")
    A("v_readfirstlane_b32 s48, v165")
    A("s_cmp_eq_u32 s48, 1")
    A(f"s_cbranch_scc1 {Ld}")
    A("s_sub_u32 s46, s46, 1")
    A("s_cmp_lg_u32 s46, 0")
    A(f"s_cbranch_scc1 {L}")
    g.label(Ld)
    stamp(g, 6, stamps)
    A(f"ds_read_b64 v[12:13], v9 offset:{GST}")
    A("s_waitcnt lgkmcnt(0)")
    for m in range(4):
        A(f"v_sub_f32 {v(Z+m)}, {v(Z+m)}, v12")
        A(f"v_mul_f32 {v(Z+m)}, s44, {v(Z+m)}")
        A(f"v_exp_f32 {v(Z+m)}, {v(Z+m)}")
    A("s_nop 0")
    for m in range(4):
        A(f"v_mul_f32 {v(Z+m)}, {v(Z+m)}, v13")
        A(f"v_cvt_pk_bf16_f32 {v(Z+m)}, {v(Z+m)}, {v(Z+m)}")
    A("s_nop 1")
    for m in range(16):
        beta = m & 3
        k = m >> 2
        for j in range(4):
            rot = (4 * (j - beta)) & 15
            dst = KR + 4 * m + 2 + (j >> 1)
            msk = vMH if (j & 1) else vML
            ctl = f"row_ror:{rot}" if rot else "quad_perm:[0,1,2,3]"
            A(f"v_and_b32_dpp {v(dst)}, {v(Z+k)}, {v(msk)} {ctl} row_mask:0xf bank_mask:{1<<j:#x}")
    stamp(g, 7, stamps)
    A("s_nop 1")
    for m in range(16):
        wait_for(("V", m))
        c0 = "0" if m == 0 else v(O0, 4)
        c1 = "0" if m == 0 else v(O1, 4)
        A(f"v_mfma_f32_16x16x32_bf16 {v(O0,4)}, {v(VR+4*m,4)}, {v(KR+4*m+2,4)}, {c0}")
        A(f"v_mfma_f32_16x16x32_bf16 {v(O1,4)}, {v(VR+4*m,4)}, {v(KR+4*m,4)}, {c1}")
    stamp(g, 8, stamps)
    throttle[0] = False
    for m in range(4):
        issue(("W", m))
    if bare:
        A("s_branch L_end")
    A("s_lshl_b32 s33, s28, 11")
    A("v_lshlrev_b32 v9, 5, v0")
    A("v_add_u32 v9, s33, v9")
    A("s_nop 6")
    A(f"ds_write_b128 v9, {v(O0,4)} offset:{RED}")
    A(f"ds_write_b128 v9, {v(O1,4)} offset:{RED+16}")
    A("s_waitcnt lgkmcnt(0)")
    A("s_barrier")
    A("s_lshl_b32 s36, s32, 15")
    A("s_lshl_b32 s37, s28, 8")
    A("s_add_u32 s36, s36, s37")
    A(f"s_add_u32 s36, s36, {OP:#x}")
    A("v_lshlrev_b32 v9, 11, v1")
    A("v_and_b32 v4, 15, v0")
    A("v_lshlrev_b32 v10, 4, v4")
    A("v_add3_u32 v10, v9, v10, s36")
    for i in range(1, 4):
        A(f"v_add_u32 {v(10+i)}, {8192*i}, v10")
    A("s_lshr_b32 s33, s28, 1")
    A("s_lshl_b32 s33, s33, 11")
    A("s_and_b32 s34, s28, 1")
    A("s_lshl_b32 s34, s34, 7")
    A("s_add_u32 s33, s33, s34")
    A(f"s_add_u32 s33, s33, {WO_L}")
    A("v_lshlrev_b32 v5, 13, v1")
    A("v_lshlrev_b32 v6, 9, v2")
    A("v_lshlrev_b32 v7, 3, v3")
    A("v_add3_u32 v5, v5, v6, v7")
    A("v_add_u32 v5, s33, v5")
    A("s_lshl_b32 s33, s28, 7")
    A("v_lshlrev_b32 v6, 3, v4")
    A("v_add_u32 v6, s33, v6")
    A("v_lshlrev_b32 v7, 4, v1")
    A("v_add_u32 v7, s33, v7")
    A("s_waitcnt vmcnt(0)")
    stamp(g, 9, stamps)
    A("s_barrier")
    BR = 96
    AR = 88
    DR = 112
    for kk in range(2):
        for n in range(2):
            for u in range(2):
                A(f"ds_read_b64_tr_b16 {v(BR+8*kk+4*n+2*u,2)}, v5 offset:{64*kk+256*u+32*n}")
    loads = [f"global_load_dwordx4 {v(16+4*i,4)}, {v(10+i)}, s[26:27] sc1" for i in range(4)]
    poll_loop(g, loads, list(range(16, 32)), 9, "t1")
    stamp(g, 10, stamps)

    for k in range(4):
        A(f"v_add_f32 {v(16+k)}, {v(16+k)}, {v(20+k)}")
        A(f"v_add_f32 {v(24+k)}, {v(24+k)}, {v(28+k)}")
    for k in range(4):
        A(f"v_add_f32 {v(16+k)}, {v(16+k)}, {v(24+k)}")
    swap_reduce(g, [16, 17, 18, 19], [20, 21, 22, 23], "v_add_f32", (16, 32))
    A("v_cvt_pk_bf16_f32 v16, v16, v17")
    A("v_cvt_pk_bf16_f32 v17, v18, v19")
    A(f"ds_write_b64 v6, v[16:17] offset:{AO}")
    for kk in range(2):
        A(f"ds_read_b128 {v(AR+4*kk,4)}, v7 offset:{AO+64*kk}")
    A("s_waitcnt lgkmcnt(0)")
    for n in range(2):
        A(f"v_mfma_f32_16x16x32_bf16 {v(DR+4*n,4)}, {v(AR,4)}, {v(BR+4*n,4)}, 0")
    for n in range(2):
        A(f"v_mfma_f32_16x16x32_bf16 {v(DR+4*n,4)}, {v(AR+4,4)}, {v(BR+8+4*n,4)}, {v(DR+4*n,4)}")
    A("s_lshl_b32 s33, s28, 7")
    A("v_lshlrev_b32 v9, 2, v4")
    A("v_add_u32 v9, s33, v9")
    A("s_nop 6")
    A(f"ds_write_b32 v9, {v(DR)} offset:{R2}")
    A(f"ds_write_b32 v9, {v(DR+4)} offset:{R2+64}")
    A("s_waitcnt lgkmcnt(0)")
    A("s_barrier")
    A("s_cmp_eq_u32 s51, 0")
    A("s_cbranch_scc1 L_end")
    A("s_cmp_eq_u32 s51, 2")
    A("s_cbranch_scc1 L_sdown")
    GNT = " nt" if gnt else ""
    if tpos == 0:
        tile_gu()
    A("s_lshl_b32 s36, s28, 8")
    A(f"s_add_u32 s36, s36, {YP:#x}")
    A("v_lshrrev_b32 v5, 5, v0")
    A("v_and_b32 v6, 1, v1")
    A("v_lshlrev_b32 v9, 11, v5")
    A("v_lshlrev_b32 v10, 12, v6")
    A("v_lshlrev_b32 v11, 4, v4")
    A("v_add3_u32 v10, v9, v10, v11")
    A("v_add_u32 v10, s36, v10")
    for i in range(1, 4):
        A(f"v_add_u32 {v(10+i)}, {8192*i}, v10")
    A("s_lshl_b32 s33, s28, 7")
    A("v_lshlrev_b32 v6, 10, v5")
    A("v_lshlrev_b32 v7, 3, v4")
    A("v_add3_u32 v6, v6, v7, s33")
    A(f"ds_read_b64 v[40:41], v6 offset:{XL}")
    A("v_lshlrev_b32 v7, 10, v5")
    A(f"ds_read_u16 v42, v7 offset:{XL}")
    A("s_lshl_b32 s34, s28, 3")
    A("v_lshlrev_b32 v7, 6, v5")
    A("v_add_u32 v8, s34, v7")
    A("v_and_b32 v9, 7, v0")
    A("v_lshlrev_b32 v9, 3, v9")
    A("v_add_u32 v7, v7, v9")
    A("s_lshl_b32 s34, s28, 8")
    A("v_lshlrev_b32 v14, 7, v5")
    A("v_lshlrev_b32 v15, 3, v4")
    A("v_add3_u32 v14, v14, v15, s34")
    A("v_and_b32 v15, 1, v0")
    A("v_lshlrev_b32 v15, 7, v15")
    A("v_lshlrev_b32 v9, 4, v1")
    A("v_add3_u32 v15, v15, v9, s34")
    A("s_lshl_b32 s33, s28, 11")
    A(f"s_add_u32 s33, s33, {GU_L}")
    A("v_lshlrev_b32 v44, 8, v1")
    A("v_lshlrev_b32 v45, 5, v2")
    A("v_lshlrev_b32 v46, 3, v3")
    A("v_add3_u32 v44, v44, v45, v46")
    A("v_add_u32 v44, s33, v44")
    A("s_waitcnt lgkmcnt(0)")
    A("v_lshlrev_b32 v36, 16, v40")
    A("v_and_b32 v37, 0xffff0000, v40")
    A("v_lshlrev_b32 v38, 16, v41")
    A("v_and_b32 v39, 0xffff0000, v41")
    A("v_lshlrev_b32 v42, 16, v42")
    stamp(g, 11, stamps)
    loads = [f"global_load_dwordx4 {v(16+4*i,4)}, {v(10+i)}, s[26:27] sc1" for i in range(4)]
    poll_loop(g, loads, list(range(16, 32)), 9, "t2")
    stamp(g, 12, stamps)
    GB = 96
    for mat in range(2):
        for kk in range(2):
            for u in range(2):
                A(f"ds_read_b64_tr_b16 {v(GB+8*mat+4*kk+2*u,2)}, v44 offset:{16384*mat+1024*kk+128*u}")
    for k in range(4):
        A(f"v_add_f32 {v(16+k)}, {v(16+k)}, {v(20+k)}")
        A(f"v_add_f32 {v(24+k)}, {v(24+k)}, {v(28+k)}")
    for k in range(4):
        A(f"v_add_f32 {v(16+k)}, {v(16+k)}, {v(24+k)}")
    swap_reduce(g, [16, 17, 18, 19], [20, 21, 22, 23], "v_add_f32", (16,))
    for i in (0, 2):
        A(f"v_cvt_pk_bf16_f32 v20, {v(16+i)}, {v(17+i)}")
        A(f"v_lshlrev_b32 {v(16+i)}, 16, v20")
        A(f"v_and_b32 {v(17+i)}, 0xffff0000, v20")
        A(f"v_add_f32 {v(16+i)}, {v(16+i)}, {v(36+i)}")
        A(f"v_add_f32 {v(17+i)}, {v(17+i)}, {v(37+i)}")
        A(f"v_cvt_pk_bf16_f32 {v(24+i//2)}, {v(16+i)}, {v(17+i)}")
        A(f"v_lshlrev_b32 {v(16+i)}, 16, {v(24+i//2)}")
        A(f"v_and_b32 {v(17+i)}, 0xffff0000, {v(24+i//2)}")
    for i in range(4):
        A(f"v_sub_f32 {v(20+i)}, {v(16+i)}, v42")
    A("v_add_f32 v26, v20, v21")
    A("v_mul_f32 v27, v20, v20")
    A("v_add_f32 v26, v26, v22")
    A("v_fmac_f32 v27, v21, v21")
    A("v_add_f32 v26, v26, v23")
    A("v_fmac_f32 v27, v22, v22")
    A("v_fmac_f32 v27, v23, v23")
    dpp_steps(g, [26, 27], "v_add_f32", ["quad_perm:[1,0,3,2]", "quad_perm:[2,3,0,1]", "row_ror:4", "row_ror:8"])
    A(f"ds_write_b64 v8, v[26:27] offset:{LS}")
    A("s_waitcnt lgkmcnt(0)")
    A("s_barrier")
    A(f"ds_read_b64 v[26:27], v7 offset:{LS}")
    A("s_waitcnt lgkmcnt(0)")
    dpp_steps(g, [26, 27], "v_add_f32", ["quad_perm:[1,0,3,2]", "quad_perm:[2,3,0,1]", "row_ror:4"])
    A(f"v_mul_f32 v26, {INV512:#x}, v26")
    A(f"v_mul_f32 v27, {INV512:#x}, v27")
    A("v_fma_f32 v27, -v26, v26, v27")
    A("v_max_f32 v27, 0, v27")
    A("v_add_f32 v26, v26, v42")
    ln_scalars(g, 26, 27, 28, 29)
    ln_finish_pair(g, 16, 17, 26, 27, 28, [30, 31, 32, 33, 34, 35], 24)
    ln_finish_pair(g, 18, 19, 26, 27, 28, [30, 31, 32, 33, 34, 35], 25)
    A(f"ds_write_b64 v14, v[24:25] offset:{HN}")
    for kk in range(2):
        A(f"ds_read_b128 {v(AR+4*kk,4)}, v15 offset:{HN+64*kk}")
    A("s_waitcnt lgkmcnt(0)")
    GD = 128
    for t in range(2):
        A(f"v_mfma_f32_16x16x32_bf16 {v(GD+4*t,4)}, {v(AR,4)}, {v(GB+8*t,4)}, 0")
    for t in range(2):
        A(f"v_mfma_f32_16x16x32_bf16 {v(GD+4*t,4)}, {v(AR+4,4)}, {v(GB+8*t+4,4)}, {v(GD+4*t,4)}")
    A("s_lshl_b32 s33, s28, 8")
    A("v_lshlrev_b32 v9, 2, v4")
    A("v_add_u32 v9, s33, v9")
    A("s_nop 6")
    for t in range(2):
        for b in range(2):
            A(f"ds_write_b32 v9, {v(GD+4*t+b)} offset:{R4+128*t+64*b}")
    A("s_waitcnt lgkmcnt(0)")
    A("s_barrier")
    A("s_branch L_end")
    g.label("L_sdown")
    if tpos == 0:
        tile_dn()
    A("s_mul_i32 s33, s28, 448")
    A(f"s_add_u32 s33, s33, {AC:#x}")
    A("v_and_b32 v9, 1, v0")
    A("v_mul_u32_u24 v9, 3584, v9")
    A("v_lshlrev_b32 v10, 4, v1")
    A("v_add3_u32 v9, v9, v10, s33")
    A("s_mul_i32 s33, s28, 7168")
    A(f"s_add_u32 s33, s33, {WD_L}")
    A("v_lshlrev_b32 v11, 8, v1")
    A("v_lshlrev_b32 v12, 5, v2")
    A("v_lshlrev_b32 v13, 3, v3")
    A("v_add3_u32 v11, v11, v12, v13")
    A("v_add_u32 v11, s33, v11")
    A("s_lshl_b32 s33, s28, 7")
    A("v_lshlrev_b32 v10, 2, v4")
    A("v_add_u32 v10, s33, v10")
    A("s_waitcnt vmcnt(0)")
    for kk in range(7):
        for u in range(2):
            A(f"ds_read_b64_tr_b16 {v(48+4*kk+2*u,2)}, v11 offset:{1024*kk+128*u}")
    stamp(g, 13, stamps)
    loads = [f"global_load_dwordx4 {v(16+4*kk,4)}, v9, s[26:27] offset:{64*kk} sc1" for kk in range(7)]
    poll_loop(g, loads, list(range(16, 44)), 12, "t3", slp=True)
    stamp(g, 14, stamps)
    A("s_waitcnt lgkmcnt(0)")
    for kk in range(7):
        c = "0" if kk == 0 else v(DR, 4)
        A(f"v_mfma_f32_16x16x32_bf16 {v(DR,4)}, {v(16+4*kk,4)}, {v(48+4*kk,4)}, {c}")
    A("s_nop 7")
    A(f"ds_write_b32 v10, {v(DR)} offset:{R5}")
    A(f"ds_write_b32 v10, {v(DR+1)} offset:{R5+64}")
    A("s_waitcnt lgkmcnt(0)")
    A("s_barrier")
    A("s_branch L_end")

    g.label("L_qk")
    stamp(g, 2, stamps)
    A("v_lshlrev_b32 v9, 8, v3")
    A("v_lshlrev_b32 v10, 6, v1")
    A("v_lshlrev_b32 v11, 4, v2")
    A("v_add3_u32 v9, v9, v10, v11")
    A(f"ds_read_b128 {v(QB,4)}, v9 offset:{QL}")
    A("s_waitcnt lgkmcnt(0)")
    for m in range(16):
        A(f"v_mfma_f32_16x16x32_bf16 {v(KR+4*m,4)}, {v(KR+4+4*m,4)}, {v(QB,4)}, 0")
    A("s_nop 3")
    for step in range(3):
        for m in range(16):
            D = KR + 4 * m
            beta = m & 3
            k = m >> 2
            e = (beta + 1 + step) & 3
            rot = (4 * (beta - e)) & 15
            if step < 2:
                A(f"v_add_f32_dpp {v(D+beta)}, {v(D+e)}, {v(D+beta)} row_ror:{rot} {DPP}")
            else:
                A(f"v_add_f32_dpp {v(Z+k)}, {v(D+e)}, {v(D+beta)} row_ror:{rot} row_mask:0xf bank_mask:{1<<beta:#x}")
    for m in range(0, 4, 2):
        A(f"v_cvt_pk_bf16_f32 v9, {v(Z+m)}, {v(Z+m+1)}")
        A("v_lshlrev_b32 v10, 16, v9")
        A("v_and_b32 v11, 0xffff0000, v9")
        A("v_mul_f32 v10, s45, v10")
        A("v_mul_f32 v11, s45, v11")
        A("v_cvt_pk_bf16_f32 v9, v10, v11")
        A(f"v_lshlrev_b32 {v(Z+m)}, 16, v9")
        A(f"v_and_b32 {v(Z+m+1)}, 0xffff0000, v9")
    A(f"v_max3_f32 v12, {v(Z)}, {v(Z+1)}, {v(Z+2)}")
    A(f"v_max_f32 v12, v12, {v(Z+3)}")
    dpp_steps(g, [12], "v_max_f32", ["row_ror:4", "row_ror:8"])
    swap_reduce(g, [12], [9], "v_max_f32", (16, 32))
    for m in range(4):
        A(f"v_sub_f32 {v(KR+m)}, {v(Z+m)}, v12")
        A(f"v_mul_f32 {v(KR+m)}, s44, {v(KR+m)}")
        A(f"v_exp_f32 {v(KR+m)}, {v(KR+m)}")
    A("s_nop 0")
    A(f"v_add_f32 v13, {v(KR)}, {v(KR+1)}")
    A(f"v_add_f32 v13, v13, {v(KR+2)}")
    A(f"v_add_f32 v13, v13, {v(KR+3)}")
    dpp_steps(g, [13], "v_add_f32", ["row_ror:4", "row_ror:8"])
    swap_reduce(g, [13], [9], "v_add_f32", (16, 32))
    A("s_lshl_b32 s33, s28, 5")
    A("v_lshlrev_b32 v9, 3, v3")
    A("v_add_u32 v9, s33, v9")
    A(f"ds_write_b64 v9, v[12:13] offset:{WST}")
    A("v_mov_b32 v10, 1")
    A("s_waitcnt lgkmcnt(0)")
    A(f"ds_add_u32 v164, v10 offset:{FLG+4}")
    A("s_mov_b32 s49, 2")
    stamp(g, 4, stamps)
    A("s_setpc_b64 s[54:55]")

    g.label("L_ctrl")
    stamp(g, 0, stamps)
    Ln = g.newlabel("nonce")
    A("s_cmp_lg_u32 s2, 255")
    A(f"s_cbranch_scc1 {Ln}")
    A("s_memrealtime s[52:53]")
    A("s_waitcnt lgkmcnt(0)")
    A("s_or_b32 s52, s52, 1")
    A("v_mov_b32 v12, s52")
    A("v_mov_b32 v13, 0")
    A("s_mov_b64 exec, 0x1")
    A("global_store_dword v13, v12, s[24:25] sc1")
    A("s_mov_b64 exec, -1")
    g.label(Ln)
    A("v_lshlrev_b32 v1, 4, v0")
    A("v_mov_b32 v164, 0")
    A("v_mov_b32 v165, 0")
    A("v_mov_b32 v166, 0")
    A("v_mov_b32 v167, 0")
    A(f"ds_write_b128 v164, v[164:167] offset:{FLG}")
    A("s_waitcnt lgkmcnt(0)")
    if bare == 1:
        A("v_mov_b32 v165, 1")
        A(f"ds_write_b32 v164, v165 offset:{FLG}")
        A(f"ds_write_b32 v164, v165 offset:{FLG+8}")
        A("s_waitcnt lgkmcnt(0)")
        A("s_barrier")
        A("s_branch L_end")
    A("s_bfe_u32 s33, s2, 0x20003")
    A("s_lshl_b32 s34, s58, 2")
    A("s_add_u32 s36, s33, s34")
    A("s_bfe_u32 s37, s2, 0x20005")
    A("v_lshrrev_b32 v2, 4, v0")
    A("v_and_b32 v3, 15, v0")
    A("s_lshl_b32 s34, s29, 12")
    A("s_lshl_b32 s35, s30, 11")
    A("s_add_u32 s34, s34, s35")
    A("s_lshl_b32 s35, s59, 7")
    A("s_add_u32 s34, s34, s35")
    A(f"s_add_u32 s38, s34, {YP:#x}")
    WQR = 16

    def fills():
        for i in range(4):
            A(f"v_mov_b32 {v(16+i)}, -1")
        A("s_lshl_b32 s33, s32, 4")
        A("s_add_u32 s33, s33, s31")
        A("s_lshl_b32 s34, s33, 11")
        A(f"s_add_u32 s34, s34, {OP:#x}")
        A("v_add_u32 v160, s34, v1")
        A("global_store_dwordx4 v160, v[16:19], s[26:27] sc1")
        A("global_store_dwordx4 v160, v[16:19], s[26:27] offset:1024 sc1")
        A("v_add_u32 v161, s38, v1")
        A("s_mov_b64 exec, 0xff")
        A("global_store_dwordx4 v161, v[16:19], s[26:27] sc1")
        A("s_mov_b64 exec, -1")
        Lskip = g.newlabel("skip_acs")
        A("s_cmp_lg_u32 s51, 1")
        A(f"s_cbranch_scc1 {Lskip}")
        A("s_lshl_b32 s34, s50, 1")
        A(f"s_add_u32 s34, s34, {AC:#x}")
        A("v_lshrrev_b32 v162, 1, v0")
        A("v_mul_u32_u24 v162, 3584, v162")
        A("v_and_b32 v163, 1, v0")
        A("v_lshlrev_b32 v163, 4, v163")
        A("v_add3_u32 v162, v162, v163, s34")
        A("s_mov_b64 exec, 0xf")
        A("global_store_dwordx4 v162, v[16:19], s[26:27] sc1")
        A("s_mov_b64 exec, -1")
        g.label(Lskip)

    def nonce_loop(first_loaded):
        L = g.newlabel("nn")
        Ld = g.newlabel("nn_done")
        A(f"s_mov_b32 s46, {SPIN}")
        if first_loaded:
            A("s_waitcnt vmcnt(0)")
            A("v_readfirstlane_b32 s47, v5")
            A("s_cmp_lg_u32 s47, 0")
            A(f"s_cbranch_scc1 {Ld}")
        g.label(L)
        A("global_load_dword v5, v6, s[24:25] sc1")
        A("s_waitcnt vmcnt(0)")
        A("v_readfirstlane_b32 s47, v5")
        A("s_cmp_lg_u32 s47, 0")
        A(f"s_cbranch_scc1 {Ld}")
        if SLP:
            A(f"s_sleep {SLP}")
        A("s_sub_u32 s46, s46, 1")
        A("s_cmp_lg_u32 s46, 0")
        A(f"s_cbranch_scc1 {L}")
        g.label(Ld)

    Lnp = g.newlabel("noprod")
    Lnp2 = g.newlabel("front_done")
    A("s_cmp_ge_u32 s2, 128")
    A(f"s_cbranch_scc1 {Lnp}")
    A("global_load_dwordx4 v[4:7], v1, s[4:5]")
    A("global_load_dwordx4 v[8:11], v1, s[4:5] offset:1024")
    A("s_lshl_b32 s33, s37, 20")
    A("s_lshl_b32 s34, s36, 8")
    A("s_add_u32 s33, s33, s34")
    A("v_lshlrev_b32 v12, 13, v2")
    A("v_lshlrev_b32 v13, 4, v3")
    A("v_add3_u32 v12, v12, v13, s33")
    for i in range(32):
        if i:
            A("v_add_u32 v12, 0x8000, v12")
        A(f"global_load_dwordx4 {v(WQR+4*i,4)}, v12, s[10:11] nt")
    if b0 == 1:
        A("s_barrier")
    A("s_waitcnt vmcnt(32)")
    stamp(g, 13, stamps)
    A(f"ds_write_b128 v1, v[4:7] offset:{XL}")
    A(f"ds_write_b128 v1, v[8:11] offset:{XL+1024}")
    unpack8(g, 144, 4)
    unpack8(g, 152, 8)
    layernorm2(g, 144, 4, [12, 13, 14, 15] + list(range(160, 168)))
    A(f"ds_write_b128 v1, {v(4,4)} offset:{XN}")
    A(f"ds_write_b128 v1, {v(8,4)} offset:{XN+1024}")
    A("v_bfe_u32 v160, v0, 3, 1")
    A("v_lshlrev_b32 v160, 10, v160")
    A("v_lshlrev_b32 v161, 1, v2")
    A("s_lshl_b32 s33, s37, 8")
    A("v_add3_u32 v160, v160, v161, s33")
    A("s_waitcnt lgkmcnt(0)")
    A("v_and_b32 v5, 7, v0")
    A("v_mov_b32 v6, 0xffff")
    A("v_mov_b32 v7, 0xffff0000")
    for d in range(4):
        A(f"v_mov_b32 {v(8+d)}, 0")
        A(f"v_cmp_eq_u32 vcc, {2*d}, v5")
        A("s_nop 1")
        A(f"v_cndmask_b32 {v(8+d)}, {v(8+d)}, v6, vcc")
        A(f"v_cmp_eq_u32 vcc, {2*d+1}, v5")
        A("s_nop 1")
        A(f"v_cndmask_b32 {v(8+d)}, {v(8+d)}, v7, vcc")
    A("v_mov_b32 v6, 0")
    A("global_load_dword v5, v6, s[24:25] sc1")
    QD = 12
    for half in range(2):
        for i in range(16):
            A(f"ds_read_u16 {v(144+i)}, v160 offset:{XN+8*(16*half+i)}")
        A("s_waitcnt lgkmcnt(0)")
        if half == 0:
            A("s_waitcnt vmcnt(17)")
            if b0 == 2:
                A("s_barrier")
        else:
            A("s_waitcnt vmcnt(1)")
            if b0 == 3:
                A("s_barrier")
        stamp(g, 14 + half, stamps)
        for i in range(16):
            ii = 16 * half + i
            Bq = 160 + 4 * (i % 2)
            A(f"v_lshl_or_b32 {v(144+i)}, {v(144+i)}, 16, {v(144+i)}")
            for d in range(4):
                A(f"v_and_b32 {v(Bq+d)}, {v(144+i)}, {v(8+d)}")
            A("s_nop 1")
            c = "0" if ii == 0 else v(QD, 4)
            A(f"v_mfma_f32_16x16x32_bf16 {v(QD,4)}, {v(WQR+4*ii,4)}, {v(Bq,4)}, {c}")
        if half == 0:
            A("v_bfe_u32 v160, v0, 3, 1")
            A("v_lshlrev_b32 v160, 10, v160")
            A("v_lshlrev_b32 v161, 1, v2")
            A("v_add3_u32 v160, v160, v161, s33")
    stamp(g, 16, stamps)
    nonce_loop(True)
    stamp(g, 1, stamps)
    A("s_lshl_b32 s33, s37, 5")
    A("s_add_u32 s33, s33, s36")
    A("s_lshl_b32 s33, s33, 11")
    A("v_add_u32 v160, s33, v1")
    A(f"v_mov_b32 v20, {v(QD+3)}")
    A("v_mov_b32 v21, s47")
    A("v_mov_b32 v22, s47")
    A("v_mov_b32 v23, s47")
    A(f"v_mov_b32 {v(QD+3)}, s47")
    A(f"global_store_dwordx4 v160, {v(QD,4)}, s[26:27] offset:{QP} sc1")
    A(f"global_store_dwordx4 v160, v[20:23], s[26:27] offset:{QP+1024} sc1")
    if b0 == 4:
        A("s_barrier")
    fills()
    A(f"s_branch {Lnp2}")
    g.label(Lnp)
    if b0:
        A("s_barrier")
    A("global_load_dwordx4 v[8:11], v1, s[4:5]")
    A("global_load_dwordx4 v[12:15], v1, s[4:5] offset:1024")
    fills()
    A("v_mov_b32 v6, 0")
    nonce_loop(False)
    stamp(g, 1, stamps)
    A(f"ds_write_b128 v1, v[8:11] offset:{XL}")
    A(f"ds_write_b128 v1, v[12:15] offset:{XL+1024}")
    g.label(Lnp2)
    A("v_bfe_u32 v4, v0, 2, 2")
    A("v_and_b32 v5, 3, v0")
    A("v_lshlrev_b32 v4, 16, v4")
    A("v_lshlrev_b32 v5, 11, v5")
    A("s_lshl_b32 s33, s29, 13")
    A("v_add3_u32 v4, v4, v5, s33")
    poll_pipe(g, lambda r: f"global_load_dword {v(r)}, v4, s[26:27] offset:{QP+2044} sc1", 1, 100, 3, [0], 16, "ql", anyok=bool(qany))
    A("v_lshrrev_b32 v4, 5, v0")
    A("v_bfe_u32 v5, v0, 3, 2")
    A("v_and_b32 v6, 7, v0")
    A("s_lshl_b32 s34, s30, 7")
    A("s_add_u32 s33, s33, s34")
    A("v_lshlrev_b32 v7, 11, v4")
    A("v_lshlrev_b32 v8, 8, v5")
    A("v_lshlrev_b32 v9, 4, v6")
    A("v_add3_u32 v7, v7, v8, v9")
    A("v_add_u32 v7, s33, v7")
    for k in range(1, 8):
        A(f"v_add_u32 {v(7+k)}, {4096*(k%2) + 65536*(k//2)}, v7")
    loads = []
    for ks in range(4):
        for hp in range(2):
            for gr in range(2):
                loads.append(f"global_load_dwordx4 {v(24+16*ks+8*hp+4*gr,4)}, {v(7+2*ks+hp)}, s[26:27] offset:{QP+1024*gr} sc1")
    poll_tag(g, loads, [24 + 4 * k + 3 for k in range(16)], 16, "qg")
    stamp(g, 2, stamps)
    for ks in range(4):
        for hp in range(2):
            A(f"v_mov_b32 {v(24+16*ks+8*hp+3)}, {v(24+16*ks+8*hp+4)}")
    for ks in range(1, 4):
        for hp in range(2):
            for i in range(4):
                A(f"v_add_f32 {v(24+8*hp+i)}, {v(24+8*hp+i)}, {v(24+16*ks+8*hp+i)}")
    A("v_lshlrev_b32 v7, 8, v4")
    A("v_lshlrev_b32 v8, 6, v5")
    A("v_lshlrev_b32 v9, 1, v6")
    A("v_add3_u32 v7, v7, v8, v9")
    for hp in range(2):
        for r in range(4):
            A(f"v_cvt_pk_bf16_f32 {v(16+4*hp+r)}, {v(24+8*hp+r)}, {v(24+8*hp+r)}")
            A(f"ds_write_b16 v7, {v(16+4*hp+r)} offset:{QL+512*hp+16*r}")
    A("s_waitcnt lgkmcnt(0)")
    A("v_mov_b32 v164, 0")
    A("v_mov_b32 v165, 1")
    A(f"ds_write_b32 v164, v165 offset:{FLG}")
    stamp(g, 3, stamps)
    if bare == 2:
        A(f"ds_write_b32 v164, v165 offset:{FLG+8}")
        A("s_branch L_end")
    A("v_and_b32 v4, 31, v0")
    A("v_lshlrev_b32 v4, 3, v4")
    A("s_lshl_b32 s33, s32, 10")
    A("s_lshl_b32 s34, s31, 6")
    A(f"s_add_u32 s33, s33, {ST:#x}")
    A("s_add_u32 s34, s34, s33")
    A("v_add_u32 v6, s34, v1")
    A("v_add_u32 v7, s33, v1")
    A("s_lshl_b32 s33, s2, 2")
    A(f"s_add_u32 s33, s33, {FL:#x}")
    A("v_mov_b32 v8, s33")
    A("v_mov_b32 v9, s47")
    L = g.newlabel("wc")
    Ld = g.newlabel("wc_done")
    A(f"s_mov_b32 s46, {SPIN*16}")
    g.label(L)
    A(f"ds_read_b32 v166, v164 offset:{FLG+4}")
    A("s_waitcnt lgkmcnt(0)")
    A("v_readfirstlane_b32 s48, v166")
    A("s_cmp_eq_u32 s48, 512")
    A(f"s_cbranch_scc1 {Ld}")
    A("s_sub_u32 s46, s46, 1")
    A("s_cmp_lg_u32 s46, 0")
    A(f"s_cbranch_scc1 {L}")
    g.label(Ld)
    stamp(g, 4, stamps)
    A(f"ds_read_b64 v[12:13], v4 offset:{WST}")
    A("s_waitcnt lgkmcnt(0)")
    A("v_mov_b32 v14, v12")

    def red_s4(reg, tmp, op, full):
        dpp_steps(g, [reg], op, ["row_ror:4", "row_ror:8"])
        swap_reduce(g, [reg], [tmp], op, (16, 32) if full else (16,))

    red_s4(14, 15, "v_max_f32", False)
    A("v_sub_f32 v12, v12, v14")
    A("v_mul_f32 v12, s44, v12")
    A("v_exp_f32 v12, v12")
    A("s_nop 0")
    A("v_mul_f32 v13, v13, v12")
    red_s4(13, 15, "v_add_f32", False)
    A("v_mov_b32 v12, v14")
    A("v_mov_b32 v14, s47")
    A("v_mov_b32 v15, s47")
    A("s_mov_b64 exec, 0xf")
    A("global_store_dwordx4 v6, v[12:15], s[26:27] sc1")
    A("s_mov_b64 exec, 0x1")
    A("global_store_dword v8, v9, s[26:27] sc1")
    A("s_mov_b64 exec, -1")
    poll_pipe(g, lambda r: f"global_load_dwordx4 {v(r,4)}, v7, s[26:27] sc1", 4, 100, 3, [3], 16, "st", dst=12)
    stamp(g, 5, stamps)
    A("v_mov_b32 v14, v12")
    red_s4(14, 15, "v_max_f32", True)
    A("v_sub_f32 v12, v12, v14")
    A("v_mul_f32 v12, s44, v12")
    A("v_exp_f32 v12, v12")
    A("s_nop 0")
    A("v_mul_f32 v13, v13, v12")
    red_s4(13, 15, "v_add_f32", True)
    A("v_rcp_f32 v15, v13")
    A("s_nop 0")
    A("v_fma_f32 v12, -v13, v15, 1.0")
    A("v_fmac_f32 v15, v12, v15")
    A("v_mov_b32 v12, v14")
    A("v_mov_b32 v13, v15")
    A("v_and_b32 v4, 3, v0")
    A("v_lshlrev_b32 v4, 3, v4")
    A(f"ds_write_b64 v4, v[12:13] offset:{GST}")
    A("s_waitcnt lgkmcnt(0)")
    A(f"ds_write_b32 v164, v165 offset:{FLG+8}")
    stamp(g, 6, stamps)
    if bare == 3:
        A("s_branch L_end")
    Lnof = g.newlabel("nofl")
    A("s_cmp_eq_u32 s51, 0")
    A(f"s_cbranch_scc1 {Lnof}")
    A(f"v_add_u32 v6, {FL:#x}, v1")
    poll_pipe(g, lambda r: f"global_load_dwordx4 {v(r,4)}, v6, s[26:27] sc1", 4, 100, 1, [0, 1, 2, 3], 16, "fl")
    g.label(Lnof)
    A("s_lshl_b32 s33, s32, 15")
    A("s_lshl_b32 s34, s31, 11")
    A("s_add_u32 s33, s33, s34")
    A(f"s_add_u32 s33, s33, {OP:#x}")
    A("v_add_u32 v6, s33, v1")
    A("s_lshl_b32 s33, s32, 8")
    A(f"s_add_u32 s33, s33, {F1:#x}")
    A("s_lshl_b32 s34, s31, 2")
    A("s_add_u32 s34, s34, s33")
    A("v_mov_b32 v8, s34")
    A("v_lshlrev_b32 v7, 2, v3")
    A("v_add_u32 v7, s33, v7")
    A("v_mov_b32 v9, s47")
    A("s_barrier")
    stamp(g, 7, stamps)
    for c in range(2):
        for w in range(8):
            A(f"ds_read_b128 {v(16+32*c+4*w,4)}, v1 offset:{RED+2048*w+1024*c}")
    for c in range(2):
        A(f"s_waitcnt lgkmcnt({8*(1-c)})")
        b = 16 + 32 * c
        for i in range(4):
            A(f"v_add_f32 {v(b+i)}, {v(b+i)}, {v(b+4+i)}")
            A(f"v_add_f32 {v(b+8+i)}, {v(b+8+i)}, {v(b+12+i)}")
            A(f"v_add_f32 {v(b+16+i)}, {v(b+16+i)}, {v(b+20+i)}")
            A(f"v_add_f32 {v(b+24+i)}, {v(b+24+i)}, {v(b+28+i)}")
        for i in range(4):
            A(f"v_add_f32 {v(b+i)}, {v(b+i)}, {v(b+8+i)}")
            A(f"v_add_f32 {v(b+16+i)}, {v(b+16+i)}, {v(b+24+i)}")
        for i in range(4):
            A(f"v_add_f32 {v(b+i)}, {v(b+i)}, {v(b+16+i)}")
            A(f"v_min_u32 {v(b+i)}, 0xfffffffe, {v(b+i)}")
        A(f"global_store_dwordx4 v6, {v(b,4)}, s[26:27] offset:{1024*c} sc1")
    A("s_mov_b64 exec, 0x1")
    A("global_store_dword v8, v9, s[26:27] sc1")
    A("s_mov_b64 exec, -1")
    poll_pipe(g, lambda r: f"global_load_dword {v(r)}, v7, s[26:27] sc1", 1, 100, 3, [0], 16, "f1")
    stamp(g, 8, stamps)
    A("s_barrier")
    A("v_and_b32 v4, 31, v0")
    A("v_lshlrev_b32 v4, 2, v4")
    A("v_add_u32 v6, s38, v4")
    A("s_barrier")
    stamp(g, 9, stamps)
    for w in range(8):
        A(f"ds_read_b32 {v(16+w)}, v4 offset:{R2+128*w}")
    A("s_waitcnt lgkmcnt(0)")
    for w in range(0, 8, 2):
        A(f"v_add_f32 {v(16+w)}, {v(16+w)}, {v(17+w)}")
    A("v_add_f32 v16, v16, v18")
    A("v_add_f32 v20, v20, v22")
    A("v_add_f32 v16, v16, v20")
    A("v_min_u32 v16, 0xfffffffe, v16")
    A("s_mov_b32 exec_hi, 0")
    A("global_store_dword v6, v16, s[26:27] sc1")
    A("s_mov_b64 exec, -1")
    A("s_cmp_eq_u32 s51, 0")
    A("s_cbranch_scc1 L_end")
    A("s_cmp_eq_u32 s51, 2")
    A("s_cbranch_scc1 L_cdown")
    A("v_bfe_u32 v4, v0, 4, 1")
    A("v_and_b32 v5, 15, v0")
    A("v_lshlrev_b32 v10, 6, v4")
    A("v_lshlrev_b32 v11, 2, v5")
    A("v_add_u32 v10, v10, v11")
    A("s_lshl_b32 s33, s50, 1")
    A(f"s_add_u32 s33, s33, {AC:#x}")
    A("v_mul_u32_u24 v6, 3584, v4")
    A("v_lshlrev_b32 v11, 1, v5")
    A("v_add3_u32 v6, v6, v11, s33")
    A("s_mov_b32 s39, 0x200")
    A("s_mov_b32 s52, 0x55555555")
    A("s_mov_b32 s53, 0")
    A("s_barrier")
    A("s_barrier")
    stamp(g, 11, stamps)
    for w in range(8):
        A(f"ds_read_b32 {v(16+w)}, v10 offset:{R4+256*w}")
        A(f"ds_read_b32 {v(24+w)}, v10 offset:{R4+256*w+128}")
    A("s_waitcnt lgkmcnt(0)")
    for base in (16, 24):
        for w in range(0, 8, 2):
            A(f"v_add_f32 {v(base+w)}, {v(base+w)}, {v(base+w+1)}")
        A(f"v_add_f32 {v(base)}, {v(base)}, {v(base+2)}")
        A(f"v_add_f32 {v(base+4)}, {v(base+4)}, {v(base+6)}")
        A(f"v_add_f32 {v(base)}, {v(base)}, {v(base+4)}")
    A("v_cvt_pk_bf16_f32 v18, v16, v24")
    A("v_lshlrev_b32 v16, 16, v18")
    A("v_and_b32 v24, 0xffff0000, v18")
    A("v_mul_f32 v18, s44, v16")
    A("v_exp_f32 v18, -v18")
    A("s_nop 0")
    A("v_add_f32 v18, 1.0, v18")
    A("v_rcp_f32 v20, v18")
    A("s_nop 0")
    A("v_mul_f32 v22, v16, v20")
    A("v_mov_b32 v21, v22")
    A("v_fma_f32 v23, -v22, v18, v16")
    A("v_fmac_f32 v22, v23, v20")
    A("v_cmp_class_f32 vcc, v18, s39")
    A("s_nop 1")
    A("v_cndmask_b32 v22, v22, v21, vcc")
    bf16r(g, 22, 22, 18)
    A("v_mul_f32 v22, v22, v24")
    A("v_cvt_pk_bf16_f32 v18, v22, v22")
    A("v_and_b32 v18, 0xffff, v18")
    A("s_nop 1")
    A(f"v_mov_b32_dpp v19, v18 quad_perm:[1,0,3,2] {DPP}")
    A("v_lshl_or_b32 v18, v19, 16, v18")
    A("v_min_u32 v18, 0xfffffffe, v18")
    A("s_mov_b64 exec, s[52:53]")
    A("global_store_dword v6, v18, s[26:27] sc1")
    A("s_mov_b64 exec, -1")
    A("s_branch L_end")
    g.label("L_cdown")
    A("v_lshrrev_b32 v4, 3, v0")
    A("v_bfe_u32 v5, v0, 2, 1")
    A("v_and_b32 v7, 3, v0")
    A("v_lshlrev_b32 v8, 12, v4")
    A("v_lshlrev_b32 v10, 11, v5")
    A("v_lshlrev_b32 v11, 4, v7")
    A("v_add3_u32 v8, v8, v10, v11")
    A("s_lshl_b32 s33, s50, 2")
    A(f"s_add_u32 s33, s33, {YP:#x}")
    A("v_add_u32 v8, s33, v8")
    A("v_lshlrev_b32 v10, 10, v5")
    A("v_lshlrev_b32 v11, 3, v7")
    A("s_lshl_b32 s33, s50, 1")
    A("v_add3_u32 v10, v10, v11, s33")
    A(f"ds_read_b64 v[40:41], v10 offset:{XL}")
    A("v_lshlrev_b32 v11, 6, v5")
    A("v_lshlrev_b32 v12, 4, v7")
    A("v_add_u32 v11, v11, v12")
    poll_loop(g, ["global_load_dwordx4 v[16:19], v8, s[26:27] sc1"], [16, 17, 18, 19], 12, "hy", slp=True)
    dpp_steps(g, [16, 17, 18, 19], "v_add_f32", ["row_ror:8"])
    swap_reduce(g, [16, 17, 18, 19], [20, 21, 22, 23], "v_add_f32", (16, 32))
    A("s_waitcnt lgkmcnt(0)")
    A("v_lshlrev_b32 v36, 16, v40")
    A("v_and_b32 v37, 0xffff0000, v40")
    A("v_lshlrev_b32 v38, 16, v41")
    A("v_and_b32 v39, 0xffff0000, v41")
    for i in (0, 2):
        A(f"v_cvt_pk_bf16_f32 v20, {v(16+i)}, {v(17+i)}")
        A(f"v_lshlrev_b32 {v(16+i)}, 16, v20")
        A(f"v_and_b32 {v(17+i)}, 0xffff0000, v20")
        A(f"v_add_f32 {v(16+i)}, {v(16+i)}, {v(36+i)}")
        A(f"v_add_f32 {v(17+i)}, {v(17+i)}, {v(37+i)}")
        A(f"v_cvt_pk_bf16_f32 v20, {v(16+i)}, {v(17+i)}")
        A(f"v_lshlrev_b32 {v(36+i)}, 16, v20")
        A(f"v_and_b32 {v(37+i)}, 0xffff0000, v20")
    A("s_barrier")
    stamp(g, 17, stamps)
    for w in range(8):
        A(f"ds_read_b128 {v(48+4*w,4)}, v11 offset:{R5+128*w}")
    A("s_waitcnt lgkmcnt(0)")
    for i in range(4):
        for w in range(0, 8, 2):
            A(f"v_add_f32 {v(48+4*w+i)}, {v(48+4*w+i)}, {v(52+4*w+i)}")
        A(f"v_add_f32 {v(48+i)}, {v(48+i)}, {v(56+i)}")
        A(f"v_add_f32 {v(64+i)}, {v(64+i)}, {v(72+i)}")
        A(f"v_add_f32 {v(48+i)}, {v(48+i)}, {v(64+i)}")
    for i in (0, 2):
        A(f"v_cvt_pk_bf16_f32 v20, {v(48+i)}, {v(49+i)}")
        A(f"v_lshlrev_b32 {v(48+i)}, 16, v20")
        A(f"v_and_b32 {v(49+i)}, 0xffff0000, v20")
        A(f"v_add_f32 {v(48+i)}, {v(48+i)}, {v(36+i)}")
        A(f"v_add_f32 {v(49+i)}, {v(49+i)}, {v(37+i)}")
        A(f"v_cvt_pk_bf16_f32 {v(16+i//2)}, {v(48+i)}, {v(49+i)}")
    A("s_mov_b64 exec, 0xff")
    A("global_store_dwordx2 v10, v[16:17], s[22:23]")
    A("s_mov_b64 exec, -1")
    g.label("L_end")
    if stamps:
        A("s_waitcnt vmcnt(0)")
        stamp(g, 31, True)
        A("v_mov_b32 v166, s62")
        for i in range(32):
            A(f"v_mov_b32 v167, s{64+i}")
            A(f"global_store_dword v166, v167, s[26:27] offset:{4*i}")
    g.label("L_end2")
    A("s_endpgm")

    tail = []
    tail.append('.section .rodata,"a"')
    tail.append(".p2align 6")
    tail.append(f".amdhsa_kernel {NAME}_kernel")
    tail.append("  .amdhsa_next_free_vgpr 168")
    tail.append("  .amdhsa_next_free_sgpr 102")
    tail.append("  .amdhsa_accum_offset 168")
    tail.append("  .amdhsa_group_segment_fixed_size 0")
    tail.append("  .amdhsa_kernarg_size 96")
    tail.append("  .amdhsa_user_sgpr_count 2")
    tail.append("  .amdhsa_user_sgpr_kernarg_segment_ptr 1")
    tail.append("  .amdhsa_system_sgpr_workgroup_id_x 1")
    tail.append(".end_amdhsa_kernel")
    return "\n".join(hdr + g.L + tail) + "\n"


if __name__ == "__main__":
    import argparse
    ap = argparse.ArgumentParser()
    ap.add_argument("-o", default="k.s")
    ap.add_argument("--depth", type=int, default=3)
    ap.add_argument("--n1", type=int, default=3)
    ap.add_argument("--n2", type=int, default=10)
    ap.add_argument("--wnt", type=int, default=1)
    ap.add_argument("--stamps", type=int, default=0)
    ap.add_argument("--b0", type=int, default=1)
    ap.add_argument("--rp", type=int, default=1)
    ap.add_argument("--qany", type=int, default=1)
    ap.add_argument("--rpos", type=int, default=0)
    ap.add_argument("--now", type=int, default=0)
    ap.add_argument("--bare", type=int, default=0)
    ap.add_argument("--rpg", type=int, default=1)
    ap.add_argument("--rpd", type=int, default=1)
    ap.add_argument("--gnt", type=int, default=0)
    ap.add_argument("--wpos", type=int, default=0)
    ap.add_argument("--dsw", type=int, default=99)
    ap.add_argument("--mp", type=int, default=0)
    ap.add_argument("--tpos", type=int, default=0)
    ap.add_argument("--depth2", type=int, default=3)
    ap.add_argument("--pk", type=int, default=3)
    ap.add_argument("--slp", type=int, default=0)
    ap.add_argument("--slp2", type=int, default=0)
    a = ap.parse_args()
    PK = a.pk
    SLP = a.slp
    SLP2 = a.slp2
    open(a.o, "w").write(gen(a.depth, a.n1, a.n2, bool(a.wnt), bool(a.stamps), a.b0, a.rp, a.qany, a.rpos, a.now, a.bare, a.rpg, a.rpd, a.gnt, a.wpos, a.dsw, a.depth2, a.mp, a.tpos))
```

```python
import sys

NAME = "sequential_preLN__gqa_block_cached__swiglu_ffn__decode"

QP = 0x00000
ST = 0x40000
OP = 0x80000
YP = 0x100000
AC = 0x110000
FL = 0x120000
F1 = 0x121000
F2 = 0x122000
F3 = 0x123000
TS = 0x200000
GT = 0x300000
DT = 0x700000

XL = 0
XN = XL + 2048
QL = XN + 2048
WST = QL + 1024
GST = WST + 256
FLG = GST + 128
RED = GST + 256
AO = RED + 16384
R2 = AO + 1024
LS = R2 + 1024
HN = LS + 256
R4 = HN + 2048
R5 = R4
WO_L = 32768
assert R4 + 4096 <= WO_L
GU_L = WO_L + 32768
WD_L = GU_L
LDS_TOTAL = GU_L + 65536

LOG2E = 0x3FB8AA3B
SCALE = 0x3DB504F3
EPS = 0x3727C5AC
INV512 = 0x3B000000
SPIN = 20000
PK = 3
SLP = 0
SLP2 = 0


class G:
    def __init__(self):
        self.L = []
        self.nlab = 0

    def __call__(self, s):
        self.L.append("  " + s)

    def label(self, name):
        self.L.append(name + ":")

    def newlabel(self, base):
        self.nlab += 1
        return f"L_{base}_{self.nlab}"


def v(i, n=1):
    return f"v{i}" if n == 1 else f"v[{i}:{i+n-1}]"


DPP = "row_mask:0xf bank_mask:0xf"


def bf16r(g, dst, src, tmp):
    g(f"v_cvt_pk_bf16_f32 {v(tmp)}, {v(src)}, {v(src)}")
    g(f"v_lshlrev_b32 {v(dst)}, 16, {v(tmp)}")


def dpp_steps(g, regs, op, steps):
    for st in steps:
        if len(regs) < 3:
            g("s_nop 1")
        for r in regs:
            g(f"{op}_dpp {v(r)}, {v(r)}, {v(r)} {st} {DPP}")


def swap_reduce(g, regs, tmps, op, which):
    for sw in which:
        ins = {16: "v_permlane16_swap_b32", 32: "v_permlane32_swap_b32"}[sw]
        for r, t in zip(regs, tmps):
            g(f"v_mov_b32 {v(t)}, {v(r)}")
        g("s_nop 1")
        for r, t in zip(regs, tmps):
            g(f"{ins} {v(r)}, {v(t)}")
        for r, t in zip(regs, tmps):
            g(f"{op} {v(r)}, {v(r)}, {v(t)}")


def wave_reduce(g, regs, tmps, op):
    dpp_steps(g, regs, op, ["quad_perm:[1,0,3,2]", "quad_perm:[2,3,0,1]", "row_ror:4", "row_ror:8"])
    swap_reduce(g, regs, tmps, op, (16, 32))


def unpack8(g, dst, src):
    for i in range(4):
        g(f"v_lshlrev_b32 {v(dst+2*i)}, 16, {v(src+i)}")
        g(f"v_and_b32 {v(dst+2*i+1)}, 0xffff0000, {v(src+i)}")


def ln_finish_pair(g, f0, f1, mean_b, den, rc, D, out):
    g(f"v_sub_f32 {v(D[0])}, {v(f0)}, {v(mean_b)}")
    g(f"v_sub_f32 {v(D[1])}, {v(f1)}, {v(mean_b)}")
    g(f"v_cvt_pk_bf16_f32 {v(D[2])}, {v(D[0])}, {v(D[1])}")
    g(f"v_lshlrev_b32 {v(D[0])}, 16, {v(D[2])}")
    g(f"v_and_b32 {v(D[1])}, 0xffff0000, {v(D[2])}")
    g(f"v_mul_f32 {v(D[2])}, {v(D[0])}, {v(rc)}")
    g(f"v_mul_f32 {v(D[3])}, {v(D[1])}, {v(rc)}")
    g(f"v_fma_f32 {v(D[4])}, -{v(D[2])}, {v(den)}, {v(D[0])}")
    g(f"v_fma_f32 {v(D[5])}, -{v(D[3])}, {v(den)}, {v(D[1])}")
    g(f"v_fmac_f32 {v(D[2])}, {v(D[4])}, {v(rc)}")
    g(f"v_fmac_f32 {v(D[3])}, {v(D[5])}, {v(rc)}")
    g(f"v_cvt_pk_bf16_f32 {v(out)}, {v(D[2])}, {v(D[3])}")


def ln_scalars(g, mean, var, rc, t):
    bf16r(g, var, var, t)
    g(f"v_add_f32 {v(var)}, {EPS:#x}, {v(var)}")
    bf16r(g, var, var, t)
    g(f"v_sqrt_f32 {v(var)}, {v(var)}")
    bf16r(g, mean, mean, t)
    bf16r(g, var, var, t)
    g(f"v_rcp_f32 {v(rc)}, {v(var)}")
    g("s_nop 0")


def layernorm2(g, F, OUTP, T):
    s0, s1, q0, q1, r0, r1 = T[:6]
    D = T[6:12]
    t0, t1 = D[0], D[1]
    for b, s in ((0, s0), (1, s1)):
        f = F + 8 * b
        g(f"v_add_f32 {v(s)}, {v(f)}, {v(f+1)}")
        for i in range(2, 8):
            g(f"v_add_f32 {v(s)}, {v(s)}, {v(f+i)}")
    wave_reduce(g, [s0, s1], [t0, t1], "v_add_f32")
    g(f"v_mul_f32 {v(s0)}, {INV512:#x}, {v(s0)}")
    g(f"v_mul_f32 {v(s1)}, {INV512:#x}, {v(s1)}")
    for b, s, q in ((0, s0, q0), (1, s1, q1)):
        f = F + 8 * b
        for i in range(8):
            d = D[i % 4]
            g(f"v_sub_f32 {v(d)}, {v(f+i)}, {v(s)}")
            if i == 0:
                g(f"v_mul_f32 {v(q)}, {v(d)}, {v(d)}")
            else:
                g(f"v_fmac_f32 {v(q)}, {v(d)}, {v(d)}")
    wave_reduce(g, [q0, q1], [t0, t1], "v_add_f32")
    for s, q, r in ((s0, q0, r0), (s1, q1, r1)):
        g(f"v_mul_f32 {v(q)}, {INV512:#x}, {v(q)}")
        ln_scalars(g, s, q, r, t0)
    for b, s, q, r in ((0, s0, q0, r0), (1, s1, q1, r1)):
        f = F + 8 * b
        for i in range(0, 8, 2):
            ln_finish_pair(g, f + i, f + i + 1, s, q, r, D, OUTP + 4 * b + i // 2)


def poll_loop(g, loads, regs, tmp, name, slp=False):
    L = g.newlabel(name)
    Ld = g.newlabel(name + "_done")
    g(f"s_mov_b32 s46, {SPIN}")
    g.label(L)
    for l in loads:
        g(l)
    g("s_waitcnt vmcnt(0)")
    rs = list(regs)
    g(f"v_max_u32 {v(tmp)}, {v(rs[0])}, {v(rs[1])}")
    rest = rs[2:]
    while len(rest) >= 2:
        g(f"v_max3_u32 {v(tmp)}, {v(tmp)}, {v(rest[0])}, {v(rest[1])}")
        rest = rest[2:]
    if rest:
        g(f"v_max_u32 {v(tmp)}, {v(tmp)}, {v(rest[0])}")
    g(f"v_cmp_eq_u32 vcc, -1, {v(tmp)}")
    g(f"s_cbranch_vccz {Ld}")
    if slp and SLP2:
        g(f"s_sleep {SLP2}")
    g("s_sub_u32 s46, s46, 1")
    g("s_cmp_lg_u32 s46, 0")
    g(f"s_cbranch_scc1 {L}")
    g.label(Ld)


def poll_tag(g, loads, regs, tmp, name):
    L = g.newlabel(name)
    Ld = g.newlabel(name + "_done")
    g(f"s_mov_b32 s46, {SPIN}")
    g.label(L)
    for l in loads:
        g(l)
    g("s_waitcnt vmcnt(0)")
    rs = list(regs)
    if len(rs) == 1:
        g(f"v_cmp_ne_u32 vcc, s47, {v(rs[0])}")
    else:
        g(f"v_xor_b32 {v(tmp)}, s47, {v(rs[0])}")
        for r in rs[1:]:
            g(f"v_xor_b32 {v(tmp+1)}, s47, {v(r)}")
            g(f"v_or_b32 {v(tmp)}, {v(tmp)}, {v(tmp+1)}")
        g(f"v_cmp_ne_u32 vcc, 0, {v(tmp)}")
    g(f"s_cbranch_vccz {Ld}")
    g("s_sub_u32 s46, s46, 1")
    g("s_cmp_lg_u32 s46, 0")
    g(f"s_cbranch_scc1 {L}")
    g.label(Ld)


def poll_pipe(g, mk_load, nreg, sb, K, chk, tmp, name, dst=None, anyok=False, slp=True):
    K = min(K, PK)
    Ld = g.newlabel(name + "_done")
    L = g.newlabel(name)
    g(f"s_mov_b32 s46, {SPIN}")
    for k in range(K):
        g(mk_load(sb + nreg * k))
    g.label(L)
    outs = []
    for k in range(K):
        r = sb + nreg * k
        g(f"s_waitcnt vmcnt({K-1})")
        if len(chk) == 1:
            g(f"v_cmp_ne_u32 vcc, s47, {v(r+chk[0])}")
        else:
            g(f"v_xor_b32 {v(tmp)}, s47, {v(r+chk[0])}")
            for c in chk[1:]:
                g(f"v_xor_b32 {v(tmp+1)}, s47, {v(r+c)}")
                g(f"v_or_b32 {v(tmp)}, {v(tmp)}, {v(tmp+1)}")
            g(f"v_cmp_ne_u32 vcc, 0, {v(tmp)}")
        Lk = g.newlabel(name + f"_ok{k}")
        outs.append((Lk, r))
        if anyok:
            g("s_cmp_lg_u64 vcc, -1")
            g(f"s_cbranch_scc1 {Lk}")
        else:
            g(f"s_cbranch_vccz {Lk}")
        if SLP and slp:
            g(f"s_sleep {SLP}")
        g(mk_load(r))
    g("s_sub_u32 s46, s46, 1")
    g("s_cmp_lg_u32 s46, 0")
    g(f"s_cbranch_scc1 {L}")
    g(f"s_branch {Ld}")
    for n, (Lk, r) in enumerate(outs):
        g.label(Lk)
        if dst is not None:
            for i in range(nreg):
                g(f"v_mov_b32 {v(dst+i)}, {v(r+i)}")
        if n != len(outs) - 1:
            g(f"s_branch {Ld}")
    g.label(Ld)


def stamp(g, idx, on):
    if not on:
        return
    g("s_memrealtime s[60:61]")
    g("s_waitcnt lgkmcnt(0)")
    g(f"s_mov_b32 s{64+idx}, s60")


def gen(depth=3, n1=3, n2=10, wnt=True, stamps=False, b0=1, rp=1, qany=1, rpos=0, now=0, bare=0, rpg=1, rpd=1, gnt=0, wpos=0, dsw=99, depth2=3, mp=0, tpos=0, pfp=0, tg1=3, td1=2, nb0=0):
    g = G()
    A = g
    hdr = []
    hdr.append(f"; @launch grid=(256,1,1) block=(576,1,1) lds={LDS_TOTAL}")
    hdr.append('.amdgcn_target "amdgcn-amd-amdhsa--gfx950"')
    hdr.append(".text")
    hdr.append(f".globl {NAME}_kernel")
    hdr.append(".p2align 8")
    hdr.append(f".type {NAME}_kernel,@function")
    hdr.append(f"{NAME}_kernel:")
    WNT = " nt" if wnt else ""
    A("s_cmp_ge_u32 s2, 256")
    A("s_cbranch_scc1 L_end2")
    A("s_load_dwordx16 s[4:19], s[0:1], 0")
    A("s_load_dwordx8 s[20:27], s[0:1], 64")
    A("v_lshrrev_b32 v1, 6, v0")
    A("v_and_b32 v0, 63, v0")
    A("s_nop 0")
    A("v_readfirstlane_b32 s28, v1")
    A("s_and_b32 s58, s2, 7")
    if mp == 0:
        A("s_and_b32 s29, s2, 7")
        A("s_bfe_u32 s30, s2, 0x10003")
        A("s_lshr_b32 s31, s2, 4")
        A("s_and_b32 s32, s2, 15")
    else:
        A("s_bfe_u32 s29, s2, 0x30004")
        A("s_lshr_b32 s30, s2, 7")
        A("s_and_b32 s31, s2, 15")
        A("s_lshr_b32 s32, s2, 4")
    A(f"s_mov_b32 s44, {LOG2E:#x}")
    A(f"s_mov_b32 s45, {SCALE:#x}")
    A("s_and_b32 s33, s31, 7")
    A("s_lshl_b32 s33, s33, 1")
    A("s_lshr_b32 s34, s31, 3")
    A("s_or_b32 s59, s33, s34")
    A("s_bfe_u32 s33, s2, 0x20004")
    A("s_lshl_b32 s33, s33, 3")
    A("s_add_u32 s33, s33, s58")
    A("s_bfe_u32 s34, s2, 0x10003")
    A("s_lshl_b32 s50, s33, 6")
    A("s_lshl_b32 s34, s34, 5")
    A("s_add_u32 s50, s50, s34")
    A("s_mov_b32 s51, 0")
    A("s_cmp_lt_u32 s33, 28")
    A("s_cselect_b32 s51, 1, 0")
    A("s_cmp_lt_u32 s2, 64")
    A("s_cselect_b32 s51, s51, 0")
    A("s_bfe_u32 s34, s2, 0x20003")
    A("s_lshl_b32 s34, s34, 4")
    A("s_lshl_b32 s33, s58, 6")
    A("s_add_u32 s33, s33, s34")
    A("s_lshr_b32 s34, s2, 5")
    A("s_cmp_eq_u32 s34, 2")
    A("s_cselect_b32 s51, 2, s51")
    A("s_cselect_b32 s50, s33, s50")
    if stamps:
        A("s_mul_i32 s62, s2, 9")
        A("s_add_u32 s62, s62, s28")
        A("s_lshl_b32 s62, s62, 7")
        A(f"s_add_u32 s62, s62, {TS:#x}")
        for i in range(32):
            A(f"s_mov_b32 s{64+i}, 0")
    A("s_waitcnt lgkmcnt(0)")
    A("s_cmp_eq_u32 s28, 8")
    A("s_cbranch_scc1 L_ctrl")

    vK, vV, vML, vMH, vW = 4, 5, 6, 7, 8
    KR = 16
    VR = 84
    QB = 148
    Z = 152
    O0, O1 = 156, 160
    stamp(g, 0, stamps)
    A("s_lshl_b32 s33, s32, 21")
    A("s_lshl_b32 s34, s31, 17")
    A("s_add_u32 s33, s33, s34")
    A("s_lshl_b32 s34, s28, 14")
    A("s_add_u32 s33, s33, s34")
    A("v_lshrrev_b32 v1, 4, v0")
    A("v_bfe_u32 v2, v0, 2, 2")
    A("v_and_b32 v3, 3, v0")
    A("v_lshlrev_b32 v9, 6, v1")
    A("v_lshlrev_b32 v10, 8, v2")
    A("v_lshlrev_b32 v11, 4, v3")
    A("v_add3_u32 v9, v9, v10, v11")
    A(f"v_add_u32 {v(vK)}, s33, v9")
    A("v_lshlrev_b32 v9, 4, v0")
    A(f"v_add_u32 {v(vV)}, s33, v9")
    A(f"v_mov_b32 {v(vML)}, 0xffff")
    A(f"v_mov_b32 {v(vMH)}, 0xffff0000")

    seq = []

    def issue(name):
        kind, m = name
        dd = depth if len(seq) < dsw else depth2
        if len(seq) >= dd and throttle[0]:
            A(f"s_waitcnt vmcnt({dd-1})")
        if kind == "K":
            if m % 4 == 0 and m > 0:
                A(f"v_add_u32 {v(vK)}, 4096, {v(vK)}")
            r = KR + 4 + 4 * m
            A(f"global_load_dwordx4 {v(r,4)}, {v(vK)}, s[6:7] offset:{(m%4)*1024} nt")
        elif kind == "V":
            if m % 4 == 0 and m > 0:
                A(f"v_add_u32 {v(vV)}, 4096, {v(vV)}")
            r = VR + 4 * m
            A(f"global_load_dwordx4 {v(r,4)}, {v(vV)}, s[8:9] offset:{(m%4)*1024} nt")
        elif kind == "W":
            if m > 0:
                A(f"v_add_u32 {v(vW)}, 16384, {v(vW)}")
            A(f"s_add_u32 m0, s35, {m*1024}")
            A("s_nop 0")
            A(f"global_load_lds_dwordx4 {v(vW)}, s[12:13]{WNT}")
        elif kind == "R":
            if m == 0:
                A("s_min_u32 s33, s28, 6")
                A("s_and_b32 s34, s2, 3")
                A("s_mul_i32 s34, s34, 7")
                A("s_add_u32 s34, s34, s33")
                A("s_lshr_b32 s36, s2, 2")
                A("s_mul_i32 s36, s36, 28672")
                A("s_lshl_b32 s37, s34, 7")
                A("s_add_u32 s36, s36, s37")
                A("v_lshrrev_b32 v9, 3, v0")
                A("v_and_b32 v10, 7, v0")
                A("v_mul_u32_u24 v11, 3584, v10")
                A("v_lshlrev_b32 v9, 4, v9")
                A("v_add3_u32 v11, v11, v9, s36")
                A("s_mul_i32 s34, s2, 7")
                A("s_add_u32 s34, s34, s33")
                A("s_lshr_b32 s36, s34, 3")
                A("s_and_b32 s34, s34, 7")
                A("s_lshl_b32 s36, s36, 13")
                A("s_lshl_b32 s37, s34, 7")
                A("s_add_u32 s36, s36, s37")
                A("v_lshlrev_b32 v10, 10, v10")
                A("v_add3_u32 v10, v10, v9, s36")
                A("s_mul_i32 s36, s28, 3072")
                A(f"s_add_u32 s36, s36, {GU_L}")
            addr = "v11" if m < 2 else "v10"
            base = ("s[16:17]", "s[18:19]", "s[20:21]")[m]
            A(f"s_add_u32 m0, s36, {1024*m}")
            A("s_nop 0")
            A(f"global_load_lds_dwordx4 {addr}, {base} nt")
        seq.append(name)

    def wait_for(name):
        idx = seq.index(name)
        n = len(seq) - 1 - idx
        A(f"s_waitcnt vmcnt({n})")

    throttle = [True]
    RP = VR + 52
    A("s_lshl_b32 s33, s29, 19")
    A("s_lshl_b32 s34, s28, 16")
    A("s_add_u32 s33, s33, s34")
    A("s_lshl_b32 s34, s59, 6")
    A("s_add_u32 s33, s33, s34")
    A("v_lshrrev_b32 v9, 2, v0")
    A("v_lshlrev_b32 v9, 10, v9")
    A("v_lshlrev_b32 v10, 4, v3")
    A(f"v_add3_u32 {v(vW)}, v9, v10, s33")
    A("s_lshl_b32 s35, s28, 12")
    A(f"s_add_u32 s35, s35, {WO_L}")
    A("v_mov_b32 v164, 0")
    A("s_mov_b32 s49, 1")
    A("s_getpc_b64 s[56:57]")
    g.label("L_pc0")
    A("s_add_u32 s56, s56, L_qk-L_pc0")
    A("s_addc_u32 s57, s57, 0")
    if nb0 == 0:
        A("s_barrier")
    GNT = " nt" if gnt else ""

    def tile_gu(lo=0, hi=8):
        A("s_mul_i32 s33, s28, 229376")
        A("s_lshl_b32 s34, s50, 1")
        A("s_add_u32 s33, s33, s34")
        A("v_lshrrev_b32 v9, 2, v0")
        A("v_mul_u32_u24 v9, 3584, v9")
        A("v_lshlrev_b32 v10, 4, v3")
        A("v_add3_u32 v9, v9, v10, s33")
        A("s_lshl_b32 s34, s28, 12")
        A(f"s_add_u32 s34, s34, {GU_L}")
        cur = 0
        for j in range(lo, hi):
            i, mat = j >> 1, j & 1
            if i != cur:
                A(f"v_add_u32 v9, {57344*(i-cur)}, v9")
                cur = i
            A(f"s_add_u32 m0, s34, {32768*mat+1024*i}")
            A("s_nop 0")
            A(f"global_load_lds_dwordx4 v9, {('s[16:17]','s[18:19]')[mat]}{GNT}")

    def tile_dn(lo=0, hi=7):
        A("s_mul_i32 s33, s28, 229376")
        A("s_lshl_b32 s34, s50, 1")
        A("s_add_u32 s33, s33, s34")
        A("v_lshrrev_b32 v9, 1, v0")
        A("v_lshlrev_b32 v9, 10, v9")
        A("v_and_b32 v10, 1, v0")
        A("v_lshlrev_b32 v10, 4, v10")
        A("v_add3_u32 v9, v9, v10, s33")
        A("s_mul_i32 s34, s28, 7168")
        A(f"s_add_u32 s34, s34, {WD_L}")
        cur = 0
        for i in range(lo, hi):
            if i != cur:
                A(f"v_add_u32 v9, {0x8000*(i-cur)}, v9")
                cur = i
            A(f"s_add_u32 m0, s34, {1024*i}")
            A("s_nop 0")
            A(f"global_load_lds_dwordx4 v9, s[20:21]{GNT}")

    def wdma():
        for m in range(4):
            if m > 0:
                A(f"v_add_u32 {v(vW)}, 16384, {v(vW)}")
            A(f"s_add_u32 m0, s35, {m*1024}")
            A("s_nop 0")
            A(f"global_load_lds_dwordx4 {v(vW)}, s[12:13]{WNT}")

    def tiles():
        Lx = g.newlabel("notile")
        Ld2 = g.newlabel("dtile")
        A("s_cmp_eq_u32 s51, 0")
        A(f"s_cbranch_scc1 {Lx}")
        A("s_cmp_eq_u32 s51, 2")
        A(f"s_cbranch_scc1 {Ld2}")
        tile_gu()
        A(f"s_branch {Lx}")
        g.label(Ld2)
        tile_dn()
        g.label(Lx)

    if tpos == 1:
        tiles()

    def check():
        Ls = g.newlabel("nocall")
        A(f"ds_read_b32 v165, v164 offset:{FLG}")
        A("s_waitcnt lgkmcnt(0)")
        A("v_readfirstlane_b32 s48, v165")
        A("s_cmp_eq_u32 s48, s49")
        A(f"s_cbranch_scc0 {Ls}")
        A("s_swappc_b64 s[54:55], s[56:57]")
        g.label(Ls)

    order = []
    order += [("K", m) for m in range(16)]
    order += [("V", m) for m in range(16)]
    k15 = order.index(("K", 15))
    first_check = k15 + depth
    for i, op in enumerate(order):
        if tpos >= 2 and i == tpos:
            tiles()
        issue(op)
        if nb0 and i == nb0 - 1:
            A("s_barrier")
        if i == first_check:
            wait_for(("K", 15))
        if i >= first_check and op[0] != "R":
            check()
    Lw = g.newlabel("now")
    A("s_cmp_eq_u32 s51, 0")
    A(f"s_cbranch_scc1 {Lw}")
    wdma()
    g.label(Lw)
    stamp(g, 1, stamps)
    L = g.newlabel("wq")
    Ld = g.newlabel("wq_done")
    A(f"s_mov_b32 s46, {SPIN*16}")
    g.label(L)
    A("s_cmp_eq_u32 s49, 2")
    A(f"s_cbranch_scc1 {Ld}")
    check()
    A("s_sub_u32 s46, s46, 1")
    A("s_cmp_lg_u32 s46, 0")
    A(f"s_cbranch_scc1 {L}")
    g.label(Ld)
    for i in range(66):
        A(f"v_mov_b32 {v(KR+i)}, 0")
    A("v_lshlrev_b32 v9, 3, v3")
    stamp(g, 5, stamps)
    L = g.newlabel("wg")
    Ld = g.newlabel("wg_done")
    A(f"s_mov_b32 s46, {SPIN*16}")
    g.label(L)
    A(f"ds_read_b32 v165, v164 offset:{FLG+8}")
    A("s_waitcnt lgkmcnt(0)")
    A("v_readfirstlane_b32 s48, v165")
    A("s_cmp_eq_u32 s48, 1")
    A(f"s_cbranch_scc1 {Ld}")
    A("s_sub_u32 s46, s46, 1")
    A("s_cmp_lg_u32 s46, 0")
    A(f"s_cbranch_scc1 {L}")
    g.label(Ld)
    stamp(g, 6, stamps)
    A(f"ds_read_b64 v[12:13], v9 offset:{GST}")
    A("s_waitcnt lgkmcnt(0)")
    for m in range(4):
        A(f"v_sub_f32 {v(Z+m)}, {v(Z+m)}, v12")
        A(f"v_mul_f32 {v(Z+m)}, s44, {v(Z+m)}")
        A(f"v_exp_f32 {v(Z+m)}, {v(Z+m)}")
    A("s_nop 0")
    for m in range(4):
        A(f"v_mul_f32 {v(Z+m)}, {v(Z+m)}, v13")
        A(f"v_cvt_pk_bf16_f32 {v(Z+m)}, {v(Z+m)}, {v(Z+m)}")
    A("s_nop 1")
    for m in range(16):
        beta = m & 3
        k = m >> 2
        for j in range(4):
            rot = (4 * (j - beta)) & 15
            dst = KR + 4 * m + 2 + (j >> 1)
            msk = vMH if (j & 1) else vML
            ctl = f"row_ror:{rot}" if rot else "quad_perm:[0,1,2,3]"
            A(f"v_and_b32_dpp {v(dst)}, {v(Z+k)}, {v(msk)} {ctl} row_mask:0xf bank_mask:{1<<j:#x}")
    stamp(g, 7, stamps)
    A("s_nop 1")
    for m in range(16):
        wait_for(("V", m))
        c0 = "0" if m == 0 else v(O0, 4)
        c1 = "0" if m == 0 else v(O1, 4)
        A(f"v_mfma_f32_16x16x32_bf16 {v(O0,4)}, {v(VR+4*m,4)}, {v(KR+4*m+2,4)}, {c0}")
        A(f"v_mfma_f32_16x16x32_bf16 {v(O1,4)}, {v(VR+4*m,4)}, {v(KR+4*m,4)}, {c1}")
    stamp(g, 8, stamps)
    throttle[0] = False
    if bare:
        A("s_branch L_end")
    A("s_lshl_b32 s33, s28, 11")
    A("v_lshlrev_b32 v9, 5, v0")
    A("v_add_u32 v9, s33, v9")
    A("s_nop 6")
    A(f"ds_write_b128 v9, {v(O0,4)} offset:{RED}")
    A(f"ds_write_b128 v9, {v(O1,4)} offset:{RED+16}")
    A("s_waitcnt lgkmcnt(0)")
    A("s_barrier")
    Lr = g.newlabel("role")
    Lr2 = g.newlabel("role2")
    Lr3 = g.newlabel("role3")
    A("s_cmp_lg_u32 s51, 0")
    A(f"s_cbranch_scc1 {Lr}")
    wdma()
    A(f"s_branch {Lr3}")
    g.label(Lr)
    A("s_cmp_eq_u32 s51, 2")
    A(f"s_cbranch_scc1 {Lr2}")
    tile_gu(0, tg1)
    A(f"s_branch {Lr3}")
    g.label(Lr2)
    tile_dn(0, td1)
    g.label(Lr3)
    A("s_lshl_b32 s36, s32, 15")
    A("s_lshl_b32 s37, s28, 8")
    A("s_add_u32 s36, s36, s37")
    A(f"s_add_u32 s36, s36, {OP:#x}")
    A("v_lshlrev_b32 v9, 11, v1")
    A("v_and_b32 v4, 15, v0")
    A("v_lshlrev_b32 v10, 4, v4")
    A("v_add3_u32 v10, v9, v10, s36")
    for i in range(1, 4):
        A(f"v_add_u32 {v(10+i)}, {8192*i}, v10")
    A("s_lshr_b32 s33, s28, 1")
    A("s_lshl_b32 s33, s33, 11")
    A("s_and_b32 s34, s28, 1")
    A("s_lshl_b32 s34, s34, 7")
    A("s_add_u32 s33, s33, s34")
    A(f"s_add_u32 s33, s33, {WO_L}")
    A("v_lshlrev_b32 v5, 13, v1")
    A("v_lshlrev_b32 v6, 9, v2")
    A("v_lshlrev_b32 v7, 3, v3")
    A("v_add3_u32 v5, v5, v6, v7")
    A("v_add_u32 v5, s33, v5")
    A("s_lshl_b32 s33, s28, 7")
    A("v_lshlrev_b32 v6, 3, v4")
    A("v_add_u32 v6, s33, v6")
    A("v_lshlrev_b32 v7, 4, v1")
    A("v_add_u32 v7, s33, v7")
    A("s_waitcnt vmcnt(0)")
    stamp(g, 9, stamps)
    A("s_barrier")
    BR = 96
    AR = 88
    DR = 112
    for kk in range(2):
        for n in range(2):
            for u in range(2):
                A(f"ds_read_b64_tr_b16 {v(BR+8*kk+4*n+2*u,2)}, v5 offset:{64*kk+256*u+32*n}")
    loads = [f"global_load_dwordx4 {v(16+4*i,4)}, {v(10+i)}, s[26:27] sc1" for i in range(4)]
    poll_loop(g, loads, list(range(16, 32)), 9, "t1")
    stamp(g, 10, stamps)

    for k in range(4):
        A(f"v_add_f32 {v(16+k)}, {v(16+k)}, {v(20+k)}")
        A(f"v_add_f32 {v(24+k)}, {v(24+k)}, {v(28+k)}")
    for k in range(4):
        A(f"v_add_f32 {v(16+k)}, {v(16+k)}, {v(24+k)}")
    swap_reduce(g, [16, 17, 18, 19], [20, 21, 22, 23], "v_add_f32", (16, 32))
    A("v_cvt_pk_bf16_f32 v16, v16, v17")
    A("v_cvt_pk_bf16_f32 v17, v18, v19")
    A(f"ds_write_b64 v6, v[16:17] offset:{AO}")
    for kk in range(2):
        A(f"ds_read_b128 {v(AR+4*kk,4)}, v7 offset:{AO+64*kk}")
    A("s_waitcnt lgkmcnt(0)")
    for n in range(2):
        A(f"v_mfma_f32_16x16x32_bf16 {v(DR+4*n,4)}, {v(AR,4)}, {v(BR+4*n,4)}, 0")
    for n in range(2):
        A(f"v_mfma_f32_16x16x32_bf16 {v(DR+4*n,4)}, {v(AR+4,4)}, {v(BR+8+4*n,4)}, {v(DR+4*n,4)}")
    A("s_lshl_b32 s33, s28, 7")
    A("v_lshlrev_b32 v9, 2, v4")
    A("v_add_u32 v9, s33, v9")
    A("s_nop 6")
    A(f"ds_write_b32 v9, {v(DR)} offset:{R2}")
    A(f"ds_write_b32 v9, {v(DR+4)} offset:{R2+64}")
    A("s_waitcnt lgkmcnt(0)")
    A("s_barrier")
    A("s_cmp_eq_u32 s51, 0")
    A("s_cbranch_scc1 L_end")
    A("s_cmp_eq_u32 s51, 2")
    A("s_cbranch_scc1 L_sdown")
    GNT = " nt" if gnt else ""
    tile_gu(tg1, 8)
    A("s_lshl_b32 s36, s28, 8")
    A(f"s_add_u32 s36, s36, {YP:#x}")
    A("v_lshrrev_b32 v5, 5, v0")
    A("v_and_b32 v6, 1, v1")
    A("v_lshlrev_b32 v9, 11, v5")
    A("v_lshlrev_b32 v10, 12, v6")
    A("v_lshlrev_b32 v11, 4, v4")
    A("v_add3_u32 v10, v9, v10, v11")
    A("v_add_u32 v10, s36, v10")
    for i in range(1, 4):
        A(f"v_add_u32 {v(10+i)}, {8192*i}, v10")
    A("s_lshl_b32 s33, s28, 7")
    A("v_lshlrev_b32 v6, 10, v5")
    A("v_lshlrev_b32 v7, 3, v4")
    A("v_add3_u32 v6, v6, v7, s33")
    A(f"ds_read_b64 v[40:41], v6 offset:{XL}")
    A("v_lshlrev_b32 v7, 10, v5")
    A(f"ds_read_u16 v42, v7 offset:{XL}")
    A("s_lshl_b32 s34, s28, 3")
    A("v_lshlrev_b32 v7, 6, v5")
    A("v_add_u32 v8, s34, v7")
    A("v_and_b32 v9, 7, v0")
    A("v_lshlrev_b32 v9, 3, v9")
    A("v_add_u32 v7, v7, v9")
    A("s_lshl_b32 s34, s28, 8")
    A("v_lshlrev_b32 v14, 7, v5")
    A("v_lshlrev_b32 v15, 3, v4")
    A("v_add3_u32 v14, v14, v15, s34")
    A("v_and_b32 v15, 1, v0")
    A("v_lshlrev_b32 v15, 7, v15")
    A("v_lshlrev_b32 v9, 4, v1")
    A("v_add3_u32 v15, v15, v9, s34")
    A("s_lshl_b32 s33, s28, 12")
    A(f"s_add_u32 s33, s33, {GU_L}")
    A("v_lshlrev_b32 v44, 9, v1")
    A("v_lshlrev_b32 v45, 6, v2")
    A("v_lshlrev_b32 v46, 3, v3")
    A("v_add3_u32 v44, v44, v45, v46")
    A("v_add_u32 v44, s33, v44")
    A("s_waitcnt lgkmcnt(0)")
    A("v_lshlrev_b32 v36, 16, v40")
    A("v_and_b32 v37, 0xffff0000, v40")
    A("v_lshlrev_b32 v38, 16, v41")
    A("v_and_b32 v39, 0xffff0000, v41")
    A("v_lshlrev_b32 v42, 16, v42")
    stamp(g, 11, stamps)
    loads = [f"global_load_dwordx4 {v(16+4*i,4)}, {v(10+i)}, s[26:27] sc1" for i in range(4)]
    poll_loop(g, loads, list(range(16, 32)), 9, "t2")
    stamp(g, 12, stamps)
    GB = 96
    for mat in range(2):
        for n in range(2):
            for kk in range(2):
                for u in range(2):
                    A(f"ds_read_b64_tr_b16 {v(GB+16*mat+8*n+4*kk+2*u,2)}, v44 offset:{32768*mat+2048*kk+256*u+32*n}")
    for k in range(4):
        A(f"v_add_f32 {v(16+k)}, {v(16+k)}, {v(20+k)}")
        A(f"v_add_f32 {v(24+k)}, {v(24+k)}, {v(28+k)}")
    for k in range(4):
        A(f"v_add_f32 {v(16+k)}, {v(16+k)}, {v(24+k)}")
    swap_reduce(g, [16, 17, 18, 19], [20, 21, 22, 23], "v_add_f32", (16,))
    for i in (0, 2):
        A(f"v_cvt_pk_bf16_f32 v20, {v(16+i)}, {v(17+i)}")
        A(f"v_lshlrev_b32 {v(16+i)}, 16, v20")
        A(f"v_and_b32 {v(17+i)}, 0xffff0000, v20")
        A(f"v_add_f32 {v(16+i)}, {v(16+i)}, {v(36+i)}")
        A(f"v_add_f32 {v(17+i)}, {v(17+i)}, {v(37+i)}")
        A(f"v_cvt_pk_bf16_f32 {v(24+i//2)}, {v(16+i)}, {v(17+i)}")
        A(f"v_lshlrev_b32 {v(16+i)}, 16, {v(24+i//2)}")
        A(f"v_and_b32 {v(17+i)}, 0xffff0000, {v(24+i//2)}")
    for i in range(4):
        A(f"v_sub_f32 {v(20+i)}, {v(16+i)}, v42")
    A("v_add_f32 v26, v20, v21")
    A("v_mul_f32 v27, v20, v20")
    A("v_add_f32 v26, v26, v22")
    A("v_fmac_f32 v27, v21, v21")
    A("v_add_f32 v26, v26, v23")
    A("v_fmac_f32 v27, v22, v22")
    A("v_fmac_f32 v27, v23, v23")
    dpp_steps(g, [26, 27], "v_add_f32", ["quad_perm:[1,0,3,2]", "quad_perm:[2,3,0,1]", "row_ror:4", "row_ror:8"])
    A(f"ds_write_b64 v8, v[26:27] offset:{LS}")
    A("s_waitcnt lgkmcnt(0)")
    A("s_barrier")
    A(f"ds_read_b64 v[26:27], v7 offset:{LS}")
    A("s_waitcnt lgkmcnt(0)")
    dpp_steps(g, [26, 27], "v_add_f32", ["quad_perm:[1,0,3,2]", "quad_perm:[2,3,0,1]", "row_ror:4"])
    A(f"v_mul_f32 v26, {INV512:#x}, v26")
    A(f"v_mul_f32 v27, {INV512:#x}, v27")
    A("v_fma_f32 v27, -v26, v26, v27")
    A("v_max_f32 v27, 0, v27")
    A("v_add_f32 v26, v26, v42")
    ln_scalars(g, 26, 27, 28, 29)
    ln_finish_pair(g, 16, 17, 26, 27, 28, [30, 31, 32, 33, 34, 35], 24)
    ln_finish_pair(g, 18, 19, 26, 27, 28, [30, 31, 32, 33, 34, 35], 25)
    A(f"ds_write_b64 v14, v[24:25] offset:{HN}")
    for kk in range(2):
        A(f"ds_read_b128 {v(AR+4*kk,4)}, v15 offset:{HN+64*kk}")
    A("s_waitcnt lgkmcnt(0)")
    GD = 128
    for t in range(4):
        A(f"v_mfma_f32_16x16x32_bf16 {v(GD+4*t,4)}, {v(AR,4)}, {v(GB+8*t,4)}, 0")
    for t in range(4):
        A(f"v_mfma_f32_16x16x32_bf16 {v(GD+4*t,4)}, {v(AR+4,4)}, {v(GB+8*t+4,4)}, {v(GD+4*t,4)}")
    A("s_lshl_b32 s33, s28, 9")
    A("v_lshlrev_b32 v9, 2, v4")
    A("v_add_u32 v9, s33, v9")
    A("s_nop 4")
    for t in range(4):
        for b in range(2):
            A(f"ds_write_b32 v9, {v(GD+4*t+b)} offset:{R4+256*b+64*t}")
    A("s_waitcnt lgkmcnt(0)")
    A("s_barrier")
    A("s_branch L_end")
    g.label("L_sdown")
    tile_dn(td1, 7)
    A("s_mul_i32 s33, s28, 448")
    A(f"s_add_u32 s33, s33, {AC:#x}")
    A("v_min_u32 v5, 55, v0")
    A("v_cmp_lt_u32 vcc, 27, v5")
    A("v_mov_b32 v6, 0")
    A("v_mov_b32 v7, 3136")
    A("v_cndmask_b32 v6, v6, v7, vcc")
    A("v_lshlrev_b32 v5, 4, v5")
    A("v_add3_u32 v9, v5, v6, s33")
    A("s_lshl_b32 s34, s28, 10")
    A("v_add_u32 v5, s34, v5")
    A("v_and_b32 v6, 1, v0")
    A("v_mul_u32_u24 v6, 448, v6")
    A("v_lshlrev_b32 v7, 4, v1")
    A("v_add3_u32 v6, v6, v7, s34")
    A("s_mul_i32 s33, s28, 7168")
    A(f"s_add_u32 s33, s33, {WD_L}")
    A("v_lshlrev_b32 v11, 8, v1")
    A("v_lshlrev_b32 v12, 5, v2")
    A("v_lshlrev_b32 v13, 3, v3")
    A("v_add3_u32 v11, v11, v12, v13")
    A("v_add_u32 v11, s33, v11")
    A("s_lshl_b32 s33, s28, 7")
    A("v_lshlrev_b32 v10, 2, v4")
    A("v_add_u32 v10, s33, v10")
    A("s_waitcnt vmcnt(0)")
    for kk in range(7):
        for u in range(2):
            A(f"ds_read_b64_tr_b16 {v(48+4*kk+2*u,2)}, v11 offset:{1024*kk+128*u}")
    stamp(g, 13, stamps)
    poll_loop(g, ["global_load_dwordx4 v[84:87], v9, s[26:27] sc1"], [84, 85, 86, 87], 12, "t3", slp=True)
    stamp(g, 14, stamps)
    A(f"ds_write_b128 v5, v[84:87] offset:{RED}")
    for kk in range(7):
        A(f"ds_read_b128 {v(16+4*kk,4)}, v6 offset:{RED+64*kk}")
    A("s_waitcnt lgkmcnt(0)")
    for kk in range(7):
        c = "0" if kk == 0 else v(DR, 4)
        A(f"v_mfma_f32_16x16x32_bf16 {v(DR,4)}, {v(16+4*kk,4)}, {v(48+4*kk,4)}, {c}")
    A("s_nop 7")
    A(f"ds_write_b32 v10, {v(DR)} offset:{R5}")
    A(f"ds_write_b32 v10, {v(DR+1)} offset:{R5+64}")
    A("s_waitcnt lgkmcnt(0)")
    A("s_barrier")
    A("s_branch L_end")

    g.label("L_qk")
    stamp(g, 2, stamps)
    A("v_lshlrev_b32 v9, 8, v3")
    A("v_lshlrev_b32 v10, 6, v1")
    A("v_lshlrev_b32 v11, 4, v2")
    A("v_add3_u32 v9, v9, v10, v11")
    A(f"ds_read_b128 {v(QB,4)}, v9 offset:{QL}")
    A("s_waitcnt lgkmcnt(0)")
    for m in range(16):
        A(f"v_mfma_f32_16x16x32_bf16 {v(KR+4*m,4)}, {v(KR+4+4*m,4)}, {v(QB,4)}, 0")
    A("s_nop 3")
    for step in range(3):
        for m in range(16):
            D = KR + 4 * m
            beta = m & 3
            k = m >> 2
            e = (beta + 1 + step) & 3
            rot = (4 * (beta - e)) & 15
            if step < 2:
                A(f"v_add_f32_dpp {v(D+beta)}, {v(D+e)}, {v(D+beta)} row_ror:{rot} {DPP}")
            else:
                A(f"v_add_f32_dpp {v(Z+k)}, {v(D+e)}, {v(D+beta)} row_ror:{rot} row_mask:0xf bank_mask:{1<<beta:#x}")
    for m in range(0, 4, 2):
        A(f"v_cvt_pk_bf16_f32 v9, {v(Z+m)}, {v(Z+m+1)}")
        A("v_lshlrev_b32 v10, 16, v9")
        A("v_and_b32 v11, 0xffff0000, v9")
        A("v_mul_f32 v10, s45, v10")
        A("v_mul_f32 v11, s45, v11")
        A("v_cvt_pk_bf16_f32 v9, v10, v11")
        A(f"v_lshlrev_b32 {v(Z+m)}, 16, v9")
        A(f"v_and_b32 {v(Z+m+1)}, 0xffff0000, v9")
    A(f"v_max3_f32 v12, {v(Z)}, {v(Z+1)}, {v(Z+2)}")
    A(f"v_max_f32 v12, v12, {v(Z+3)}")
    dpp_steps(g, [12], "v_max_f32", ["row_ror:4", "row_ror:8"])
    swap_reduce(g, [12], [9], "v_max_f32", (16, 32))
    for m in range(4):
        A(f"v_sub_f32 {v(KR+m)}, {v(Z+m)}, v12")
        A(f"v_mul_f32 {v(KR+m)}, s44, {v(KR+m)}")
        A(f"v_exp_f32 {v(KR+m)}, {v(KR+m)}")
    A("s_nop 0")
    A(f"v_add_f32 v13, {v(KR)}, {v(KR+1)}")
    A(f"v_add_f32 v13, v13, {v(KR+2)}")
    A(f"v_add_f32 v13, v13, {v(KR+3)}")
    dpp_steps(g, [13], "v_add_f32", ["row_ror:4", "row_ror:8"])
    swap_reduce(g, [13], [9], "v_add_f32", (16, 32))
    A("s_lshl_b32 s33, s28, 5")
    A("v_lshlrev_b32 v9, 3, v3")
    A("v_add_u32 v9, s33, v9")
    A(f"ds_write_b64 v9, v[12:13] offset:{WST}")
    A("v_mov_b32 v10, 1")
    A("s_waitcnt lgkmcnt(0)")
    A(f"ds_add_u32 v164, v10 offset:{FLG+4}")
    A("s_mov_b32 s49, 2")
    stamp(g, 4, stamps)
    A("s_setpc_b64 s[54:55]")

    g.label("L_ctrl")
    stamp(g, 0, stamps)
    Ln = g.newlabel("nonce")
    A("s_cmp_lg_u32 s2, 255")
    A(f"s_cbranch_scc1 {Ln}")
    A("s_memrealtime s[52:53]")
    A("s_waitcnt lgkmcnt(0)")
    A("s_or_b32 s52, s52, 1")
    A("v_mov_b32 v12, s52")
    A("v_mov_b32 v13, 0")
    A("s_mov_b64 exec, 0x1")
    A("global_store_dword v13, v12, s[24:25] sc1")
    A("s_mov_b64 exec, -1")
    g.label(Ln)
    A("v_lshlrev_b32 v1, 4, v0")
    A("v_mov_b32 v164, 0")
    A("v_mov_b32 v165, 0")
    A("v_mov_b32 v166, 0")
    A("v_mov_b32 v167, 0")
    A(f"ds_write_b128 v164, v[164:167] offset:{FLG}")
    A("s_waitcnt lgkmcnt(0)")
    if bare == 1:
        A("v_mov_b32 v165, 1")
        A(f"ds_write_b32 v164, v165 offset:{FLG}")
        A(f"ds_write_b32 v164, v165 offset:{FLG+8}")
        A("s_waitcnt lgkmcnt(0)")
        A("s_barrier")
        A("s_branch L_end")
    A("s_bfe_u32 s33, s2, 0x20003")
    A("s_lshl_b32 s34, s58, 2")
    A("s_add_u32 s36, s33, s34")
    A("s_bfe_u32 s37, s2, 0x20005")
    A("v_lshrrev_b32 v2, 4, v0")
    A("v_and_b32 v3, 15, v0")
    A("s_lshl_b32 s34, s29, 12")
    A("s_lshl_b32 s35, s30, 11")
    A("s_add_u32 s34, s34, s35")
    A("s_lshl_b32 s35, s59, 7")
    A("s_add_u32 s34, s34, s35")
    A(f"s_add_u32 s38, s34, {YP:#x}")
    WQR = 16

    def prefetch():
        A("s_lshr_b32 s33, s2, 3")
        A("v_lshrrev_b32 v140, 4, v0")
        A("s_cmp_lt_u32 s58, 4")
        A("s_cselect_b32 s34, 3, 2")
        A("v_min_u32 v140, s34, v140")
        A("v_lshlrev_b32 v140, 10, v140")
        A("v_and_b32 v141, 15, v0")
        A("v_mul_u32_u24 v141, 3584, v141")
        A("s_mul_i32 s34, s33, 57344")
        A("s_lshl_b32 s35, s58, 7")
        A("s_add_u32 s34, s34, s35")
        A("v_add3_u32 v140, v140, v141, s34")
        A("global_load_dword v142, v140, s[16:17]")
        A("global_load_dword v143, v140, s[18:19]")
        A("v_min_u32 v140, 55, v0")
        A("v_lshlrev_b32 v140, 10, v140")
        A("s_mul_i32 s34, s33, 57344")
        A("s_add_u32 s34, s34, s35")
        A("v_add_u32 v140, s34, v140")
        A("global_load_dword v144, v140, s[20:21]")

    def fills():
        for i in range(4):
            A(f"v_mov_b32 {v(16+i)}, -1")
        A("s_lshl_b32 s33, s32, 4")
        A("s_add_u32 s33, s33, s31")
        A("s_lshl_b32 s34, s33, 11")
        A(f"s_add_u32 s34, s34, {OP:#x}")
        A("v_add_u32 v160, s34, v1")
        A("global_store_dwordx4 v160, v[16:19], s[26:27] sc1")
        A("global_store_dwordx4 v160, v[16:19], s[26:27] offset:1024 sc1")
        A("v_add_u32 v161, s38, v1")
        A("s_mov_b64 exec, 0xff")
        A("global_store_dwordx4 v161, v[16:19], s[26:27] sc1")
        A("s_mov_b64 exec, -1")
        Lskip = g.newlabel("skip_acs")
        A("s_cmp_lg_u32 s51, 1")
        A(f"s_cbranch_scc1 {Lskip}")
        A("s_lshl_b32 s34, s50, 1")
        A(f"s_add_u32 s34, s34, {AC:#x}")
        A("v_lshrrev_b32 v162, 2, v0")
        A("v_mul_u32_u24 v162, 3584, v162")
        A("v_and_b32 v163, 3, v0")
        A("v_lshlrev_b32 v163, 4, v163")
        A("v_add3_u32 v162, v162, v163, s34")
        A("s_mov_b64 exec, 0xff")
        A("global_store_dwordx4 v162, v[16:19], s[26:27] sc1")
        A("s_mov_b64 exec, -1")
        g.label(Lskip)

    def nonce_loop(first_loaded):
        L = g.newlabel("nn")
        Ld = g.newlabel("nn_done")
        A(f"s_mov_b32 s46, {SPIN}")
        if first_loaded:
            A("s_waitcnt vmcnt(0)")
            A("v_readfirstlane_b32 s47, v5")
            A("s_cmp_lg_u32 s47, 0")
            A(f"s_cbranch_scc1 {Ld}")
        g.label(L)
        A("global_load_dword v5, v6, s[24:25] sc1")
        A("s_waitcnt vmcnt(0)")
        A("v_readfirstlane_b32 s47, v5")
        A("s_cmp_lg_u32 s47, 0")
        A(f"s_cbranch_scc1 {Ld}")
        if SLP:
            A(f"s_sleep {SLP}")
        A("s_sub_u32 s46, s46, 1")
        A("s_cmp_lg_u32 s46, 0")
        A(f"s_cbranch_scc1 {L}")
        g.label(Ld)

    Lnp = g.newlabel("noprod")
    Lnp2 = g.newlabel("front_done")
    A("s_cmp_ge_u32 s2, 128")
    A(f"s_cbranch_scc1 {Lnp}")
    A("global_load_dwordx4 v[4:7], v1, s[4:5]")
    A("global_load_dwordx4 v[8:11], v1, s[4:5] offset:1024")
    A("s_lshl_b32 s33, s37, 20")
    A("s_lshl_b32 s34, s36, 8")
    A("s_add_u32 s33, s33, s34")
    A("v_lshlrev_b32 v12, 13, v2")
    A("v_lshlrev_b32 v13, 4, v3")
    A("v_add3_u32 v12, v12, v13, s33")
    for i in range(32):
        if i:
            A("v_add_u32 v12, 0x8000, v12")
        A(f"global_load_dwordx4 {v(WQR+4*i,4)}, v12, s[10:11] nt")
    if b0 == 1:
        A("s_barrier")
    A("s_waitcnt vmcnt(32)")
    stamp(g, 13, stamps)
    A(f"ds_write_b128 v1, v[4:7] offset:{XL}")
    A(f"ds_write_b128 v1, v[8:11] offset:{XL+1024}")
    unpack8(g, 144, 4)
    unpack8(g, 152, 8)
    layernorm2(g, 144, 4, [12, 13, 14, 15] + list(range(160, 168)))
    A(f"ds_write_b128 v1, {v(4,4)} offset:{XN}")
    A(f"ds_write_b128 v1, {v(8,4)} offset:{XN+1024}")
    A("v_bfe_u32 v160, v0, 3, 1")
    A("v_lshlrev_b32 v160, 10, v160")
    A("v_lshlrev_b32 v161, 1, v2")
    A("s_lshl_b32 s33, s37, 8")
    A("v_add3_u32 v160, v160, v161, s33")
    A("s_waitcnt lgkmcnt(0)")
    A("v_and_b32 v5, 7, v0")
    A("v_mov_b32 v6, 0xffff")
    A("v_mov_b32 v7, 0xffff0000")
    for d in range(4):
        A(f"v_mov_b32 {v(8+d)}, 0")
        A(f"v_cmp_eq_u32 vcc, {2*d}, v5")
        A("s_nop 1")
        A(f"v_cndmask_b32 {v(8+d)}, {v(8+d)}, v6, vcc")
        A(f"v_cmp_eq_u32 vcc, {2*d+1}, v5")
        A("s_nop 1")
        A(f"v_cndmask_b32 {v(8+d)}, {v(8+d)}, v7, vcc")
    A("v_mov_b32 v6, 0")
    A("global_load_dword v5, v6, s[24:25] sc1")
    QD = 12
    for half in range(2):
        for i in range(16):
            A(f"ds_read_u16 {v(144+i)}, v160 offset:{XN+8*(16*half+i)}")
        A("s_waitcnt lgkmcnt(0)")
        if half == 0:
            A("s_waitcnt vmcnt(17)")
            if b0 == 2:
                A("s_barrier")
        else:
            A("s_waitcnt vmcnt(1)")
            if b0 == 3:
                A("s_barrier")
        stamp(g, 14 + half, stamps)
        for i in range(16):
            ii = 16 * half + i
            Bq = 160 + 4 * (i % 2)
            A(f"v_lshl_or_b32 {v(144+i)}, {v(144+i)}, 16, {v(144+i)}")
            for d in range(4):
                A(f"v_and_b32 {v(Bq+d)}, {v(144+i)}, {v(8+d)}")
            A("s_nop 1")
            c = "0" if ii == 0 else v(QD, 4)
            A(f"v_mfma_f32_16x16x32_bf16 {v(QD,4)}, {v(WQR+4*ii,4)}, {v(Bq,4)}, {c}")
        if half == 0:
            A("v_bfe_u32 v160, v0, 3, 1")
            A("v_lshlrev_b32 v160, 10, v160")
            A("v_lshlrev_b32 v161, 1, v2")
            A("v_add3_u32 v160, v160, v161, s33")
    stamp(g, 16, stamps)
    nonce_loop(True)
    stamp(g, 1, stamps)
    A("s_lshl_b32 s33, s37, 5")
    A("s_add_u32 s33, s33, s36")
    A("s_lshl_b32 s33, s33, 11")
    A("v_add_u32 v160, s33, v1")
    A(f"v_mov_b32 v20, {v(QD+3)}")
    A("v_mov_b32 v21, s47")
    A("v_mov_b32 v22, s47")
    A("v_mov_b32 v23, s47")
    A(f"v_mov_b32 {v(QD+3)}, s47")
    A(f"global_store_dwordx4 v160, {v(QD,4)}, s[26:27] offset:{QP} sc1")
    A(f"global_store_dwordx4 v160, v[20:23], s[26:27] offset:{QP+1024} sc1")
    if b0 == 4:
        A("s_barrier")
    fills()
    A(f"s_branch {Lnp2}")
    g.label(Lnp)
    if b0:
        A("s_barrier")
    A("global_load_dwordx4 v[8:11], v1, s[4:5]")
    A("global_load_dwordx4 v[12:15], v1, s[4:5] offset:1024")
    fills()
    A("v_mov_b32 v6, 0")
    nonce_loop(False)
    stamp(g, 1, stamps)
    A(f"ds_write_b128 v1, v[8:11] offset:{XL}")
    A(f"ds_write_b128 v1, v[12:15] offset:{XL+1024}")
    g.label(Lnp2)
    A("v_bfe_u32 v4, v0, 2, 2")
    A("v_and_b32 v5, 3, v0")
    A("v_lshlrev_b32 v4, 16, v4")
    A("v_lshlrev_b32 v5, 11, v5")
    A("s_lshl_b32 s33, s29, 13")
    A("v_add3_u32 v4, v4, v5, s33")
    poll_pipe(g, lambda r: f"global_load_dword {v(r)}, v4, s[26:27] offset:{QP+2044} sc1", 1, 100, 3, [0], 16, "ql", anyok=bool(qany))
    A("v_lshrrev_b32 v4, 5, v0")
    A("v_bfe_u32 v5, v0, 3, 2")
    A("v_and_b32 v6, 7, v0")
    A("s_lshl_b32 s34, s30, 7")
    A("s_add_u32 s33, s33, s34")
    A("v_lshlrev_b32 v7, 11, v4")
    A("v_lshlrev_b32 v8, 8, v5")
    A("v_lshlrev_b32 v9, 4, v6")
    A("v_add3_u32 v7, v7, v8, v9")
    A("v_add_u32 v7, s33, v7")
    for k in range(1, 8):
        A(f"v_add_u32 {v(7+k)}, {4096*(k%2) + 65536*(k//2)}, v7")
    loads = []
    for ks in range(4):
        for hp in range(2):
            for gr in range(2):
                loads.append(f"global_load_dwordx4 {v(24+16*ks+8*hp+4*gr,4)}, {v(7+2*ks+hp)}, s[26:27] offset:{QP+1024*gr} sc1")
    poll_tag(g, loads, [24 + 4 * k + 3 for k in range(16)], 16, "qg")
    stamp(g, 2, stamps)
    for ks in range(4):
        for hp in range(2):
            A(f"v_mov_b32 {v(24+16*ks+8*hp+3)}, {v(24+16*ks+8*hp+4)}")
    for ks in range(1, 4):
        for hp in range(2):
            for i in range(4):
                A(f"v_add_f32 {v(24+8*hp+i)}, {v(24+8*hp+i)}, {v(24+16*ks+8*hp+i)}")
    A("v_lshlrev_b32 v7, 8, v4")
    A("v_lshlrev_b32 v8, 6, v5")
    A("v_lshlrev_b32 v9, 1, v6")
    A("v_add3_u32 v7, v7, v8, v9")
    for hp in range(2):
        for r in range(4):
            A(f"v_cvt_pk_bf16_f32 {v(16+4*hp+r)}, {v(24+8*hp+r)}, {v(24+8*hp+r)}")
            A(f"ds_write_b16 v7, {v(16+4*hp+r)} offset:{QL+512*hp+16*r}")
    A("s_waitcnt lgkmcnt(0)")
    A("v_mov_b32 v164, 0")
    A("v_mov_b32 v165, 1")
    A(f"ds_write_b32 v164, v165 offset:{FLG}")
    stamp(g, 3, stamps)
    if pfp == 1:
        prefetch()
    if bare == 2:
        A(f"ds_write_b32 v164, v165 offset:{FLG+8}")
        A("s_branch L_end")
    A("v_and_b32 v4, 31, v0")
    A("v_lshlrev_b32 v4, 3, v4")
    A("s_lshl_b32 s33, s32, 10")
    A("s_lshl_b32 s34, s31, 6")
    A(f"s_add_u32 s33, s33, {ST:#x}")
    A("s_add_u32 s34, s34, s33")
    A("v_add_u32 v6, s34, v1")
    A("v_add_u32 v7, s33, v1")
    A("s_lshl_b32 s33, s2, 2")
    A(f"s_add_u32 s33, s33, {FL:#x}")
    A("v_mov_b32 v8, s33")
    A("v_mov_b32 v9, s47")
    L = g.newlabel("wc")
    Ld = g.newlabel("wc_done")
    A(f"s_mov_b32 s46, {SPIN*16}")
    g.label(L)
    A(f"ds_read_b32 v166, v164 offset:{FLG+4}")
    A("s_waitcnt lgkmcnt(0)")
    A("v_readfirstlane_b32 s48, v166")
    A("s_cmp_eq_u32 s48, 512")
    A(f"s_cbranch_scc1 {Ld}")
    A("s_sub_u32 s46, s46, 1")
    A("s_cmp_lg_u32 s46, 0")
    A(f"s_cbranch_scc1 {L}")
    g.label(Ld)
    stamp(g, 4, stamps)
    A(f"ds_read_b64 v[12:13], v4 offset:{WST}")
    A("s_waitcnt lgkmcnt(0)")
    A("v_mov_b32 v14, v12")

    def red_s4(reg, tmp, op, full):
        dpp_steps(g, [reg], op, ["row_ror:4", "row_ror:8"])
        swap_reduce(g, [reg], [tmp], op, (16, 32) if full else (16,))

    red_s4(14, 15, "v_max_f32", False)
    A("v_sub_f32 v12, v12, v14")
    A("v_mul_f32 v12, s44, v12")
    A("v_exp_f32 v12, v12")
    A("s_nop 0")
    A("v_mul_f32 v13, v13, v12")
    red_s4(13, 15, "v_add_f32", False)
    A("v_mov_b32 v12, v14")
    A("v_mov_b32 v14, s47")
    A("v_mov_b32 v15, s47")
    A("s_mov_b64 exec, 0xf")
    A("global_store_dwordx4 v6, v[12:15], s[26:27] sc1")
    A("s_mov_b64 exec, 0x1")
    A("global_store_dword v8, v9, s[26:27] sc1")
    A("s_mov_b64 exec, -1")
    poll_pipe(g, lambda r: f"global_load_dwordx4 {v(r,4)}, v7, s[26:27] sc1", 4, 100, 3, [3], 16, "st", dst=12)
    stamp(g, 5, stamps)
    A("v_mov_b32 v14, v12")
    red_s4(14, 15, "v_max_f32", True)
    A("v_sub_f32 v12, v12, v14")
    A("v_mul_f32 v12, s44, v12")
    A("v_exp_f32 v12, v12")
    A("s_nop 0")
    A("v_mul_f32 v13, v13, v12")
    red_s4(13, 15, "v_add_f32", True)
    A("v_rcp_f32 v15, v13")
    A("s_nop 0")
    A("v_fma_f32 v12, -v13, v15, 1.0")
    A("v_fmac_f32 v15, v12, v15")
    A("v_mov_b32 v12, v14")
    A("v_mov_b32 v13, v15")
    A("v_and_b32 v4, 3, v0")
    A("v_lshlrev_b32 v4, 3, v4")
    A(f"ds_write_b64 v4, v[12:13] offset:{GST}")
    A("s_waitcnt lgkmcnt(0)")
    A(f"ds_write_b32 v164, v165 offset:{FLG+8}")
    stamp(g, 6, stamps)
    if pfp == 2:
        prefetch()
    if bare == 3:
        A("s_branch L_end")
    Lnof = g.newlabel("nofl")
    A("s_cmp_eq_u32 s51, 0")
    A(f"s_cbranch_scc1 {Lnof}")
    A(f"v_add_u32 v6, {FL:#x}, v1")
    poll_pipe(g, lambda r: f"global_load_dwordx4 {v(r,4)}, v6, s[26:27] sc1", 4, 100, 1, [0, 1, 2, 3], 16, "fl")
    g.label(Lnof)
    A("s_lshl_b32 s33, s32, 15")
    A("s_lshl_b32 s34, s31, 11")
    A("s_add_u32 s33, s33, s34")
    A(f"s_add_u32 s33, s33, {OP:#x}")
    A("v_add_u32 v6, s33, v1")
    A("s_lshl_b32 s33, s32, 8")
    A(f"s_add_u32 s33, s33, {F1:#x}")
    A("s_lshl_b32 s34, s31, 2")
    A("s_add_u32 s34, s34, s33")
    A("v_mov_b32 v8, s34")
    A("v_lshlrev_b32 v7, 2, v3")
    A("v_add_u32 v7, s33, v7")
    A("v_mov_b32 v9, s47")
    A("s_barrier")
    stamp(g, 7, stamps)
    for c in range(2):
        for w in range(8):
            A(f"ds_read_b128 {v(16+32*c+4*w,4)}, v1 offset:{RED+2048*w+1024*c}")
    for c in range(2):
        A(f"s_waitcnt lgkmcnt({8*(1-c)})")
        b = 16 + 32 * c
        for i in range(4):
            A(f"v_add_f32 {v(b+i)}, {v(b+i)}, {v(b+4+i)}")
            A(f"v_add_f32 {v(b+8+i)}, {v(b+8+i)}, {v(b+12+i)}")
            A(f"v_add_f32 {v(b+16+i)}, {v(b+16+i)}, {v(b+20+i)}")
            A(f"v_add_f32 {v(b+24+i)}, {v(b+24+i)}, {v(b+28+i)}")
        for i in range(4):
            A(f"v_add_f32 {v(b+i)}, {v(b+i)}, {v(b+8+i)}")
            A(f"v_add_f32 {v(b+16+i)}, {v(b+16+i)}, {v(b+24+i)}")
        for i in range(4):
            A(f"v_add_f32 {v(b+i)}, {v(b+i)}, {v(b+16+i)}")
            A(f"v_min_u32 {v(b+i)}, 0xfffffffe, {v(b+i)}")
        A(f"global_store_dwordx4 v6, {v(b,4)}, s[26:27] offset:{1024*c} sc1")
    A("s_mov_b64 exec, 0x1")
    A("global_store_dword v8, v9, s[26:27] sc1")
    A("s_mov_b64 exec, -1")
    if pfp == 3:
        prefetch()
    poll_pipe(g, lambda r: f"global_load_dword {v(r)}, v7, s[26:27] sc1", 1, 100, 3, [0], 16, "f1")
    stamp(g, 8, stamps)
    A("s_barrier")
    if pfp == 4:
        prefetch()
    A("v_and_b32 v4, 31, v0")
    A("v_lshlrev_b32 v4, 2, v4")
    A("v_add_u32 v6, s38, v4")
    A("s_barrier")
    stamp(g, 9, stamps)
    for w in range(8):
        A(f"ds_read_b32 {v(16+w)}, v4 offset:{R2+128*w}")
    A("s_waitcnt lgkmcnt(0)")
    for w in range(0, 8, 2):
        A(f"v_add_f32 {v(16+w)}, {v(16+w)}, {v(17+w)}")
    A("v_add_f32 v16, v16, v18")
    A("v_add_f32 v20, v20, v22")
    A("v_add_f32 v16, v16, v20")
    A("v_min_u32 v16, 0xfffffffe, v16")
    A("s_mov_b32 exec_hi, 0")
    A("global_store_dword v6, v16, s[26:27] sc1")
    A("s_mov_b64 exec, -1")
    A("s_cmp_eq_u32 s51, 0")
    A("s_cbranch_scc1 L_end")
    A("s_cmp_eq_u32 s51, 2")
    A("s_cbranch_scc1 L_cdown")
    A("v_lshrrev_b32 v4, 5, v0")
    A("v_and_b32 v5, 31, v0")
    A("v_lshlrev_b32 v10, 8, v4")
    A("v_lshlrev_b32 v11, 2, v5")
    A("v_add_u32 v10, v10, v11")
    A("s_lshl_b32 s33, s50, 1")
    A(f"s_add_u32 s33, s33, {AC:#x}")
    A("v_mul_u32_u24 v6, 3584, v4")
    A("v_lshlrev_b32 v11, 1, v5")
    A("v_add3_u32 v6, v6, v11, s33")
    A("s_mov_b32 s39, 0x200")
    A("s_mov_b32 s52, 0x55555555")
    A("s_mov_b32 s53, 0x55555555")
    A("s_barrier")
    A("s_barrier")
    stamp(g, 11, stamps)
    for w in range(8):
        A(f"ds_read_b32 {v(16+w)}, v10 offset:{R4+512*w}")
        A(f"ds_read_b32 {v(24+w)}, v10 offset:{R4+512*w+128}")
    A("s_waitcnt lgkmcnt(0)")
    for base in (16, 24):
        for w in range(0, 8, 2):
            A(f"v_add_f32 {v(base+w)}, {v(base+w)}, {v(base+w+1)}")
        A(f"v_add_f32 {v(base)}, {v(base)}, {v(base+2)}")
        A(f"v_add_f32 {v(base+4)}, {v(base+4)}, {v(base+6)}")
        A(f"v_add_f32 {v(base)}, {v(base)}, {v(base+4)}")
    A("v_cvt_pk_bf16_f32 v18, v16, v24")
    A("v_lshlrev_b32 v16, 16, v18")
    A("v_and_b32 v24, 0xffff0000, v18")
    A("v_mul_f32 v18, s44, v16")
    A("v_exp_f32 v18, -v18")
    A("s_nop 0")
    A("v_add_f32 v18, 1.0, v18")
    A("v_rcp_f32 v20, v18")
    A("s_nop 0")
    A("v_mul_f32 v22, v16, v20")
    A("v_mov_b32 v21, v22")
    A("v_fma_f32 v23, -v22, v18, v16")
    A("v_fmac_f32 v22, v23, v20")
    A("v_cmp_class_f32 vcc, v18, s39")
    A("s_nop 1")
    A("v_cndmask_b32 v22, v22, v21, vcc")
    bf16r(g, 22, 22, 18)
    A("v_mul_f32 v22, v22, v24")
    A("v_cvt_pk_bf16_f32 v18, v22, v22")
    A("v_and_b32 v18, 0xffff, v18")
    A("s_nop 1")
    A(f"v_mov_b32_dpp v19, v18 quad_perm:[1,0,3,2] {DPP}")
    A("v_lshl_or_b32 v18, v19, 16, v18")
    A("v_min_u32 v18, 0xfffffffe, v18")
    A("s_mov_b64 exec, s[52:53]")
    A("global_store_dword v6, v18, s[26:27] sc1")
    A("s_mov_b64 exec, -1")
    A("s_branch L_end")
    g.label("L_cdown")
    A("v_lshrrev_b32 v4, 3, v0")
    A("v_bfe_u32 v5, v0, 2, 1")
    A("v_and_b32 v7, 3, v0")
    A("v_lshlrev_b32 v8, 12, v4")
    A("v_lshlrev_b32 v10, 11, v5")
    A("v_lshlrev_b32 v11, 4, v7")
    A("v_add3_u32 v8, v8, v10, v11")
    A("s_lshl_b32 s33, s50, 2")
    A(f"s_add_u32 s33, s33, {YP:#x}")
    A("v_add_u32 v8, s33, v8")
    A("v_lshlrev_b32 v10, 10, v5")
    A("v_lshlrev_b32 v11, 3, v7")
    A("s_lshl_b32 s33, s50, 1")
    A("v_add3_u32 v10, v10, v11, s33")
    A(f"ds_read_b64 v[40:41], v10 offset:{XL}")
    A("v_lshlrev_b32 v11, 6, v5")
    A("v_lshlrev_b32 v12, 4, v7")
    A("v_add_u32 v11, v11, v12")
    poll_loop(g, ["global_load_dwordx4 v[16:19], v8, s[26:27] sc1"], [16, 17, 18, 19], 12, "hy", slp=True)
    dpp_steps(g, [16, 17, 18, 19], "v_add_f32", ["row_ror:8"])
    swap_reduce(g, [16, 17, 18, 19], [20, 21, 22, 23], "v_add_f32", (16, 32))
    A("s_waitcnt lgkmcnt(0)")
    A("v_lshlrev_b32 v36, 16, v40")
    A("v_and_b32 v37, 0xffff0000, v40")
    A("v_lshlrev_b32 v38, 16, v41")
    A("v_and_b32 v39, 0xffff0000, v41")
    for i in (0, 2):
        A(f"v_cvt_pk_bf16_f32 v20, {v(16+i)}, {v(17+i)}")
        A(f"v_lshlrev_b32 {v(16+i)}, 16, v20")
        A(f"v_and_b32 {v(17+i)}, 0xffff0000, v20")
        A(f"v_add_f32 {v(16+i)}, {v(16+i)}, {v(36+i)}")
        A(f"v_add_f32 {v(17+i)}, {v(17+i)}, {v(37+i)}")
        A(f"v_cvt_pk_bf16_f32 v20, {v(16+i)}, {v(17+i)}")
        A(f"v_lshlrev_b32 {v(36+i)}, 16, v20")
        A(f"v_and_b32 {v(37+i)}, 0xffff0000, v20")
    A("s_barrier")
    stamp(g, 17, stamps)
    for w in range(8):
        A(f"ds_read_b128 {v(48+4*w,4)}, v11 offset:{R5+128*w}")
    A("s_waitcnt lgkmcnt(0)")
    for i in range(4):
        for w in range(0, 8, 2):
            A(f"v_add_f32 {v(48+4*w+i)}, {v(48+4*w+i)}, {v(52+4*w+i)}")
        A(f"v_add_f32 {v(48+i)}, {v(48+i)}, {v(56+i)}")
        A(f"v_add_f32 {v(64+i)}, {v(64+i)}, {v(72+i)}")
        A(f"v_add_f32 {v(48+i)}, {v(48+i)}, {v(64+i)}")
    for i in (0, 2):
        A(f"v_cvt_pk_bf16_f32 v20, {v(48+i)}, {v(49+i)}")
        A(f"v_lshlrev_b32 {v(48+i)}, 16, v20")
        A(f"v_and_b32 {v(49+i)}, 0xffff0000, v20")
        A(f"v_add_f32 {v(48+i)}, {v(48+i)}, {v(36+i)}")
        A(f"v_add_f32 {v(49+i)}, {v(49+i)}, {v(37+i)}")
        A(f"v_cvt_pk_bf16_f32 {v(16+i//2)}, {v(48+i)}, {v(49+i)}")
    A("s_mov_b64 exec, 0xff")
    A("global_store_dwordx2 v10, v[16:17], s[22:23]")
    A("s_mov_b64 exec, -1")
    g.label("L_end")
    if stamps:
        A("s_waitcnt vmcnt(0)")
        stamp(g, 31, True)
        A("v_mov_b32 v166, s62")
        for i in range(32):
            A(f"v_mov_b32 v167, s{64+i}")
            A(f"global_store_dword v166, v167, s[26:27] offset:{4*i}")
    g.label("L_end2")
    A("s_endpgm")

    tail = []
    tail.append('.section .rodata,"a"')
    tail.append(".p2align 6")
    tail.append(f".amdhsa_kernel {NAME}_kernel")
    tail.append("  .amdhsa_next_free_vgpr 168")
    tail.append("  .amdhsa_next_free_sgpr 102")
    tail.append("  .amdhsa_accum_offset 168")
    tail.append("  .amdhsa_group_segment_fixed_size 0")
    tail.append("  .amdhsa_kernarg_size 96")
    tail.append("  .amdhsa_user_sgpr_count 2")
    tail.append("  .amdhsa_user_sgpr_kernarg_segment_ptr 1")
    tail.append("  .amdhsa_system_sgpr_workgroup_id_x 1")
    tail.append(".end_amdhsa_kernel")
    return "\n".join(hdr + g.L + tail) + "\n"


if __name__ == "__main__":
    import argparse
    ap = argparse.ArgumentParser()
    ap.add_argument("-o", default="k.s")
    ap.add_argument("--depth", type=int, default=3)
    ap.add_argument("--n1", type=int, default=3)
    ap.add_argument("--n2", type=int, default=10)
    ap.add_argument("--wnt", type=int, default=1)
    ap.add_argument("--stamps", type=int, default=0)
    ap.add_argument("--b0", type=int, default=1)
    ap.add_argument("--rp", type=int, default=1)
    ap.add_argument("--qany", type=int, default=1)
    ap.add_argument("--rpos", type=int, default=0)
    ap.add_argument("--now", type=int, default=0)
    ap.add_argument("--bare", type=int, default=0)
    ap.add_argument("--rpg", type=int, default=1)
    ap.add_argument("--rpd", type=int, default=1)
    ap.add_argument("--gnt", type=int, default=0)
    ap.add_argument("--wpos", type=int, default=0)
    ap.add_argument("--dsw", type=int, default=99)
    ap.add_argument("--mp", type=int, default=0)
    ap.add_argument("--tpos", type=int, default=0)
    ap.add_argument("--pfp", type=int, default=0)
    ap.add_argument("--tg1", type=int, default=3)
    ap.add_argument("--nb0", type=int, default=0)
    ap.add_argument("--td1", type=int, default=2)
    ap.add_argument("--depth2", type=int, default=3)
    ap.add_argument("--pk", type=int, default=3)
    ap.add_argument("--slp", type=int, default=0)
    ap.add_argument("--slp2", type=int, default=0)
    a = ap.parse_args()
    PK = a.pk
    SLP = a.slp
    SLP2 = a.slp2
    open(a.o, "w").write(gen(a.depth, a.n1, a.n2, bool(a.wnt), bool(a.stamps), a.b0, a.rp, a.qany, a.rpos, a.now, a.bare, a.rpg, a.rpd, a.gnt, a.wpos, a.dsw, a.depth2, a.mp, a.tpos, a.pfp, a.tg1, a.td1, a.nb0))
```

```python
import sys

NAME = "sequential_preLN__gqa_block_cached__swiglu_ffn__decode"

QP = 0x00000
ST = 0x40000
OP = 0x80000
YP = 0x100000
AC = 0x110000
FL = 0x120000
F1 = 0x121000
F2 = 0x122000
F3 = 0x123000
TS = 0x200000
GT = 0x300000
DT = 0x700000

XL = 0
XN = XL + 2048
QL = XN + 2048
WST = QL + 1024
GST = WST + 256
FLG = GST + 128
RED = GST + 256
AO = RED + 16384
R2 = AO + 1024
LS = R2 + 1024
HN = LS + 256
R4 = HN + 2048
R5 = R4
WO_L = 32768
assert R4 + 4096 <= WO_L
GU_L = WO_L + 32768
WD_L = GU_L
LDS_TOTAL = GU_L + 65536

LOG2E = 0x3FB8AA3B
SCALE = 0x3DB504F3
EPS = 0x3727C5AC
INV512 = 0x3B000000
SPIN = 4000
PK = 3
SLP = 0
SLP2 = 0


class G:
    def __init__(self):
        self.L = []
        self.nlab = 0

    def __call__(self, s):
        self.L.append("  " + s)

    def label(self, name):
        self.L.append(name + ":")

    def newlabel(self, base):
        self.nlab += 1
        return f"L_{base}_{self.nlab}"


def v(i, n=1):
    return f"v{i}" if n == 1 else f"v[{i}:{i+n-1}]"


DPP = "row_mask:0xf bank_mask:0xf"


def bf16r(g, dst, src, tmp):
    g(f"v_cvt_pk_bf16_f32 {v(tmp)}, {v(src)}, {v(src)}")
    g(f"v_lshlrev_b32 {v(dst)}, 16, {v(tmp)}")


def dpp_steps(g, regs, op, steps):
    for st in steps:
        if len(regs) < 3:
            g("s_nop 1")
        for r in regs:
            g(f"{op}_dpp {v(r)}, {v(r)}, {v(r)} {st} {DPP}")


def swap_reduce(g, regs, tmps, op, which):
    for sw in which:
        ins = {16: "v_permlane16_swap_b32", 32: "v_permlane32_swap_b32"}[sw]
        for r, t in zip(regs, tmps):
            g(f"v_mov_b32 {v(t)}, {v(r)}")
        g("s_nop 1")
        for r, t in zip(regs, tmps):
            g(f"{ins} {v(r)}, {v(t)}")
        for r, t in zip(regs, tmps):
            g(f"{op} {v(r)}, {v(r)}, {v(t)}")


def wave_reduce(g, regs, tmps, op):
    dpp_steps(g, regs, op, ["quad_perm:[1,0,3,2]", "quad_perm:[2,3,0,1]", "row_ror:4", "row_ror:8"])
    swap_reduce(g, regs, tmps, op, (16, 32))


def unpack8(g, dst, src):
    for i in range(4):
        g(f"v_lshlrev_b32 {v(dst+2*i)}, 16, {v(src+i)}")
        g(f"v_and_b32 {v(dst+2*i+1)}, 0xffff0000, {v(src+i)}")


def ln_finish_pair(g, f0, f1, mean_b, den, rc, D, out):
    g(f"v_sub_f32 {v(D[0])}, {v(f0)}, {v(mean_b)}")
    g(f"v_sub_f32 {v(D[1])}, {v(f1)}, {v(mean_b)}")
    g(f"v_cvt_pk_bf16_f32 {v(D[2])}, {v(D[0])}, {v(D[1])}")
    g(f"v_lshlrev_b32 {v(D[0])}, 16, {v(D[2])}")
    g(f"v_and_b32 {v(D[1])}, 0xffff0000, {v(D[2])}")
    g(f"v_mul_f32 {v(D[2])}, {v(D[0])}, {v(rc)}")
    g(f"v_mul_f32 {v(D[3])}, {v(D[1])}, {v(rc)}")
    g(f"v_fma_f32 {v(D[4])}, -{v(D[2])}, {v(den)}, {v(D[0])}")
    g(f"v_fma_f32 {v(D[5])}, -{v(D[3])}, {v(den)}, {v(D[1])}")
    g(f"v_fmac_f32 {v(D[2])}, {v(D[4])}, {v(rc)}")
    g(f"v_fmac_f32 {v(D[3])}, {v(D[5])}, {v(rc)}")
    g(f"v_cvt_pk_bf16_f32 {v(out)}, {v(D[2])}, {v(D[3])}")


def ln_scalars(g, mean, var, rc, t):
    bf16r(g, var, var, t)
    g(f"v_add_f32 {v(var)}, {EPS:#x}, {v(var)}")
    bf16r(g, var, var, t)
    g(f"v_sqrt_f32 {v(var)}, {v(var)}")
    bf16r(g, mean, mean, t)
    bf16r(g, var, var, t)
    g(f"v_rcp_f32 {v(rc)}, {v(var)}")
    g("s_nop 0")


def layernorm2(g, F, OUTP, T):
    s0, s1, q0, q1, r0, r1 = T[:6]
    D = T[6:12]
    t0, t1 = D[0], D[1]
    for b, s in ((0, s0), (1, s1)):
        f = F + 8 * b
        g(f"v_add_f32 {v(s)}, {v(f)}, {v(f+1)}")
        for i in range(2, 8):
            g(f"v_add_f32 {v(s)}, {v(s)}, {v(f+i)}")
    wave_reduce(g, [s0, s1], [t0, t1], "v_add_f32")
    g(f"v_mul_f32 {v(s0)}, {INV512:#x}, {v(s0)}")
    g(f"v_mul_f32 {v(s1)}, {INV512:#x}, {v(s1)}")
    for b, s, q in ((0, s0, q0), (1, s1, q1)):
        f = F + 8 * b
        for i in range(8):
            d = D[i % 4]
            g(f"v_sub_f32 {v(d)}, {v(f+i)}, {v(s)}")
            if i == 0:
                g(f"v_mul_f32 {v(q)}, {v(d)}, {v(d)}")
            else:
                g(f"v_fmac_f32 {v(q)}, {v(d)}, {v(d)}")
    wave_reduce(g, [q0, q1], [t0, t1], "v_add_f32")
    for s, q, r in ((s0, q0, r0), (s1, q1, r1)):
        g(f"v_mul_f32 {v(q)}, {INV512:#x}, {v(q)}")
        ln_scalars(g, s, q, r, t0)
    for b, s, q, r in ((0, s0, q0, r0), (1, s1, q1, r1)):
        f = F + 8 * b
        for i in range(0, 8, 2):
            ln_finish_pair(g, f + i, f + i + 1, s, q, r, D, OUTP + 4 * b + i // 2)


def poll_loop(g, loads, regs, tmp, name, slp=False):
    L = g.newlabel(name)
    Ld = g.newlabel(name + "_done")
    g(f"s_mov_b32 s46, {SPIN}")
    g.label(L)
    for l in loads:
        g(l)
    g("s_waitcnt vmcnt(0)")
    rs = list(regs)
    g(f"v_max_u32 {v(tmp)}, {v(rs[0])}, {v(rs[1])}")
    rest = rs[2:]
    while len(rest) >= 2:
        g(f"v_max3_u32 {v(tmp)}, {v(tmp)}, {v(rest[0])}, {v(rest[1])}")
        rest = rest[2:]
    if rest:
        g(f"v_max_u32 {v(tmp)}, {v(tmp)}, {v(rest[0])}")
    g(f"v_cmp_eq_u32 vcc, -1, {v(tmp)}")
    g(f"s_cbranch_vccz {Ld}")
    if slp and SLP2:
        g(f"s_sleep {SLP2}")
    g("s_sub_u32 s46, s46, 1")
    g("s_cmp_lg_u32 s46, 0")
    g(f"s_cbranch_scc1 {L}")
    g.label(Ld)


def poll_tag(g, loads, regs, tmp, name):
    L = g.newlabel(name)
    Ld = g.newlabel(name + "_done")
    g(f"s_mov_b32 s46, {SPIN}")
    g.label(L)
    for l in loads:
        g(l)
    g("s_waitcnt vmcnt(0)")
    rs = list(regs)
    if len(rs) == 1:
        g(f"v_cmp_ne_u32 vcc, s47, {v(rs[0])}")
    else:
        g(f"v_xor_b32 {v(tmp)}, s47, {v(rs[0])}")
        for r in rs[1:]:
            g(f"v_xor_b32 {v(tmp+1)}, s47, {v(r)}")
            g(f"v_or_b32 {v(tmp)}, {v(tmp)}, {v(tmp+1)}")
        g(f"v_cmp_ne_u32 vcc, 0, {v(tmp)}")
    g(f"s_cbranch_vccz {Ld}")
    g("s_sub_u32 s46, s46, 1")
    g("s_cmp_lg_u32 s46, 0")
    g(f"s_cbranch_scc1 {L}")
    g.label(Ld)


def poll_pipe(g, mk_load, nreg, sb, K, chk, tmp, name, dst=None, anyok=False, slp=True, force=False):
    if not force:
        K = min(K, PK)
    Ld = g.newlabel(name + "_done")
    L = g.newlabel(name)
    g(f"s_mov_b32 s46, {SPIN}")
    for k in range(K):
        g(mk_load(sb + nreg * k))
    g.label(L)
    outs = []
    for k in range(K):
        r = sb + nreg * k
        g(f"s_waitcnt vmcnt({K-1})")
        if len(chk) == 1:
            g(f"v_cmp_ne_u32 vcc, s47, {v(r+chk[0])}")
        else:
            g(f"v_xor_b32 {v(tmp)}, s47, {v(r+chk[0])}")
            for c in chk[1:]:
                g(f"v_xor_b32 {v(tmp+1)}, s47, {v(r+c)}")
                g(f"v_or_b32 {v(tmp)}, {v(tmp)}, {v(tmp+1)}")
            g(f"v_cmp_ne_u32 vcc, 0, {v(tmp)}")
        Lk = g.newlabel(name + f"_ok{k}")
        outs.append((Lk, r))
        if anyok:
            g("s_cmp_lg_u64 vcc, -1")
            g(f"s_cbranch_scc1 {Lk}")
        else:
            g(f"s_cbranch_vccz {Lk}")
        if SLP and slp:
            g(f"s_sleep {SLP}")
        g(mk_load(r))
    g("s_sub_u32 s46, s46, 1")
    g("s_cmp_lg_u32 s46, 0")
    g(f"s_cbranch_scc1 {L}")
    g(f"s_branch {Ld}")
    for n, (Lk, r) in enumerate(outs):
        g.label(Lk)
        if dst is not None:
            for i in range(nreg):
                g(f"v_mov_b32 {v(dst+i)}, {v(r+i)}")
        if n != len(outs) - 1:
            g(f"s_branch {Ld}")
    g.label(Ld)


def stamp(g, idx, on):
    if not on:
        return
    g("s_memrealtime s[60:61]")
    g("s_waitcnt lgkmcnt(0)")
    g(f"s_mov_b32 s{64+idx}, s60")


def gen(depth=3, n1=3, n2=10, wnt=True, stamps=False, b0=1, rp=1, qany=1, rpos=0, now=0, bare=0, rpg=1, rpd=1, gnt=0, wpos=0, dsw=99, depth2=3, mp=0, tpos=0, pfp=0, tg1=3, td1=2, nb0=0, f1k=1, f1s=1, stk=1, sts=1):
    g = G()
    A = g
    hdr = []
    hdr.append(f"; @launch grid=(256,1,1) block=(576,1,1) lds={LDS_TOTAL}")
    hdr.append('.amdgcn_target "amdgcn-amd-amdhsa--gfx950"')
    hdr.append(".text")
    hdr.append(f".globl {NAME}_kernel")
    hdr.append(".p2align 8")
    hdr.append(f".type {NAME}_kernel,@function")
    hdr.append(f"{NAME}_kernel:")
    WNT = " nt" if wnt else ""
    A("s_cmp_ge_u32 s2, 256")
    A("s_cbranch_scc1 L_end2")
    A("s_load_dwordx16 s[4:19], s[0:1], 0")
    A("s_load_dwordx8 s[20:27], s[0:1], 64")
    A("v_lshrrev_b32 v1, 6, v0")
    A("v_and_b32 v0, 63, v0")
    A("s_nop 0")
    A("v_readfirstlane_b32 s28, v1")
    A("s_and_b32 s58, s2, 7")
    if mp == 0:
        A("s_and_b32 s29, s2, 7")
        A("s_bfe_u32 s30, s2, 0x10003")
        A("s_lshr_b32 s31, s2, 4")
        A("s_and_b32 s32, s2, 15")
    else:
        A("s_bfe_u32 s29, s2, 0x30004")
        A("s_lshr_b32 s30, s2, 7")
        A("s_and_b32 s31, s2, 15")
        A("s_lshr_b32 s32, s2, 4")
    A(f"s_mov_b32 s44, {LOG2E:#x}")
    A(f"s_mov_b32 s45, {SCALE:#x}")
    A("s_and_b32 s33, s31, 7")
    A("s_lshl_b32 s33, s33, 1")
    A("s_lshr_b32 s34, s31, 3")
    A("s_or_b32 s59, s33, s34")
    A("s_bfe_u32 s33, s2, 0x20004")
    A("s_lshl_b32 s33, s33, 3")
    A("s_add_u32 s33, s33, s58")
    A("s_bfe_u32 s34, s2, 0x10003")
    A("s_lshl_b32 s50, s33, 6")
    A("s_lshl_b32 s34, s34, 5")
    A("s_add_u32 s50, s50, s34")
    A("s_mov_b32 s51, 0")
    A("s_cmp_lt_u32 s33, 28")
    A("s_cselect_b32 s51, 1, 0")
    A("s_cmp_lt_u32 s2, 64")
    A("s_cselect_b32 s51, s51, 0")
    A("s_bfe_u32 s34, s2, 0x20003")
    A("s_lshl_b32 s34, s34, 4")
    A("s_lshl_b32 s33, s58, 6")
    A("s_add_u32 s33, s33, s34")
    A("s_lshr_b32 s34, s2, 5")
    A("s_cmp_eq_u32 s34, 2")
    A("s_cselect_b32 s51, 2, s51")
    A("s_cselect_b32 s50, s33, s50")
    if stamps:
        A("s_mul_i32 s62, s2, 9")
        A("s_add_u32 s62, s62, s28")
        A("s_lshl_b32 s62, s62, 7")
        A(f"s_add_u32 s62, s62, {TS:#x}")
        for i in range(32):
            A(f"s_mov_b32 s{64+i}, 0")
    A("s_waitcnt lgkmcnt(0)")
    A("s_cmp_eq_u32 s28, 8")
    A("s_cbranch_scc1 L_ctrl")

    vK, vV, vML, vMH, vW = 4, 5, 6, 7, 8
    KR = 16
    VR = 84
    QB = 148
    Z = 152
    O0, O1 = 156, 160
    stamp(g, 0, stamps)
    A("s_lshl_b32 s33, s32, 21")
    A("s_lshl_b32 s34, s31, 17")
    A("s_add_u32 s33, s33, s34")
    A("s_lshl_b32 s34, s28, 14")
    A("s_add_u32 s33, s33, s34")
    A("v_lshrrev_b32 v1, 4, v0")
    A("v_bfe_u32 v2, v0, 2, 2")
    A("v_and_b32 v3, 3, v0")
    A("v_lshlrev_b32 v9, 6, v1")
    A("v_lshlrev_b32 v10, 8, v2")
    A("v_lshlrev_b32 v11, 4, v3")
    A("v_add3_u32 v9, v9, v10, v11")
    A(f"v_add_u32 {v(vK)}, s33, v9")
    A("v_lshlrev_b32 v9, 4, v0")
    A(f"v_add_u32 {v(vV)}, s33, v9")
    A(f"v_mov_b32 {v(vML)}, 0xffff")
    A(f"v_mov_b32 {v(vMH)}, 0xffff0000")

    seq = []

    def issue(name):
        kind, m = name
        dd = depth if len(seq) < dsw else depth2
        if len(seq) >= dd and throttle[0]:
            A(f"s_waitcnt vmcnt({dd-1})")
        if kind == "K":
            if m % 4 == 0 and m > 0:
                A(f"v_add_u32 {v(vK)}, 4096, {v(vK)}")
            r = KR + 4 + 4 * m
            A(f"global_load_dwordx4 {v(r,4)}, {v(vK)}, s[6:7] offset:{(m%4)*1024} nt")
        elif kind == "V":
            if m % 4 == 0 and m > 0:
                A(f"v_add_u32 {v(vV)}, 4096, {v(vV)}")
            r = VR + 4 * m
            A(f"global_load_dwordx4 {v(r,4)}, {v(vV)}, s[8:9] offset:{(m%4)*1024} nt")
        elif kind == "W":
            if m > 0:
                A(f"v_add_u32 {v(vW)}, 16384, {v(vW)}")
            A(f"s_add_u32 m0, s35, {m*1024}")
            A("s_nop 0")
            A(f"global_load_lds_dwordx4 {v(vW)}, s[12:13]{WNT}")
        elif kind == "R":
            if m == 0:
                A("s_min_u32 s33, s28, 6")
                A("s_and_b32 s34, s2, 3")
                A("s_mul_i32 s34, s34, 7")
                A("s_add_u32 s34, s34, s33")
                A("s_lshr_b32 s36, s2, 2")
                A("s_mul_i32 s36, s36, 28672")
                A("s_lshl_b32 s37, s34, 7")
                A("s_add_u32 s36, s36, s37")
                A("v_lshrrev_b32 v9, 3, v0")
                A("v_and_b32 v10, 7, v0")
                A("v_mul_u32_u24 v11, 3584, v10")
                A("v_lshlrev_b32 v9, 4, v9")
                A("v_add3_u32 v11, v11, v9, s36")
                A("s_mul_i32 s34, s2, 7")
                A("s_add_u32 s34, s34, s33")
                A("s_lshr_b32 s36, s34, 3")
                A("s_and_b32 s34, s34, 7")
                A("s_lshl_b32 s36, s36, 13")
                A("s_lshl_b32 s37, s34, 7")
                A("s_add_u32 s36, s36, s37")
                A("v_lshlrev_b32 v10, 10, v10")
                A("v_add3_u32 v10, v10, v9, s36")
                A("s_mul_i32 s36, s28, 3072")
                A(f"s_add_u32 s36, s36, {GU_L}")
            addr = "v11" if m < 2 else "v10"
            base = ("s[16:17]", "s[18:19]", "s[20:21]")[m]
            A(f"s_add_u32 m0, s36, {1024*m}")
            A("s_nop 0")
            A(f"global_load_lds_dwordx4 {addr}, {base} nt")
        seq.append(name)

    def wait_for(name):
        idx = seq.index(name)
        n = len(seq) - 1 - idx
        A(f"s_waitcnt vmcnt({n})")

    throttle = [True]
    RP = VR + 52
    A("s_lshl_b32 s33, s29, 19")
    A("s_lshl_b32 s34, s28, 16")
    A("s_add_u32 s33, s33, s34")
    A("s_lshl_b32 s34, s59, 6")
    A("s_add_u32 s33, s33, s34")
    A("v_lshrrev_b32 v9, 2, v0")
    A("v_lshlrev_b32 v9, 10, v9")
    A("v_lshlrev_b32 v10, 4, v3")
    A(f"v_add3_u32 {v(vW)}, v9, v10, s33")
    A("s_lshl_b32 s35, s28, 12")
    A(f"s_add_u32 s35, s35, {WO_L}")
    A("v_mov_b32 v164, 0")
    A("s_mov_b32 s49, 1")
    A("s_getpc_b64 s[56:57]")
    g.label("L_pc0")
    A("s_add_u32 s56, s56, L_qk-L_pc0")
    A("s_addc_u32 s57, s57, 0")
    if nb0 == 0:
        A("s_barrier")
    GNT = " nt" if gnt else ""

    def tile_gu(lo=0, hi=8):
        A("s_mul_i32 s33, s28, 229376")
        A("s_lshl_b32 s34, s50, 1")
        A("s_add_u32 s33, s33, s34")
        A("v_lshrrev_b32 v9, 2, v0")
        A("v_mul_u32_u24 v9, 3584, v9")
        A("v_lshlrev_b32 v10, 4, v3")
        A("v_add3_u32 v9, v9, v10, s33")
        A("s_lshl_b32 s34, s28, 12")
        A(f"s_add_u32 s34, s34, {GU_L}")
        cur = 0
        for j in range(lo, hi):
            i, mat = j >> 1, j & 1
            if i != cur:
                A(f"v_add_u32 v9, {57344*(i-cur)}, v9")
                cur = i
            A(f"s_add_u32 m0, s34, {32768*mat+1024*i}")
            A("s_nop 0")
            A(f"global_load_lds_dwordx4 v9, {('s[16:17]','s[18:19]')[mat]}{GNT}")

    def tile_dn(lo=0, hi=7):
        A("s_mul_i32 s33, s28, 229376")
        A("s_lshl_b32 s34, s50, 1")
        A("s_add_u32 s33, s33, s34")
        A("v_lshrrev_b32 v9, 1, v0")
        A("v_lshlrev_b32 v9, 10, v9")
        A("v_and_b32 v10, 1, v0")
        A("v_lshlrev_b32 v10, 4, v10")
        A("v_add3_u32 v9, v9, v10, s33")
        A("s_mul_i32 s34, s28, 7168")
        A(f"s_add_u32 s34, s34, {WD_L}")
        cur = 0
        for i in range(lo, hi):
            if i != cur:
                A(f"v_add_u32 v9, {0x8000*(i-cur)}, v9")
                cur = i
            A(f"s_add_u32 m0, s34, {1024*i}")
            A("s_nop 0")
            A(f"global_load_lds_dwordx4 v9, s[20:21]{GNT}")

    def wdma():
        for m in range(4):
            if m > 0:
                A(f"v_add_u32 {v(vW)}, 16384, {v(vW)}")
            A(f"s_add_u32 m0, s35, {m*1024}")
            A("s_nop 0")
            A(f"global_load_lds_dwordx4 {v(vW)}, s[12:13]{WNT}")

    def tiles():
        Lx = g.newlabel("notile")
        Ld2 = g.newlabel("dtile")
        A("s_cmp_eq_u32 s51, 0")
        A(f"s_cbranch_scc1 {Lx}")
        A("s_cmp_eq_u32 s51, 2")
        A(f"s_cbranch_scc1 {Ld2}")
        tile_gu()
        A(f"s_branch {Lx}")
        g.label(Ld2)
        tile_dn()
        g.label(Lx)

    if tpos == 1:
        tiles()

    def check():
        Ls = g.newlabel("nocall")
        A(f"ds_read_b32 v165, v164 offset:{FLG}")
        A("s_waitcnt lgkmcnt(0)")
        A("v_readfirstlane_b32 s48, v165")
        A("s_cmp_eq_u32 s48, s49")
        A(f"s_cbranch_scc0 {Ls}")
        A("s_swappc_b64 s[54:55], s[56:57]")
        g.label(Ls)

    order = []
    order += [("K", m) for m in range(16)]
    order += [("V", m) for m in range(16)]
    k15 = order.index(("K", 15))
    first_check = k15 + depth
    for i, op in enumerate(order):
        if tpos >= 2 and i == tpos:
            tiles()
        issue(op)
        if nb0 and i == nb0 - 1:
            A("s_barrier")
        if i == first_check:
            wait_for(("K", 15))
        if i >= first_check and op[0] != "R":
            check()
    Lw = g.newlabel("now")
    A("s_cmp_eq_u32 s51, 0")
    A(f"s_cbranch_scc1 {Lw}")
    wdma()
    g.label(Lw)
    stamp(g, 1, stamps)
    L = g.newlabel("wq")
    Ld = g.newlabel("wq_done")
    A(f"s_mov_b32 s46, {SPIN*16}")
    g.label(L)
    A("s_cmp_eq_u32 s49, 2")
    A(f"s_cbranch_scc1 {Ld}")
    check()
    A("s_sub_u32 s46, s46, 1")
    A("s_cmp_lg_u32 s46, 0")
    A(f"s_cbranch_scc1 {L}")
    g.label(Ld)
    for i in range(66):
        A(f"v_mov_b32 {v(KR+i)}, 0")
    A("v_lshlrev_b32 v9, 3, v3")
    stamp(g, 5, stamps)
    L = g.newlabel("wg")
    Ld = g.newlabel("wg_done")
    A(f"s_mov_b32 s46, {SPIN*16}")
    g.label(L)
    A(f"ds_read_b32 v165, v164 offset:{FLG+8}")
    A("s_waitcnt lgkmcnt(0)")
    A("v_readfirstlane_b32 s48, v165")
    A("s_cmp_eq_u32 s48, 1")
    A(f"s_cbranch_scc1 {Ld}")
    A("s_sub_u32 s46, s46, 1")
    A("s_cmp_lg_u32 s46, 0")
    A(f"s_cbranch_scc1 {L}")
    g.label(Ld)
    stamp(g, 6, stamps)
    A(f"ds_read_b64 v[12:13], v9 offset:{GST}")
    A("s_waitcnt lgkmcnt(0)")
    for m in range(4):
        A(f"v_sub_f32 {v(Z+m)}, {v(Z+m)}, v12")
        A(f"v_mul_f32 {v(Z+m)}, s44, {v(Z+m)}")
        A(f"v_exp_f32 {v(Z+m)}, {v(Z+m)}")
    A("s_nop 0")
    for m in range(4):
        A(f"v_mul_f32 {v(Z+m)}, {v(Z+m)}, v13")
        A(f"v_cvt_pk_bf16_f32 {v(Z+m)}, {v(Z+m)}, {v(Z+m)}")
    A("s_nop 1")
    for m in range(16):
        beta = m & 3
        k = m >> 2
        for j in range(4):
            rot = (4 * (j - beta)) & 15
            dst = KR + 4 * m + 2 + (j >> 1)
            msk = vMH if (j & 1) else vML
            ctl = f"row_ror:{rot}" if rot else "quad_perm:[0,1,2,3]"
            A(f"v_and_b32_dpp {v(dst)}, {v(Z+k)}, {v(msk)} {ctl} row_mask:0xf bank_mask:{1<<j:#x}")
    stamp(g, 7, stamps)
    A("s_nop 1")
    for m in range(16):
        wait_for(("V", m))
        c0 = "0" if m == 0 else v(O0, 4)
        c1 = "0" if m == 0 else v(O1, 4)
        A(f"v_mfma_f32_16x16x32_bf16 {v(O0,4)}, {v(VR+4*m,4)}, {v(KR+4*m+2,4)}, {c0}")
        A(f"v_mfma_f32_16x16x32_bf16 {v(O1,4)}, {v(VR+4*m,4)}, {v(KR+4*m,4)}, {c1}")
    stamp(g, 8, stamps)
    throttle[0] = False
    if bare:
        A("s_branch L_end")
    A("s_lshl_b32 s33, s28, 11")
    A("v_lshlrev_b32 v9, 5, v0")
    A("v_add_u32 v9, s33, v9")
    A("s_nop 6")
    A(f"ds_write_b128 v9, {v(O0,4)} offset:{RED}")
    A(f"ds_write_b128 v9, {v(O1,4)} offset:{RED+16}")
    A("s_waitcnt lgkmcnt(0)")
    A("s_barrier")
    Lr = g.newlabel("role")
    Lr2 = g.newlabel("role2")
    Lr3 = g.newlabel("role3")
    A("s_cmp_lg_u32 s51, 0")
    A(f"s_cbranch_scc1 {Lr}")
    wdma()
    A(f"s_branch {Lr3}")
    g.label(Lr)
    A("s_cmp_eq_u32 s51, 2")
    A(f"s_cbranch_scc1 {Lr2}")
    tile_gu(0, tg1)
    A(f"s_branch {Lr3}")
    g.label(Lr2)
    tile_dn(0, td1)
    g.label(Lr3)
    A("s_lshl_b32 s36, s32, 15")
    A("s_lshl_b32 s37, s28, 8")
    A("s_add_u32 s36, s36, s37")
    A(f"s_add_u32 s36, s36, {OP:#x}")
    A("v_lshlrev_b32 v9, 11, v1")
    A("v_and_b32 v4, 15, v0")
    A("v_lshlrev_b32 v10, 4, v4")
    A("v_add3_u32 v10, v9, v10, s36")
    for i in range(1, 4):
        A(f"v_add_u32 {v(10+i)}, {8192*i}, v10")
    A("s_lshr_b32 s33, s28, 1")
    A("s_lshl_b32 s33, s33, 11")
    A("s_and_b32 s34, s28, 1")
    A("s_lshl_b32 s34, s34, 7")
    A("s_add_u32 s33, s33, s34")
    A(f"s_add_u32 s33, s33, {WO_L}")
    A("v_lshlrev_b32 v5, 13, v1")
    A("v_lshlrev_b32 v6, 9, v2")
    A("v_lshlrev_b32 v7, 3, v3")
    A("v_add3_u32 v5, v5, v6, v7")
    A("v_add_u32 v5, s33, v5")
    A("s_lshl_b32 s33, s28, 7")
    A("v_lshlrev_b32 v6, 3, v4")
    A("v_add_u32 v6, s33, v6")
    A("v_lshlrev_b32 v7, 4, v1")
    A("v_add_u32 v7, s33, v7")
    A("s_waitcnt vmcnt(0)")
    stamp(g, 9, stamps)
    A("s_barrier")
    BR = 96
    AR = 88
    DR = 112
    for kk in range(2):
        for n in range(2):
            for u in range(2):
                A(f"ds_read_b64_tr_b16 {v(BR+8*kk+4*n+2*u,2)}, v5 offset:{64*kk+256*u+32*n}")
    loads = [f"global_load_dwordx4 {v(16+4*i,4)}, {v(10+i)}, s[26:27] sc1" for i in range(4)]
    poll_loop(g, loads, list(range(16, 32)), 9, "t1")
    stamp(g, 10, stamps)

    for k in range(4):
        A(f"v_add_f32 {v(16+k)}, {v(16+k)}, {v(20+k)}")
        A(f"v_add_f32 {v(24+k)}, {v(24+k)}, {v(28+k)}")
    for k in range(4):
        A(f"v_add_f32 {v(16+k)}, {v(16+k)}, {v(24+k)}")
    swap_reduce(g, [16, 17, 18, 19], [20, 21, 22, 23], "v_add_f32", (16, 32))
    A("v_cvt_pk_bf16_f32 v16, v16, v17")
    A("v_cvt_pk_bf16_f32 v17, v18, v19")
    A(f"ds_write_b64 v6, v[16:17] offset:{AO}")
    for kk in range(2):
        A(f"ds_read_b128 {v(AR+4*kk,4)}, v7 offset:{AO+64*kk}")
    A("s_waitcnt lgkmcnt(0)")
    for n in range(2):
        A(f"v_mfma_f32_16x16x32_bf16 {v(DR+4*n,4)}, {v(AR,4)}, {v(BR+4*n,4)}, 0")
    for n in range(2):
        A(f"v_mfma_f32_16x16x32_bf16 {v(DR+4*n,4)}, {v(AR+4,4)}, {v(BR+8+4*n,4)}, {v(DR+4*n,4)}")
    A("s_lshl_b32 s33, s28, 7")
    A("v_lshlrev_b32 v9, 2, v4")
    A("v_add_u32 v9, s33, v9")
    A("s_nop 6")
    A(f"ds_write_b32 v9, {v(DR)} offset:{R2}")
    A(f"ds_write_b32 v9, {v(DR+4)} offset:{R2+64}")
    A("s_waitcnt lgkmcnt(0)")
    A("s_barrier")
    A("s_cmp_eq_u32 s51, 0")
    A("s_cbranch_scc1 L_end")
    A("s_cmp_eq_u32 s51, 2")
    A("s_cbranch_scc1 L_sdown")
    GNT = " nt" if gnt else ""
    tile_gu(tg1, 8)
    A("s_lshl_b32 s36, s28, 8")
    A(f"s_add_u32 s36, s36, {YP:#x}")
    A("v_lshrrev_b32 v5, 5, v0")
    A("v_and_b32 v6, 1, v1")
    A("v_lshlrev_b32 v9, 11, v5")
    A("v_lshlrev_b32 v10, 12, v6")
    A("v_lshlrev_b32 v11, 4, v4")
    A("v_add3_u32 v10, v9, v10, v11")
    A("v_add_u32 v10, s36, v10")
    for i in range(1, 4):
        A(f"v_add_u32 {v(10+i)}, {8192*i}, v10")
    A("s_lshl_b32 s33, s28, 7")
    A("v_lshlrev_b32 v6, 10, v5")
    A("v_lshlrev_b32 v7, 3, v4")
    A("v_add3_u32 v6, v6, v7, s33")
    A(f"ds_read_b64 v[40:41], v6 offset:{XL}")
    A("v_lshlrev_b32 v7, 10, v5")
    A(f"ds_read_u16 v42, v7 offset:{XL}")
    A("s_lshl_b32 s34, s28, 3")
    A("v_lshlrev_b32 v7, 6, v5")
    A("v_add_u32 v8, s34, v7")
    A("v_and_b32 v9, 7, v0")
    A("v_lshlrev_b32 v9, 3, v9")
    A("v_add_u32 v7, v7, v9")
    A("s_lshl_b32 s34, s28, 8")
    A("v_lshlrev_b32 v14, 7, v5")
    A("v_lshlrev_b32 v15, 3, v4")
    A("v_add3_u32 v14, v14, v15, s34")
    A("v_and_b32 v15, 1, v0")
    A("v_lshlrev_b32 v15, 7, v15")
    A("v_lshlrev_b32 v9, 4, v1")
    A("v_add3_u32 v15, v15, v9, s34")
    A("s_lshl_b32 s33, s28, 12")
    A(f"s_add_u32 s33, s33, {GU_L}")
    A("v_lshlrev_b32 v44, 9, v1")
    A("v_lshlrev_b32 v45, 6, v2")
    A("v_lshlrev_b32 v46, 3, v3")
    A("v_add3_u32 v44, v44, v45, v46")
    A("v_add_u32 v44, s33, v44")
    A("s_waitcnt lgkmcnt(0)")
    A("v_lshlrev_b32 v36, 16, v40")
    A("v_and_b32 v37, 0xffff0000, v40")
    A("v_lshlrev_b32 v38, 16, v41")
    A("v_and_b32 v39, 0xffff0000, v41")
    A("v_lshlrev_b32 v42, 16, v42")
    stamp(g, 11, stamps)
    loads = [f"global_load_dwordx4 {v(16+4*i,4)}, {v(10+i)}, s[26:27] sc1" for i in range(4)]
    poll_loop(g, loads, list(range(16, 32)), 9, "t2")
    stamp(g, 12, stamps)
    GB = 96
    for mat in range(2):
        for n in range(2):
            for kk in range(2):
                for u in range(2):
                    A(f"ds_read_b64_tr_b16 {v(GB+16*mat+8*n+4*kk+2*u,2)}, v44 offset:{32768*mat+2048*kk+256*u+32*n}")
    for k in range(4):
        A(f"v_add_f32 {v(16+k)}, {v(16+k)}, {v(20+k)}")
        A(f"v_add_f32 {v(24+k)}, {v(24+k)}, {v(28+k)}")
    for k in range(4):
        A(f"v_add_f32 {v(16+k)}, {v(16+k)}, {v(24+k)}")
    swap_reduce(g, [16, 17, 18, 19], [20, 21, 22, 23], "v_add_f32", (16,))
    for i in (0, 2):
        A(f"v_cvt_pk_bf16_f32 v20, {v(16+i)}, {v(17+i)}")
        A(f"v_lshlrev_b32 {v(16+i)}, 16, v20")
        A(f"v_and_b32 {v(17+i)}, 0xffff0000, v20")
        A(f"v_add_f32 {v(16+i)}, {v(16+i)}, {v(36+i)}")
        A(f"v_add_f32 {v(17+i)}, {v(17+i)}, {v(37+i)}")
        A(f"v_cvt_pk_bf16_f32 {v(24+i//2)}, {v(16+i)}, {v(17+i)}")
        A(f"v_lshlrev_b32 {v(16+i)}, 16, {v(24+i//2)}")
        A(f"v_and_b32 {v(17+i)}, 0xffff0000, {v(24+i//2)}")
    for i in range(4):
        A(f"v_sub_f32 {v(20+i)}, {v(16+i)}, v42")
    A("v_add_f32 v26, v20, v21")
    A("v_mul_f32 v27, v20, v20")
    A("v_add_f32 v26, v26, v22")
    A("v_fmac_f32 v27, v21, v21")
    A("v_add_f32 v26, v26, v23")
    A("v_fmac_f32 v27, v22, v22")
    A("v_fmac_f32 v27, v23, v23")
    dpp_steps(g, [26, 27], "v_add_f32", ["quad_perm:[1,0,3,2]", "quad_perm:[2,3,0,1]", "row_ror:4", "row_ror:8"])
    A(f"ds_write_b64 v8, v[26:27] offset:{LS}")
    A("s_waitcnt lgkmcnt(0)")
    A("s_barrier")
    A(f"ds_read_b64 v[26:27], v7 offset:{LS}")
    A("s_waitcnt lgkmcnt(0)")
    dpp_steps(g, [26, 27], "v_add_f32", ["quad_perm:[1,0,3,2]", "quad_perm:[2,3,0,1]", "row_ror:4"])
    A(f"v_mul_f32 v26, {INV512:#x}, v26")
    A(f"v_mul_f32 v27, {INV512:#x}, v27")
    A("v_fma_f32 v27, -v26, v26, v27")
    A("v_max_f32 v27, 0, v27")
    A("v_add_f32 v26, v26, v42")
    ln_scalars(g, 26, 27, 28, 29)
    ln_finish_pair(g, 16, 17, 26, 27, 28, [30, 31, 32, 33, 34, 35], 24)
    ln_finish_pair(g, 18, 19, 26, 27, 28, [30, 31, 32, 33, 34, 35], 25)
    A(f"ds_write_b64 v14, v[24:25] offset:{HN}")
    for kk in range(2):
        A(f"ds_read_b128 {v(AR+4*kk,4)}, v15 offset:{HN+64*kk}")
    A("s_waitcnt lgkmcnt(0)")
    GD = 128
    for t in range(4):
        A(f"v_mfma_f32_16x16x32_bf16 {v(GD+4*t,4)}, {v(AR,4)}, {v(GB+8*t,4)}, 0")
    for t in range(4):
        A(f"v_mfma_f32_16x16x32_bf16 {v(GD+4*t,4)}, {v(AR+4,4)}, {v(GB+8*t+4,4)}, {v(GD+4*t,4)}")
    A("s_lshl_b32 s33, s28, 9")
    A("v_lshlrev_b32 v9, 2, v4")
    A("v_add_u32 v9, s33, v9")
    A("s_nop 4")
    for t in range(4):
        for b in range(2):
            A(f"ds_write_b32 v9, {v(GD+4*t+b)} offset:{R4+256*b+64*t}")
    A("s_waitcnt lgkmcnt(0)")
    A("s_barrier")
    A("s_branch L_end")
    g.label("L_sdown")
    tile_dn(td1, 7)
    A("s_mul_i32 s33, s28, 448")
    A(f"s_add_u32 s33, s33, {AC:#x}")
    A("v_min_u32 v5, 55, v0")
    A("v_cmp_lt_u32 vcc, 27, v5")
    A("v_mov_b32 v6, 0")
    A("v_mov_b32 v7, 3136")
    A("v_cndmask_b32 v6, v6, v7, vcc")
    A("v_lshlrev_b32 v5, 4, v5")
    A("v_add3_u32 v9, v5, v6, s33")
    A("s_lshl_b32 s34, s28, 10")
    A("v_add_u32 v5, s34, v5")
    A("v_and_b32 v6, 1, v0")
    A("v_mul_u32_u24 v6, 448, v6")
    A("v_lshlrev_b32 v7, 4, v1")
    A("v_add3_u32 v6, v6, v7, s34")
    A("s_mul_i32 s33, s28, 7168")
    A(f"s_add_u32 s33, s33, {WD_L}")
    A("v_lshlrev_b32 v11, 8, v1")
    A("v_lshlrev_b32 v12, 5, v2")
    A("v_lshlrev_b32 v13, 3, v3")
    A("v_add3_u32 v11, v11, v12, v13")
    A("v_add_u32 v11, s33, v11")
    A("s_lshl_b32 s33, s28, 7")
    A("v_lshlrev_b32 v10, 2, v4")
    A("v_add_u32 v10, s33, v10")
    A("s_waitcnt vmcnt(0)")
    for kk in range(7):
        for u in range(2):
            A(f"ds_read_b64_tr_b16 {v(48+4*kk+2*u,2)}, v11 offset:{1024*kk+128*u}")
    stamp(g, 13, stamps)
    poll_loop(g, ["global_load_dwordx4 v[84:87], v9, s[26:27] sc1"], [84, 85, 86, 87], 12, "t3", slp=True)
    stamp(g, 14, stamps)
    A(f"ds_write_b128 v5, v[84:87] offset:{RED}")
    for kk in range(7):
        A(f"ds_read_b128 {v(16+4*kk,4)}, v6 offset:{RED+64*kk}")
    A("s_waitcnt lgkmcnt(0)")
    for kk in range(7):
        c = "0" if kk == 0 else v(DR, 4)
        A(f"v_mfma_f32_16x16x32_bf16 {v(DR,4)}, {v(16+4*kk,4)}, {v(48+4*kk,4)}, {c}")
    A("s_nop 7")
    A(f"ds_write_b32 v10, {v(DR)} offset:{R5}")
    A(f"ds_write_b32 v10, {v(DR+1)} offset:{R5+64}")
    A("s_waitcnt lgkmcnt(0)")
    A("s_barrier")
    A("s_branch L_end")

    g.label("L_qk")
    stamp(g, 2, stamps)
    A("v_lshlrev_b32 v9, 8, v3")
    A("v_lshlrev_b32 v10, 6, v1")
    A("v_lshlrev_b32 v11, 4, v2")
    A("v_add3_u32 v9, v9, v10, v11")
    A(f"ds_read_b128 {v(QB,4)}, v9 offset:{QL}")
    A("s_waitcnt lgkmcnt(0)")
    for m in range(16):
        A(f"v_mfma_f32_16x16x32_bf16 {v(KR+4*m,4)}, {v(KR+4+4*m,4)}, {v(QB,4)}, 0")
    A("s_nop 3")
    for step in range(3):
        for m in range(16):
            D = KR + 4 * m
            beta = m & 3
            k = m >> 2
            e = (beta + 1 + step) & 3
            rot = (4 * (beta - e)) & 15
            if step < 2:
                A(f"v_add_f32_dpp {v(D+beta)}, {v(D+e)}, {v(D+beta)} row_ror:{rot} {DPP}")
            else:
                A(f"v_add_f32_dpp {v(Z+k)}, {v(D+e)}, {v(D+beta)} row_ror:{rot} row_mask:0xf bank_mask:{1<<beta:#x}")
    for m in range(0, 4, 2):
        A(f"v_cvt_pk_bf16_f32 v9, {v(Z+m)}, {v(Z+m+1)}")
        A("v_lshlrev_b32 v10, 16, v9")
        A("v_and_b32 v11, 0xffff0000, v9")
        A("v_mul_f32 v10, s45, v10")
        A("v_mul_f32 v11, s45, v11")
        A("v_cvt_pk_bf16_f32 v9, v10, v11")
        A(f"v_lshlrev_b32 {v(Z+m)}, 16, v9")
        A(f"v_and_b32 {v(Z+m+1)}, 0xffff0000, v9")
    A(f"v_max3_f32 v12, {v(Z)}, {v(Z+1)}, {v(Z+2)}")
    A(f"v_max_f32 v12, v12, {v(Z+3)}")
    dpp_steps(g, [12], "v_max_f32", ["row_ror:4", "row_ror:8"])
    swap_reduce(g, [12], [9], "v_max_f32", (16, 32))
    for m in range(4):
        A(f"v_sub_f32 {v(KR+m)}, {v(Z+m)}, v12")
        A(f"v_mul_f32 {v(KR+m)}, s44, {v(KR+m)}")
        A(f"v_exp_f32 {v(KR+m)}, {v(KR+m)}")
    A("s_nop 0")
    A(f"v_add_f32 v13, {v(KR)}, {v(KR+1)}")
    A(f"v_add_f32 v13, v13, {v(KR+2)}")
    A(f"v_add_f32 v13, v13, {v(KR+3)}")
    dpp_steps(g, [13], "v_add_f32", ["row_ror:4", "row_ror:8"])
    swap_reduce(g, [13], [9], "v_add_f32", (16, 32))
    A("s_lshl_b32 s33, s28, 5")
    A("v_lshlrev_b32 v9, 3, v3")
    A("v_add_u32 v9, s33, v9")
    A(f"ds_write_b64 v9, v[12:13] offset:{WST}")
    A("v_mov_b32 v10, 1")
    A("s_waitcnt lgkmcnt(0)")
    A(f"ds_add_u32 v164, v10 offset:{FLG+4}")
    A("s_mov_b32 s49, 2")
    stamp(g, 4, stamps)
    A("s_setpc_b64 s[54:55]")

    g.label("L_ctrl")
    stamp(g, 0, stamps)
    Ln = g.newlabel("nonce")
    A("s_cmp_lg_u32 s2, 255")
    A(f"s_cbranch_scc1 {Ln}")
    A("s_memrealtime s[52:53]")
    A("s_waitcnt lgkmcnt(0)")
    A("s_or_b32 s52, s52, 1")
    A("v_mov_b32 v12, s52")
    A("v_mov_b32 v13, 0")
    A("v_mov_b32 v14, 0")
    A("s_mov_b64 exec, 0x1")
    A("global_atomic_cmpswap v14, v[12:13], s[24:25] sc1")
    A("s_mov_b64 exec, -1")
    g.label(Ln)
    A("v_lshlrev_b32 v1, 4, v0")
    A("v_mov_b32 v164, 0")
    A("v_mov_b32 v165, 0")
    A("v_mov_b32 v166, 0")
    A("v_mov_b32 v167, 0")
    A(f"ds_write_b128 v164, v[164:167] offset:{FLG}")
    A("s_waitcnt lgkmcnt(0)")
    if bare == 1:
        A("v_mov_b32 v165, 1")
        A(f"ds_write_b32 v164, v165 offset:{FLG}")
        A(f"ds_write_b32 v164, v165 offset:{FLG+8}")
        A("s_waitcnt lgkmcnt(0)")
        A("s_barrier")
        A("s_branch L_end")
    A("s_bfe_u32 s33, s2, 0x20003")
    A("s_lshl_b32 s34, s58, 2")
    A("s_add_u32 s36, s33, s34")
    A("s_bfe_u32 s37, s2, 0x20005")
    A("v_lshrrev_b32 v2, 4, v0")
    A("v_and_b32 v3, 15, v0")
    A("s_lshl_b32 s34, s29, 12")
    A("s_lshl_b32 s35, s30, 11")
    A("s_add_u32 s34, s34, s35")
    A("s_lshl_b32 s35, s59, 7")
    A("s_add_u32 s34, s34, s35")
    A(f"s_add_u32 s38, s34, {YP:#x}")
    WQR = 16

    def prefetch():
        A("s_lshr_b32 s33, s2, 3")
        A("v_lshrrev_b32 v140, 4, v0")
        A("s_cmp_lt_u32 s58, 4")
        A("s_cselect_b32 s34, 3, 2")
        A("v_min_u32 v140, s34, v140")
        A("v_lshlrev_b32 v140, 10, v140")
        A("v_and_b32 v141, 15, v0")
        A("v_mul_u32_u24 v141, 3584, v141")
        A("s_mul_i32 s34, s33, 57344")
        A("s_lshl_b32 s35, s58, 7")
        A("s_add_u32 s34, s34, s35")
        A("v_add3_u32 v140, v140, v141, s34")
        A("global_load_dword v142, v140, s[16:17]")
        A("global_load_dword v143, v140, s[18:19]")
        A("v_min_u32 v140, 55, v0")
        A("v_lshlrev_b32 v140, 10, v140")
        A("s_mul_i32 s34, s33, 57344")
        A("s_add_u32 s34, s34, s35")
        A("v_add_u32 v140, s34, v140")
        A("global_load_dword v144, v140, s[20:21]")

    def fills():
        for i in range(4):
            A(f"v_mov_b32 {v(16+i)}, -1")
        A("s_lshl_b32 s33, s32, 4")
        A("s_add_u32 s33, s33, s31")
        A("s_lshl_b32 s34, s33, 11")
        A(f"s_add_u32 s34, s34, {OP:#x}")
        A("v_add_u32 v160, s34, v1")
        A("global_store_dwordx4 v160, v[16:19], s[26:27] sc1")
        A("global_store_dwordx4 v160, v[16:19], s[26:27] offset:1024 sc1")
        A("v_add_u32 v161, s38, v1")
        A("s_mov_b64 exec, 0xff")
        A("global_store_dwordx4 v161, v[16:19], s[26:27] sc1")
        A("s_mov_b64 exec, -1")
        Lskip = g.newlabel("skip_acs")
        A("s_cmp_lg_u32 s51, 1")
        A(f"s_cbranch_scc1 {Lskip}")
        A("s_lshl_b32 s34, s50, 1")
        A(f"s_add_u32 s34, s34, {AC:#x}")
        A("v_lshrrev_b32 v162, 2, v0")
        A("v_mul_u32_u24 v162, 3584, v162")
        A("v_and_b32 v163, 3, v0")
        A("v_lshlrev_b32 v163, 4, v163")
        A("v_add3_u32 v162, v162, v163, s34")
        A("s_mov_b64 exec, 0xff")
        A("global_store_dwordx4 v162, v[16:19], s[26:27] sc1")
        A("s_mov_b64 exec, -1")
        g.label(Lskip)

    def nonce_loop(first_loaded):
        L = g.newlabel("nn")
        Ld = g.newlabel("nn_done")
        A(f"s_mov_b32 s46, {SPIN}")
        if first_loaded:
            A("s_waitcnt vmcnt(0)")
            A("v_readfirstlane_b32 s47, v5")
            A("s_cmp_lg_u32 s47, 0")
            A(f"s_cbranch_scc1 {Ld}")
        g.label(L)
        A("global_load_dword v5, v6, s[24:25] sc1")
        A("s_waitcnt vmcnt(0)")
        A("v_readfirstlane_b32 s47, v5")
        A("s_cmp_lg_u32 s47, 0")
        A(f"s_cbranch_scc1 {Ld}")
        if SLP:
            A(f"s_sleep {SLP}")
        A("s_sub_u32 s46, s46, 1")
        A("s_cmp_lg_u32 s46, 0")
        A(f"s_cbranch_scc1 {L}")
        g.label(Ld)

    Lnp = g.newlabel("noprod")
    Lnp2 = g.newlabel("front_done")
    A("s_cmp_ge_u32 s2, 128")
    A(f"s_cbranch_scc1 {Lnp}")
    A("global_load_dwordx4 v[4:7], v1, s[4:5]")
    A("global_load_dwordx4 v[8:11], v1, s[4:5] offset:1024")
    A("s_lshl_b32 s33, s37, 20")
    A("s_lshl_b32 s34, s36, 8")
    A("s_add_u32 s33, s33, s34")
    A("v_lshlrev_b32 v12, 13, v2")
    A("v_lshlrev_b32 v13, 4, v3")
    A("v_add3_u32 v12, v12, v13, s33")
    for i in range(32):
        if i:
            A("v_add_u32 v12, 0x8000, v12")
        A(f"global_load_dwordx4 {v(WQR+4*i,4)}, v12, s[10:11] nt")
    if b0 == 1:
        A("s_barrier")
    A("s_waitcnt vmcnt(32)")
    stamp(g, 13, stamps)
    A(f"ds_write_b128 v1, v[4:7] offset:{XL}")
    A(f"ds_write_b128 v1, v[8:11] offset:{XL+1024}")
    unpack8(g, 144, 4)
    unpack8(g, 152, 8)
    layernorm2(g, 144, 4, [12, 13, 14, 15] + list(range(160, 168)))
    A(f"ds_write_b128 v1, {v(4,4)} offset:{XN}")
    A(f"ds_write_b128 v1, {v(8,4)} offset:{XN+1024}")
    A("v_bfe_u32 v160, v0, 3, 1")
    A("v_lshlrev_b32 v160, 10, v160")
    A("v_lshlrev_b32 v161, 1, v2")
    A("s_lshl_b32 s33, s37, 8")
    A("v_add3_u32 v160, v160, v161, s33")
    A("s_waitcnt lgkmcnt(0)")
    A("v_and_b32 v5, 7, v0")
    A("v_mov_b32 v6, 0xffff")
    A("v_mov_b32 v7, 0xffff0000")
    for d in range(4):
        A(f"v_mov_b32 {v(8+d)}, 0")
        A(f"v_cmp_eq_u32 vcc, {2*d}, v5")
        A("s_nop 1")
        A(f"v_cndmask_b32 {v(8+d)}, {v(8+d)}, v6, vcc")
        A(f"v_cmp_eq_u32 vcc, {2*d+1}, v5")
        A("s_nop 1")
        A(f"v_cndmask_b32 {v(8+d)}, {v(8+d)}, v7, vcc")
    A("v_mov_b32 v6, 0")
    A("global_load_dword v5, v6, s[24:25] sc1")
    QD = 12
    for half in range(2):
        for i in range(16):
            A(f"ds_read_u16 {v(144+i)}, v160 offset:{XN+8*(16*half+i)}")
        A("s_waitcnt lgkmcnt(0)")
        if half == 0:
            A("s_waitcnt vmcnt(17)")
            if b0 == 2:
                A("s_barrier")
        else:
            A("s_waitcnt vmcnt(1)")
            if b0 == 3:
                A("s_barrier")
        stamp(g, 14 + half, stamps)
        for i in range(16):
            ii = 16 * half + i
            Bq = 160 + 4 * (i % 2)
            A(f"v_lshl_or_b32 {v(144+i)}, {v(144+i)}, 16, {v(144+i)}")
            for d in range(4):
                A(f"v_and_b32 {v(Bq+d)}, {v(144+i)}, {v(8+d)}")
            A("s_nop 1")
            c = "0" if ii == 0 else v(QD, 4)
            A(f"v_mfma_f32_16x16x32_bf16 {v(QD,4)}, {v(WQR+4*ii,4)}, {v(Bq,4)}, {c}")
        if half == 0:
            A("v_bfe_u32 v160, v0, 3, 1")
            A("v_lshlrev_b32 v160, 10, v160")
            A("v_lshlrev_b32 v161, 1, v2")
            A("v_add3_u32 v160, v160, v161, s33")
    stamp(g, 16, stamps)
    nonce_loop(True)
    stamp(g, 1, stamps)
    A("s_lshl_b32 s33, s37, 5")
    A("s_add_u32 s33, s33, s36")
    A("s_lshl_b32 s33, s33, 11")
    A("v_add_u32 v160, s33, v1")
    A(f"v_mov_b32 v20, {v(QD+3)}")
    A("v_mov_b32 v21, s47")
    A("v_mov_b32 v22, s47")
    A("v_mov_b32 v23, s47")
    A(f"v_mov_b32 {v(QD+3)}, s47")
    A(f"global_store_dwordx4 v160, {v(QD,4)}, s[26:27] offset:{QP} sc1")
    A(f"global_store_dwordx4 v160, v[20:23], s[26:27] offset:{QP+1024} sc1")
    if b0 == 4:
        A("s_barrier")
    fills()
    A(f"s_branch {Lnp2}")
    g.label(Lnp)
    if b0:
        A("s_barrier")
    A("global_load_dwordx4 v[8:11], v1, s[4:5]")
    A("global_load_dwordx4 v[12:15], v1, s[4:5] offset:1024")
    fills()
    A("v_mov_b32 v6, 0")
    nonce_loop(False)
    stamp(g, 1, stamps)
    A(f"ds_write_b128 v1, v[8:11] offset:{XL}")
    A(f"ds_write_b128 v1, v[12:15] offset:{XL+1024}")
    g.label(Lnp2)
    A("v_bfe_u32 v4, v0, 2, 2")
    A("v_and_b32 v5, 3, v0")
    A("v_lshlrev_b32 v4, 16, v4")
    A("v_lshlrev_b32 v5, 11, v5")
    A("s_lshl_b32 s33, s29, 13")
    A("v_add3_u32 v4, v4, v5, s33")
    poll_pipe(g, lambda r: f"global_load_dword {v(r)}, v4, s[26:27] offset:{QP+2044} sc1", 1, 100, 3, [0], 16, "ql", anyok=bool(qany))
    A("v_lshrrev_b32 v4, 5, v0")
    A("v_bfe_u32 v5, v0, 3, 2")
    A("v_and_b32 v6, 7, v0")
    A("s_lshl_b32 s34, s30, 7")
    A("s_add_u32 s33, s33, s34")
    A("v_lshlrev_b32 v7, 11, v4")
    A("v_lshlrev_b32 v8, 8, v5")
    A("v_lshlrev_b32 v9, 4, v6")
    A("v_add3_u32 v7, v7, v8, v9")
    A("v_add_u32 v7, s33, v7")
    for k in range(1, 8):
        A(f"v_add_u32 {v(7+k)}, {4096*(k%2) + 65536*(k//2)}, v7")
    loads = []
    for ks in range(4):
        for hp in range(2):
            for gr in range(2):
                loads.append(f"global_load_dwordx4 {v(24+16*ks+8*hp+4*gr,4)}, {v(7+2*ks+hp)}, s[26:27] offset:{QP+1024*gr} sc1")
    poll_tag(g, loads, [24 + 4 * k + 3 for k in range(16)], 16, "qg")
    stamp(g, 2, stamps)
    for ks in range(4):
        for hp in range(2):
            A(f"v_mov_b32 {v(24+16*ks+8*hp+3)}, {v(24+16*ks+8*hp+4)}")
    for ks in range(1, 4):
        for hp in range(2):
            for i in range(4):
                A(f"v_add_f32 {v(24+8*hp+i)}, {v(24+8*hp+i)}, {v(24+16*ks+8*hp+i)}")
    A("v_lshlrev_b32 v7, 8, v4")
    A("v_lshlrev_b32 v8, 6, v5")
    A("v_lshlrev_b32 v9, 1, v6")
    A("v_add3_u32 v7, v7, v8, v9")
    for hp in range(2):
        for r in range(4):
            A(f"v_cvt_pk_bf16_f32 {v(16+4*hp+r)}, {v(24+8*hp+r)}, {v(24+8*hp+r)}")
            A(f"ds_write_b16 v7, {v(16+4*hp+r)} offset:{QL+512*hp+16*r}")
    A("s_waitcnt lgkmcnt(0)")
    A("v_mov_b32 v164, 0")
    A("v_mov_b32 v165, 1")
    A(f"ds_write_b32 v164, v165 offset:{FLG}")
    stamp(g, 3, stamps)
    if pfp == 1:
        prefetch()
    if bare == 2:
        A(f"ds_write_b32 v164, v165 offset:{FLG+8}")
        A("s_branch L_end")
    A("v_and_b32 v4, 31, v0")
    A("v_lshlrev_b32 v4, 3, v4")
    A("s_lshl_b32 s33, s32, 10")
    A("s_lshl_b32 s34, s31, 6")
    A(f"s_add_u32 s33, s33, {ST:#x}")
    A("s_add_u32 s34, s34, s33")
    A("v_add_u32 v6, s34, v1")
    A("v_add_u32 v7, s33, v1")
    A("s_lshl_b32 s33, s2, 2")
    A(f"s_add_u32 s33, s33, {FL:#x}")
    A("v_mov_b32 v8, s33")
    A("v_mov_b32 v9, s47")
    L = g.newlabel("wc")
    Ld = g.newlabel("wc_done")
    A(f"s_mov_b32 s46, {SPIN*16}")
    g.label(L)
    A(f"ds_read_b32 v166, v164 offset:{FLG+4}")
    A("s_waitcnt lgkmcnt(0)")
    A("v_readfirstlane_b32 s48, v166")
    A("s_cmp_eq_u32 s48, 512")
    A(f"s_cbranch_scc1 {Ld}")
    A("s_sub_u32 s46, s46, 1")
    A("s_cmp_lg_u32 s46, 0")
    A(f"s_cbranch_scc1 {L}")
    g.label(Ld)
    stamp(g, 4, stamps)
    A(f"ds_read_b64 v[12:13], v4 offset:{WST}")
    A("s_waitcnt lgkmcnt(0)")
    A("v_mov_b32 v14, v12")

    def red_s4(reg, tmp, op, full):
        dpp_steps(g, [reg], op, ["row_ror:4", "row_ror:8"])
        swap_reduce(g, [reg], [tmp], op, (16, 32) if full else (16,))

    red_s4(14, 15, "v_max_f32", False)
    A("v_sub_f32 v12, v12, v14")
    A("v_mul_f32 v12, s44, v12")
    A("v_exp_f32 v12, v12")
    A("s_nop 0")
    A("v_mul_f32 v13, v13, v12")
    red_s4(13, 15, "v_add_f32", False)
    A("v_mov_b32 v12, v14")
    A("v_mov_b32 v14, s47")
    A("v_mov_b32 v15, s47")
    A("s_mov_b64 exec, 0xf")
    A("global_store_dwordx4 v6, v[12:15], s[26:27] sc1")
    A("s_mov_b64 exec, 0x1")
    A("global_store_dword v8, v9, s[26:27] sc1")
    A("s_mov_b64 exec, -1")
    poll_pipe(g, lambda r: f"global_load_dwordx4 {v(r,4)}, v7, s[26:27] sc1", 4, 100, stk, [3], 16, "st", dst=12, slp=bool(sts), force=True)
    stamp(g, 5, stamps)
    A("v_mov_b32 v14, v12")
    red_s4(14, 15, "v_max_f32", True)
    A("v_sub_f32 v12, v12, v14")
    A("v_mul_f32 v12, s44, v12")
    A("v_exp_f32 v12, v12")
    A("s_nop 0")
    A("v_mul_f32 v13, v13, v12")
    red_s4(13, 15, "v_add_f32", True)
    A("v_rcp_f32 v15, v13")
    A("s_nop 0")
    A("v_fma_f32 v12, -v13, v15, 1.0")
    A("v_fmac_f32 v15, v12, v15")
    A("v_mov_b32 v12, v14")
    A("v_mov_b32 v13, v15")
    A("v_and_b32 v4, 3, v0")
    A("v_lshlrev_b32 v4, 3, v4")
    A(f"ds_write_b64 v4, v[12:13] offset:{GST}")
    A("s_waitcnt lgkmcnt(0)")
    A(f"ds_write_b32 v164, v165 offset:{FLG+8}")
    stamp(g, 6, stamps)
    if pfp == 2:
        prefetch()
    if bare == 3:
        A("s_branch L_end")
    Lnof = g.newlabel("nofl")
    A("s_cmp_eq_u32 s51, 0")
    A(f"s_cbranch_scc1 {Lnof}")
    A(f"v_add_u32 v6, {FL:#x}, v1")
    poll_pipe(g, lambda r: f"global_load_dwordx4 {v(r,4)}, v6, s[26:27] sc1", 4, 100, 1, [0, 1, 2, 3], 16, "fl")
    g.label(Lnof)
    A("s_lshl_b32 s33, s32, 15")
    A("s_lshl_b32 s34, s31, 11")
    A("s_add_u32 s33, s33, s34")
    A(f"s_add_u32 s33, s33, {OP:#x}")
    A("v_add_u32 v6, s33, v1")
    A("s_lshl_b32 s33, s32, 8")
    A(f"s_add_u32 s33, s33, {F1:#x}")
    A("s_lshl_b32 s34, s31, 2")
    A("s_add_u32 s34, s34, s33")
    A("v_mov_b32 v8, s34")
    A("v_lshlrev_b32 v7, 2, v3")
    A("v_add_u32 v7, s33, v7")
    A("v_mov_b32 v9, s47")
    A("s_barrier")
    stamp(g, 7, stamps)
    for c in range(2):
        for w in range(8):
            A(f"ds_read_b128 {v(16+32*c+4*w,4)}, v1 offset:{RED+2048*w+1024*c}")
    for c in range(2):
        A(f"s_waitcnt lgkmcnt({8*(1-c)})")
        b = 16 + 32 * c
        for i in range(4):
            A(f"v_add_f32 {v(b+i)}, {v(b+i)}, {v(b+4+i)}")
            A(f"v_add_f32 {v(b+8+i)}, {v(b+8+i)}, {v(b+12+i)}")
            A(f"v_add_f32 {v(b+16+i)}, {v(b+16+i)}, {v(b+20+i)}")
            A(f"v_add_f32 {v(b+24+i)}, {v(b+24+i)}, {v(b+28+i)}")
        for i in range(4):
            A(f"v_add_f32 {v(b+i)}, {v(b+i)}, {v(b+8+i)}")
            A(f"v_add_f32 {v(b+16+i)}, {v(b+16+i)}, {v(b+24+i)}")
        for i in range(4):
            A(f"v_add_f32 {v(b+i)}, {v(b+i)}, {v(b+16+i)}")
            A(f"v_min_u32 {v(b+i)}, 0xfffffffe, {v(b+i)}")
        A(f"global_store_dwordx4 v6, {v(b,4)}, s[26:27] offset:{1024*c} sc1")
    A("s_mov_b64 exec, 0x1")
    A("global_store_dword v8, v9, s[26:27] sc1")
    A("s_mov_b64 exec, -1")
    if pfp == 3:
        prefetch()
    poll_pipe(g, lambda r: f"global_load_dword {v(r)}, v7, s[26:27] sc1", 1, 100, f1k, [0], 16, "f1", slp=bool(f1s), force=True)
    stamp(g, 8, stamps)
    A("s_barrier")
    if pfp == 4:
        prefetch()
    A("v_and_b32 v4, 31, v0")
    A("v_lshlrev_b32 v4, 2, v4")
    A("v_add_u32 v6, s38, v4")
    A("s_barrier")
    stamp(g, 9, stamps)
    for w in range(8):
        A(f"ds_read_b32 {v(16+w)}, v4 offset:{R2+128*w}")
    A("s_waitcnt lgkmcnt(0)")
    for w in range(0, 8, 2):
        A(f"v_add_f32 {v(16+w)}, {v(16+w)}, {v(17+w)}")
    A("v_add_f32 v16, v16, v18")
    A("v_add_f32 v20, v20, v22")
    A("v_add_f32 v16, v16, v20")
    A("v_min_u32 v16, 0xfffffffe, v16")
    A("s_mov_b32 exec_hi, 0")
    A("global_store_dword v6, v16, s[26:27] sc1")
    A("s_mov_b64 exec, -1")
    A("s_cmp_eq_u32 s51, 0")
    A("s_cbranch_scc1 L_end")
    A("s_cmp_eq_u32 s51, 2")
    A("s_cbranch_scc1 L_cdown")
    A("v_lshrrev_b32 v4, 5, v0")
    A("v_and_b32 v5, 31, v0")
    A("v_lshlrev_b32 v10, 8, v4")
    A("v_lshlrev_b32 v11, 2, v5")
    A("v_add_u32 v10, v10, v11")
    A("s_lshl_b32 s33, s50, 1")
    A(f"s_add_u32 s33, s33, {AC:#x}")
    A("v_mul_u32_u24 v6, 3584, v4")
    A("v_lshlrev_b32 v11, 1, v5")
    A("v_add3_u32 v6, v6, v11, s33")
    A("s_mov_b32 s39, 0x200")
    A("s_mov_b32 s52, 0x55555555")
    A("s_mov_b32 s53, 0x55555555")
    A("s_barrier")
    A("s_barrier")
    stamp(g, 11, stamps)
    for w in range(8):
        A(f"ds_read_b32 {v(16+w)}, v10 offset:{R4+512*w}")
        A(f"ds_read_b32 {v(24+w)}, v10 offset:{R4+512*w+128}")
    A("s_waitcnt lgkmcnt(0)")
    for base in (16, 24):
        for w in range(0, 8, 2):
            A(f"v_add_f32 {v(base+w)}, {v(base+w)}, {v(base+w+1)}")
        A(f"v_add_f32 {v(base)}, {v(base)}, {v(base+2)}")
        A(f"v_add_f32 {v(base+4)}, {v(base+4)}, {v(base+6)}")
        A(f"v_add_f32 {v(base)}, {v(base)}, {v(base+4)}")
    A("v_cvt_pk_bf16_f32 v18, v16, v24")
    A("v_lshlrev_b32 v16, 16, v18")
    A("v_and_b32 v24, 0xffff0000, v18")
    A("v_mul_f32 v18, s44, v16")
    A("v_exp_f32 v18, -v18")
    A("s_nop 0")
    A("v_add_f32 v18, 1.0, v18")
    A("v_rcp_f32 v20, v18")
    A("s_nop 0")
    A("v_mul_f32 v22, v16, v20")
    A("v_mov_b32 v21, v22")
    A("v_fma_f32 v23, -v22, v18, v16")
    A("v_fmac_f32 v22, v23, v20")
    A("v_cmp_class_f32 vcc, v18, s39")
    A("s_nop 1")
    A("v_cndmask_b32 v22, v22, v21, vcc")
    bf16r(g, 22, 22, 18)
    A("v_mul_f32 v22, v22, v24")
    A("v_cvt_pk_bf16_f32 v18, v22, v22")
    A("v_and_b32 v18, 0xffff, v18")
    A("s_nop 1")
    A(f"v_mov_b32_dpp v19, v18 quad_perm:[1,0,3,2] {DPP}")
    A("v_lshl_or_b32 v18, v19, 16, v18")
    A("v_min_u32 v18, 0xfffffffe, v18")
    A("s_mov_b64 exec, s[52:53]")
    A("global_store_dword v6, v18, s[26:27] sc1")
    A("s_mov_b64 exec, -1")
    A("s_branch L_end")
    g.label("L_cdown")
    A("v_lshrrev_b32 v4, 3, v0")
    A("v_bfe_u32 v5, v0, 2, 1")
    A("v_and_b32 v7, 3, v0")
    A("v_lshlrev_b32 v8, 12, v4")
    A("v_lshlrev_b32 v10, 11, v5")
    A("v_lshlrev_b32 v11, 4, v7")
    A("v_add3_u32 v8, v8, v10, v11")
    A("s_lshl_b32 s33, s50, 2")
    A(f"s_add_u32 s33, s33, {YP:#x}")
    A("v_add_u32 v8, s33, v8")
    A("v_lshlrev_b32 v10, 10, v5")
    A("v_lshlrev_b32 v11, 3, v7")
    A("s_lshl_b32 s33, s50, 1")
    A("v_add3_u32 v10, v10, v11, s33")
    A(f"ds_read_b64 v[40:41], v10 offset:{XL}")
    A("v_lshlrev_b32 v11, 6, v5")
    A("v_lshlrev_b32 v12, 4, v7")
    A("v_add_u32 v11, v11, v12")
    poll_loop(g, ["global_load_dwordx4 v[16:19], v8, s[26:27] sc1"], [16, 17, 18, 19], 12, "hy", slp=True)
    dpp_steps(g, [16, 17, 18, 19], "v_add_f32", ["row_ror:8"])
    swap_reduce(g, [16, 17, 18, 19], [20, 21, 22, 23], "v_add_f32", (16, 32))
    A("s_waitcnt lgkmcnt(0)")
    A("v_lshlrev_b32 v36, 16, v40")
    A("v_and_b32 v37, 0xffff0000, v40")
    A("v_lshlrev_b32 v38, 16, v41")
    A("v_and_b32 v39, 0xffff0000, v41")
    for i in (0, 2):
        A(f"v_cvt_pk_bf16_f32 v20, {v(16+i)}, {v(17+i)}")
        A(f"v_lshlrev_b32 {v(16+i)}, 16, v20")
        A(f"v_and_b32 {v(17+i)}, 0xffff0000, v20")
        A(f"v_add_f32 {v(16+i)}, {v(16+i)}, {v(36+i)}")
        A(f"v_add_f32 {v(17+i)}, {v(17+i)}, {v(37+i)}")
        A(f"v_cvt_pk_bf16_f32 v20, {v(16+i)}, {v(17+i)}")
        A(f"v_lshlrev_b32 {v(36+i)}, 16, v20")
        A(f"v_and_b32 {v(37+i)}, 0xffff0000, v20")
    A("s_barrier")
    stamp(g, 17, stamps)
    for w in range(8):
        A(f"ds_read_b128 {v(48+4*w,4)}, v11 offset:{R5+128*w}")
    A("s_waitcnt lgkmcnt(0)")
    for i in range(4):
        for w in range(0, 8, 2):
            A(f"v_add_f32 {v(48+4*w+i)}, {v(48+4*w+i)}, {v(52+4*w+i)}")
        A(f"v_add_f32 {v(48+i)}, {v(48+i)}, {v(56+i)}")
        A(f"v_add_f32 {v(64+i)}, {v(64+i)}, {v(72+i)}")
        A(f"v_add_f32 {v(48+i)}, {v(48+i)}, {v(64+i)}")
    for i in (0, 2):
        A(f"v_cvt_pk_bf16_f32 v20, {v(48+i)}, {v(49+i)}")
        A(f"v_lshlrev_b32 {v(48+i)}, 16, v20")
        A(f"v_and_b32 {v(49+i)}, 0xffff0000, v20")
        A(f"v_add_f32 {v(48+i)}, {v(48+i)}, {v(36+i)}")
        A(f"v_add_f32 {v(49+i)}, {v(49+i)}, {v(37+i)}")
        A(f"v_cvt_pk_bf16_f32 {v(16+i//2)}, {v(48+i)}, {v(49+i)}")
    A("s_mov_b64 exec, 0xff")
    A("global_store_dwordx2 v10, v[16:17], s[22:23]")
    A("s_mov_b64 exec, -1")
    g.label("L_end")
    if stamps:
        A("s_waitcnt vmcnt(0)")
        stamp(g, 31, True)
        A("v_mov_b32 v166, s62")
        for i in range(32):
            A(f"v_mov_b32 v167, s{64+i}")
            A(f"global_store_dword v166, v167, s[26:27] offset:{4*i}")
    g.label("L_end2")
    A("s_endpgm")

    tail = []
    tail.append('.section .rodata,"a"')
    tail.append(".p2align 6")
    tail.append(f".amdhsa_kernel {NAME}_kernel")
    tail.append("  .amdhsa_next_free_vgpr 168")
    tail.append("  .amdhsa_next_free_sgpr 102")
    tail.append("  .amdhsa_accum_offset 168")
    tail.append("  .amdhsa_group_segment_fixed_size 0")
    tail.append("  .amdhsa_kernarg_size 96")
    tail.append("  .amdhsa_user_sgpr_count 2")
    tail.append("  .amdhsa_user_sgpr_kernarg_segment_ptr 1")
    tail.append("  .amdhsa_system_sgpr_workgroup_id_x 1")
    tail.append(".end_amdhsa_kernel")
    return "\n".join(hdr + g.L + tail) + "\n"


if __name__ == "__main__":
    import argparse
    ap = argparse.ArgumentParser()
    ap.add_argument("-o", default="k.s")
    ap.add_argument("--depth", type=int, default=3)
    ap.add_argument("--n1", type=int, default=3)
    ap.add_argument("--n2", type=int, default=10)
    ap.add_argument("--wnt", type=int, default=1)
    ap.add_argument("--stamps", type=int, default=0)
    ap.add_argument("--b0", type=int, default=1)
    ap.add_argument("--rp", type=int, default=1)
    ap.add_argument("--qany", type=int, default=1)
    ap.add_argument("--rpos", type=int, default=0)
    ap.add_argument("--now", type=int, default=0)
    ap.add_argument("--bare", type=int, default=0)
    ap.add_argument("--rpg", type=int, default=1)
    ap.add_argument("--rpd", type=int, default=1)
    ap.add_argument("--gnt", type=int, default=0)
    ap.add_argument("--wpos", type=int, default=0)
    ap.add_argument("--dsw", type=int, default=99)
    ap.add_argument("--mp", type=int, default=0)
    ap.add_argument("--tpos", type=int, default=0)
    ap.add_argument("--pfp", type=int, default=0)
    ap.add_argument("--tg1", type=int, default=3)
    ap.add_argument("--nb0", type=int, default=0)
    ap.add_argument("--f1k", type=int, default=1)
    ap.add_argument("--f1s", type=int, default=1)
    ap.add_argument("--stk", type=int, default=1)
    ap.add_argument("--sts", type=int, default=1)
    ap.add_argument("--td1", type=int, default=2)
    ap.add_argument("--depth2", type=int, default=3)
    ap.add_argument("--pk", type=int, default=3)
    ap.add_argument("--slp", type=int, default=0)
    ap.add_argument("--slp2", type=int, default=0)
    a = ap.parse_args()
    PK = a.pk
    SLP = a.slp
    SLP2 = a.slp2
    open(a.o, "w").write(gen(a.depth, a.n1, a.n2, bool(a.wnt), bool(a.stamps), a.b0, a.rp, a.qany, a.rpos, a.now, a.bare, a.rpg, a.rpd, a.gnt, a.wpos, a.dsw, a.depth2, a.mp, a.tpos, a.pfp, a.tg1, a.td1, a.nb0, a.f1k, a.f1s, a.stk, a.sts))
```

```python
import sys

NAME = "sequential_preLN__gqa_block_cached__swiglu_ffn__decode"

QP = 0x00000
ST = 0x40000
OP = 0x80000
YP = 0x100000
AC = 0x110000
FL = 0x120000
F1 = 0x121000
F2 = 0x122000
F3 = 0x123000
TS = 0x200000
GT = 0x300000
DT = 0x700000

XL = 0
XN = XL + 2048
QL = XN + 2048
WST = QL + 1024
GST = WST + 256
FLG = GST + 128
RED = GST + 256
AO = RED + 16384
R2 = AO + 1024
LS = R2 + 1024
HN = LS + 256
R4 = HN + 2048
R5 = R4
WO_L = 32768
assert R4 + 4096 <= WO_L
GU_L = WO_L + 32768
WD_L = GU_L
LDS_TOTAL = GU_L + 65536

LOG2E = 0x3FB8AA3B
SCALE = 0x3DB504F3
EPS = 0x3727C5AC
INV512 = 0x3B000000
SPIN = 4000
PK = 3
SLP = 0
SLP2 = 0


class G:
    def __init__(self):
        self.L = []
        self.nlab = 0

    def __call__(self, s):
        self.L.append("  " + s)

    def label(self, name):
        self.L.append(name + ":")

    def newlabel(self, base):
        self.nlab += 1
        return f"L_{base}_{self.nlab}"


def v(i, n=1):
    return f"v{i}" if n == 1 else f"v[{i}:{i+n-1}]"


DPP = "row_mask:0xf bank_mask:0xf"


def bf16r(g, dst, src, tmp):
    g(f"v_cvt_pk_bf16_f32 {v(tmp)}, {v(src)}, {v(src)}")
    g(f"v_lshlrev_b32 {v(dst)}, 16, {v(tmp)}")


def dpp_steps(g, regs, op, steps):
    for st in steps:
        if len(regs) < 3:
            g("s_nop 1")
        for r in regs:
            g(f"{op}_dpp {v(r)}, {v(r)}, {v(r)} {st} {DPP}")


def swap_reduce(g, regs, tmps, op, which):
    for sw in which:
        ins = {16: "v_permlane16_swap_b32", 32: "v_permlane32_swap_b32"}[sw]
        for r, t in zip(regs, tmps):
            g(f"v_mov_b32 {v(t)}, {v(r)}")
        g("s_nop 1")
        for r, t in zip(regs, tmps):
            g(f"{ins} {v(r)}, {v(t)}")
        for r, t in zip(regs, tmps):
            g(f"{op} {v(r)}, {v(r)}, {v(t)}")


def wave_reduce(g, regs, tmps, op):
    dpp_steps(g, regs, op, ["quad_perm:[1,0,3,2]", "quad_perm:[2,3,0,1]", "row_ror:4", "row_ror:8"])
    swap_reduce(g, regs, tmps, op, (16, 32))


def unpack8(g, dst, src):
    for i in range(4):
        g(f"v_lshlrev_b32 {v(dst+2*i)}, 16, {v(src+i)}")
        g(f"v_and_b32 {v(dst+2*i+1)}, 0xffff0000, {v(src+i)}")


def ln_finish_pair(g, f0, f1, mean_b, den, rc, D, out):
    g(f"v_sub_f32 {v(D[0])}, {v(f0)}, {v(mean_b)}")
    g(f"v_sub_f32 {v(D[1])}, {v(f1)}, {v(mean_b)}")
    g(f"v_cvt_pk_bf16_f32 {v(D[2])}, {v(D[0])}, {v(D[1])}")
    g(f"v_lshlrev_b32 {v(D[0])}, 16, {v(D[2])}")
    g(f"v_and_b32 {v(D[1])}, 0xffff0000, {v(D[2])}")
    g(f"v_mul_f32 {v(D[2])}, {v(D[0])}, {v(rc)}")
    g(f"v_mul_f32 {v(D[3])}, {v(D[1])}, {v(rc)}")
    g(f"v_fma_f32 {v(D[4])}, -{v(D[2])}, {v(den)}, {v(D[0])}")
    g(f"v_fma_f32 {v(D[5])}, -{v(D[3])}, {v(den)}, {v(D[1])}")
    g(f"v_fmac_f32 {v(D[2])}, {v(D[4])}, {v(rc)}")
    g(f"v_fmac_f32 {v(D[3])}, {v(D[5])}, {v(rc)}")
    g(f"v_cvt_pk_bf16_f32 {v(out)}, {v(D[2])}, {v(D[3])}")


def ln_scalars(g, mean, var, rc, t):
    bf16r(g, var, var, t)
    g(f"v_add_f32 {v(var)}, {EPS:#x}, {v(var)}")
    bf16r(g, var, var, t)
    g(f"v_sqrt_f32 {v(var)}, {v(var)}")
    bf16r(g, mean, mean, t)
    bf16r(g, var, var, t)
    g(f"v_rcp_f32 {v(rc)}, {v(var)}")
    g("s_nop 0")


def layernorm2(g, F, OUTP, T):
    s0, s1, q0, q1, r0, r1 = T[:6]
    D = T[6:12]
    t0, t1 = D[0], D[1]
    for b, s in ((0, s0), (1, s1)):
        f = F + 8 * b
        g(f"v_add_f32 {v(s)}, {v(f)}, {v(f+1)}")
        for i in range(2, 8):
            g(f"v_add_f32 {v(s)}, {v(s)}, {v(f+i)}")
    wave_reduce(g, [s0, s1], [t0, t1], "v_add_f32")
    g(f"v_mul_f32 {v(s0)}, {INV512:#x}, {v(s0)}")
    g(f"v_mul_f32 {v(s1)}, {INV512:#x}, {v(s1)}")
    for b, s, q in ((0, s0, q0), (1, s1, q1)):
        f = F + 8 * b
        for i in range(8):
            d = D[i % 4]
            g(f"v_sub_f32 {v(d)}, {v(f+i)}, {v(s)}")
            if i == 0:
                g(f"v_mul_f32 {v(q)}, {v(d)}, {v(d)}")
            else:
                g(f"v_fmac_f32 {v(q)}, {v(d)}, {v(d)}")
    wave_reduce(g, [q0, q1], [t0, t1], "v_add_f32")
    for s, q, r in ((s0, q0, r0), (s1, q1, r1)):
        g(f"v_mul_f32 {v(q)}, {INV512:#x}, {v(q)}")
        ln_scalars(g, s, q, r, t0)
    for b, s, q, r in ((0, s0, q0, r0), (1, s1, q1, r1)):
        f = F + 8 * b
        for i in range(0, 8, 2):
            ln_finish_pair(g, f + i, f + i + 1, s, q, r, D, OUTP + 4 * b + i // 2)


def poll_loop(g, loads, regs, tmp, name, slp=False):
    L = g.newlabel(name)
    Ld = g.newlabel(name + "_done")
    g(f"s_mov_b32 s46, {SPIN}")
    g.label(L)
    for l in loads:
        g(l)
    g("s_waitcnt vmcnt(0)")
    rs = list(regs)
    g(f"v_max_u32 {v(tmp)}, {v(rs[0])}, {v(rs[1])}")
    rest = rs[2:]
    while len(rest) >= 2:
        g(f"v_max3_u32 {v(tmp)}, {v(tmp)}, {v(rest[0])}, {v(rest[1])}")
        rest = rest[2:]
    if rest:
        g(f"v_max_u32 {v(tmp)}, {v(tmp)}, {v(rest[0])}")
    g(f"v_cmp_eq_u32 vcc, -1, {v(tmp)}")
    g(f"s_cbranch_vccz {Ld}")
    if slp and SLP2:
        g(f"s_sleep {SLP2}")
    g("s_sub_u32 s46, s46, 1")
    g("s_cmp_lg_u32 s46, 0")
    g(f"s_cbranch_scc1 {L}")
    g.label(Ld)


def poll_tag(g, loads, regs, tmp, name):
    L = g.newlabel(name)
    Ld = g.newlabel(name + "_done")
    g(f"s_mov_b32 s46, {SPIN}")
    g.label(L)
    for l in loads:
        g(l)
    g("s_waitcnt vmcnt(0)")
    rs = list(regs)
    if len(rs) == 1:
        g(f"v_cmp_ne_u32 vcc, s47, {v(rs[0])}")
    else:
        g(f"v_xor_b32 {v(tmp)}, s47, {v(rs[0])}")
        for r in rs[1:]:
            g(f"v_xor_b32 {v(tmp+1)}, s47, {v(r)}")
            g(f"v_or_b32 {v(tmp)}, {v(tmp)}, {v(tmp+1)}")
        g(f"v_cmp_ne_u32 vcc, 0, {v(tmp)}")
    g(f"s_cbranch_vccz {Ld}")
    g("s_sub_u32 s46, s46, 1")
    g("s_cmp_lg_u32 s46, 0")
    g(f"s_cbranch_scc1 {L}")
    g.label(Ld)


def poll_pipe(g, mk_load, nreg, sb, K, chk, tmp, name, dst=None, anyok=False, slp=True, force=False):
    if not force:
        K = min(K, PK)
    Ld = g.newlabel(name + "_done")
    L = g.newlabel(name)
    g(f"s_mov_b32 s46, {SPIN}")
    for k in range(K):
        g(mk_load(sb + nreg * k))
    g.label(L)
    outs = []
    for k in range(K):
        r = sb + nreg * k
        g(f"s_waitcnt vmcnt({K-1})")
        if len(chk) == 1:
            g(f"v_cmp_ne_u32 vcc, s47, {v(r+chk[0])}")
        else:
            g(f"v_xor_b32 {v(tmp)}, s47, {v(r+chk[0])}")
            for c in chk[1:]:
                g(f"v_xor_b32 {v(tmp+1)}, s47, {v(r+c)}")
                g(f"v_or_b32 {v(tmp)}, {v(tmp)}, {v(tmp+1)}")
            g(f"v_cmp_ne_u32 vcc, 0, {v(tmp)}")
        Lk = g.newlabel(name + f"_ok{k}")
        outs.append((Lk, r))
        if anyok:
            g("s_cmp_lg_u64 vcc, -1")
            g(f"s_cbranch_scc1 {Lk}")
        else:
            g(f"s_cbranch_vccz {Lk}")
        if SLP and slp:
            g(f"s_sleep {SLP}")
        g(mk_load(r))
    g("s_sub_u32 s46, s46, 1")
    g("s_cmp_lg_u32 s46, 0")
    g(f"s_cbranch_scc1 {L}")
    g(f"s_branch {Ld}")
    for n, (Lk, r) in enumerate(outs):
        g.label(Lk)
        if dst is not None:
            for i in range(nreg):
                g(f"v_mov_b32 {v(dst+i)}, {v(r+i)}")
        if n != len(outs) - 1:
            g(f"s_branch {Ld}")
    g.label(Ld)


def stamp(g, idx, on):
    if not on:
        return
    g("s_memrealtime s[60:61]")
    g("s_waitcnt lgkmcnt(0)")
    g(f"s_mov_b32 s{64+idx}, s60")


def gen(depth=3, n1=3, n2=10, wnt=True, stamps=False, b0=1, rp=1, qany=1, rpos=0, now=0, bare=0, rpg=1, rpd=1, gnt=0, wpos=0, dsw=99, depth2=3, mp=0, tpos=0, pfp=0, tg1=3, td1=2, nb0=0, f1k=1, f1s=1, stk=1, sts=1, cpf=0):
    g = G()
    A = g
    hdr = []
    hdr.append(f"; @launch grid=(256,1,1) block=(576,1,1) lds={LDS_TOTAL}")
    hdr.append('.amdgcn_target "amdgcn-amd-amdhsa--gfx950"')
    hdr.append(".text")
    hdr.append(f".globl {NAME}_kernel")
    hdr.append(".p2align 8")
    hdr.append(f".type {NAME}_kernel,@function")
    hdr.append(f"{NAME}_kernel:")
    WNT = " nt" if wnt else ""
    A("s_cmp_ge_u32 s2, 256")
    A("s_cbranch_scc1 L_end2")
    A("s_load_dwordx16 s[4:19], s[0:1], 0")
    A("s_load_dwordx8 s[20:27], s[0:1], 64")
    A("v_lshrrev_b32 v1, 6, v0")
    A("v_and_b32 v0, 63, v0")
    A("s_nop 0")
    A("v_readfirstlane_b32 s28, v1")
    A("s_and_b32 s58, s2, 7")
    if mp == 0:
        A("s_and_b32 s29, s2, 7")
        A("s_bfe_u32 s30, s2, 0x10003")
        A("s_lshr_b32 s31, s2, 4")
        A("s_and_b32 s32, s2, 15")
    else:
        A("s_bfe_u32 s29, s2, 0x30004")
        A("s_lshr_b32 s30, s2, 7")
        A("s_and_b32 s31, s2, 15")
        A("s_lshr_b32 s32, s2, 4")
    A(f"s_mov_b32 s44, {LOG2E:#x}")
    A(f"s_mov_b32 s45, {SCALE:#x}")
    A("s_and_b32 s33, s31, 7")
    A("s_lshl_b32 s33, s33, 1")
    A("s_lshr_b32 s34, s31, 3")
    A("s_or_b32 s59, s33, s34")
    A("s_bfe_u32 s33, s2, 0x20004")
    A("s_lshl_b32 s33, s33, 3")
    A("s_add_u32 s33, s33, s58")
    A("s_bfe_u32 s34, s2, 0x10003")
    A("s_lshl_b32 s50, s33, 6")
    A("s_lshl_b32 s34, s34, 5")
    A("s_add_u32 s50, s50, s34")
    A("s_mov_b32 s51, 0")
    A("s_cmp_lt_u32 s33, 28")
    A("s_cselect_b32 s51, 1, 0")
    A("s_cmp_lt_u32 s2, 64")
    A("s_cselect_b32 s51, s51, 0")
    A("s_bfe_u32 s34, s2, 0x20003")
    A("s_lshl_b32 s34, s34, 4")
    A("s_lshl_b32 s33, s58, 6")
    A("s_add_u32 s33, s33, s34")
    A("s_lshr_b32 s34, s2, 5")
    A("s_cmp_eq_u32 s34, 2")
    A("s_cselect_b32 s51, 2, s51")
    A("s_cselect_b32 s50, s33, s50")
    if stamps:
        A("s_mul_i32 s62, s2, 9")
        A("s_add_u32 s62, s62, s28")
        A("s_lshl_b32 s62, s62, 7")
        A(f"s_add_u32 s62, s62, {TS:#x}")
        for i in range(32):
            A(f"s_mov_b32 s{64+i}, 0")
    A("s_waitcnt lgkmcnt(0)")
    A("s_cmp_eq_u32 s28, 8")
    A("s_cbranch_scc1 L_ctrl")

    vK, vV, vML, vMH, vW = 4, 5, 6, 7, 8
    KR = 16
    VR = 84
    QB = 148
    Z = 152
    O0, O1 = 156, 160
    stamp(g, 0, stamps)
    A("s_lshl_b32 s33, s32, 21")
    A("s_lshl_b32 s34, s31, 17")
    A("s_add_u32 s33, s33, s34")
    A("s_lshl_b32 s34, s28, 14")
    A("s_add_u32 s33, s33, s34")
    A("v_lshrrev_b32 v1, 4, v0")
    A("v_bfe_u32 v2, v0, 2, 2")
    A("v_and_b32 v3, 3, v0")
    A("v_lshlrev_b32 v9, 6, v1")
    A("v_lshlrev_b32 v10, 8, v2")
    A("v_lshlrev_b32 v11, 4, v3")
    A("v_add3_u32 v9, v9, v10, v11")
    A(f"v_add_u32 {v(vK)}, s33, v9")
    A("v_lshlrev_b32 v9, 4, v0")
    A(f"v_add_u32 {v(vV)}, s33, v9")
    A(f"v_mov_b32 {v(vML)}, 0xffff")
    A(f"v_mov_b32 {v(vMH)}, 0xffff0000")

    seq = []

    def issue(name):
        kind, m = name
        dd = depth if len(seq) < dsw else depth2
        if len(seq) >= dd and throttle[0]:
            A(f"s_waitcnt vmcnt({dd-1})")
        if kind == "K":
            if m % 4 == 0 and m > 0:
                A(f"v_add_u32 {v(vK)}, 4096, {v(vK)}")
            r = KR + 4 + 4 * m
            A(f"global_load_dwordx4 {v(r,4)}, {v(vK)}, s[6:7] offset:{(m%4)*1024} nt")
        elif kind == "V":
            if m % 4 == 0 and m > 0:
                A(f"v_add_u32 {v(vV)}, 4096, {v(vV)}")
            r = VR + 4 * m
            A(f"global_load_dwordx4 {v(r,4)}, {v(vV)}, s[8:9] offset:{(m%4)*1024} nt")
        elif kind == "W":
            if m > 0:
                A(f"v_add_u32 {v(vW)}, 16384, {v(vW)}")
            A(f"s_add_u32 m0, s35, {m*1024}")
            A("s_nop 0")
            A(f"global_load_lds_dwordx4 {v(vW)}, s[12:13]{WNT}")
        elif kind == "R":
            if m == 0:
                A("s_min_u32 s33, s28, 6")
                A("s_and_b32 s34, s2, 3")
                A("s_mul_i32 s34, s34, 7")
                A("s_add_u32 s34, s34, s33")
                A("s_lshr_b32 s36, s2, 2")
                A("s_mul_i32 s36, s36, 28672")
                A("s_lshl_b32 s37, s34, 7")
                A("s_add_u32 s36, s36, s37")
                A("v_lshrrev_b32 v9, 3, v0")
                A("v_and_b32 v10, 7, v0")
                A("v_mul_u32_u24 v11, 3584, v10")
                A("v_lshlrev_b32 v9, 4, v9")
                A("v_add3_u32 v11, v11, v9, s36")
                A("s_mul_i32 s34, s2, 7")
                A("s_add_u32 s34, s34, s33")
                A("s_lshr_b32 s36, s34, 3")
                A("s_and_b32 s34, s34, 7")
                A("s_lshl_b32 s36, s36, 13")
                A("s_lshl_b32 s37, s34, 7")
                A("s_add_u32 s36, s36, s37")
                A("v_lshlrev_b32 v10, 10, v10")
                A("v_add3_u32 v10, v10, v9, s36")
                A("s_mul_i32 s36, s28, 3072")
                A(f"s_add_u32 s36, s36, {GU_L}")
            addr = "v11" if m < 2 else "v10"
            base = ("s[16:17]", "s[18:19]", "s[20:21]")[m]
            A(f"s_add_u32 m0, s36, {1024*m}")
            A("s_nop 0")
            A(f"global_load_lds_dwordx4 {addr}, {base} nt")
        seq.append(name)

    def wait_for(name):
        idx = seq.index(name)
        n = len(seq) - 1 - idx
        A(f"s_waitcnt vmcnt({n})")

    throttle = [True]
    RP = VR + 52
    A("s_lshl_b32 s33, s29, 19")
    A("s_lshl_b32 s34, s28, 16")
    A("s_add_u32 s33, s33, s34")
    A("s_lshl_b32 s34, s59, 6")
    A("s_add_u32 s33, s33, s34")
    A("v_lshrrev_b32 v9, 2, v0")
    A("v_lshlrev_b32 v9, 10, v9")
    A("v_lshlrev_b32 v10, 4, v3")
    A(f"v_add3_u32 {v(vW)}, v9, v10, s33")
    A("s_lshl_b32 s35, s28, 12")
    A(f"s_add_u32 s35, s35, {WO_L}")
    A("v_mov_b32 v164, 0")
    A("s_mov_b32 s49, 1")
    A("s_getpc_b64 s[56:57]")
    g.label("L_pc0")
    A("s_add_u32 s56, s56, L_qk-L_pc0")
    A("s_addc_u32 s57, s57, 0")
    if nb0 == 0:
        A("s_barrier")
    GNT = " nt" if gnt else ""

    def tile_gu(lo=0, hi=8):
        A("s_mul_i32 s33, s28, 229376")
        A("s_lshl_b32 s34, s50, 1")
        A("s_add_u32 s33, s33, s34")
        A("v_lshrrev_b32 v9, 2, v0")
        A("v_mul_u32_u24 v9, 3584, v9")
        A("v_lshlrev_b32 v10, 4, v3")
        A("v_add3_u32 v9, v9, v10, s33")
        A("s_lshl_b32 s34, s28, 12")
        A(f"s_add_u32 s34, s34, {GU_L}")
        cur = 0
        for j in range(lo, hi):
            i, mat = j >> 1, j & 1
            if i != cur:
                A(f"v_add_u32 v9, {57344*(i-cur)}, v9")
                cur = i
            A(f"s_add_u32 m0, s34, {32768*mat+1024*i}")
            A("s_nop 0")
            A(f"global_load_lds_dwordx4 v9, {('s[16:17]','s[18:19]')[mat]}{GNT}")

    def tile_dn(lo=0, hi=7):
        A("s_mul_i32 s33, s28, 229376")
        A("s_lshl_b32 s34, s50, 1")
        A("s_add_u32 s33, s33, s34")
        A("v_lshrrev_b32 v9, 1, v0")
        A("v_lshlrev_b32 v9, 10, v9")
        A("v_and_b32 v10, 1, v0")
        A("v_lshlrev_b32 v10, 4, v10")
        A("v_add3_u32 v9, v9, v10, s33")
        A("s_mul_i32 s34, s28, 7168")
        A(f"s_add_u32 s34, s34, {WD_L}")
        cur = 0
        for i in range(lo, hi):
            if i != cur:
                A(f"v_add_u32 v9, {0x8000*(i-cur)}, v9")
                cur = i
            A(f"s_add_u32 m0, s34, {1024*i}")
            A("s_nop 0")
            A(f"global_load_lds_dwordx4 v9, s[20:21]{GNT}")

    def wdma():
        for m in range(4):
            if m > 0:
                A(f"v_add_u32 {v(vW)}, 16384, {v(vW)}")
            A(f"s_add_u32 m0, s35, {m*1024}")
            A("s_nop 0")
            A(f"global_load_lds_dwordx4 {v(vW)}, s[12:13]{WNT}")

    def tiles():
        Lx = g.newlabel("notile")
        Ld2 = g.newlabel("dtile")
        A("s_cmp_eq_u32 s51, 0")
        A(f"s_cbranch_scc1 {Lx}")
        A("s_cmp_eq_u32 s51, 2")
        A(f"s_cbranch_scc1 {Ld2}")
        tile_gu()
        A(f"s_branch {Lx}")
        g.label(Ld2)
        tile_dn()
        g.label(Lx)

    if tpos == 1:
        tiles()

    def check():
        Ls = g.newlabel("nocall")
        A(f"ds_read_b32 v165, v164 offset:{FLG}")
        A("s_waitcnt lgkmcnt(0)")
        A("v_readfirstlane_b32 s48, v165")
        A("s_cmp_eq_u32 s48, s49")
        A(f"s_cbranch_scc0 {Ls}")
        A("s_swappc_b64 s[54:55], s[56:57]")
        g.label(Ls)

    order = []
    order += [("K", m) for m in range(16)]
    order += [("V", m) for m in range(16)]
    k15 = order.index(("K", 15))
    first_check = k15 + depth
    for i, op in enumerate(order):
        if tpos >= 2 and i == tpos:
            tiles()
        issue(op)
        if nb0 and i == nb0 - 1:
            A("s_barrier")
        if i == first_check:
            wait_for(("K", 15))
        if i >= first_check and op[0] != "R":
            check()
    Lw = g.newlabel("now")
    A("s_cmp_eq_u32 s51, 0")
    A(f"s_cbranch_scc1 {Lw}")
    wdma()
    g.label(Lw)
    stamp(g, 1, stamps)
    L = g.newlabel("wq")
    Ld = g.newlabel("wq_done")
    A(f"s_mov_b32 s46, {SPIN*16}")
    g.label(L)
    A("s_cmp_eq_u32 s49, 2")
    A(f"s_cbranch_scc1 {Ld}")
    check()
    A("s_sub_u32 s46, s46, 1")
    A("s_cmp_lg_u32 s46, 0")
    A(f"s_cbranch_scc1 {L}")
    g.label(Ld)
    for i in range(66):
        A(f"v_mov_b32 {v(KR+i)}, 0")
    A("v_lshlrev_b32 v9, 3, v3")
    stamp(g, 5, stamps)
    L = g.newlabel("wg")
    Ld = g.newlabel("wg_done")
    A(f"s_mov_b32 s46, {SPIN*16}")
    g.label(L)
    A(f"ds_read_b32 v165, v164 offset:{FLG+8}")
    A("s_waitcnt lgkmcnt(0)")
    A("v_readfirstlane_b32 s48, v165")
    A("s_cmp_eq_u32 s48, 1")
    A(f"s_cbranch_scc1 {Ld}")
    A("s_sub_u32 s46, s46, 1")
    A("s_cmp_lg_u32 s46, 0")
    A(f"s_cbranch_scc1 {L}")
    g.label(Ld)
    stamp(g, 6, stamps)
    A(f"ds_read_b64 v[12:13], v9 offset:{GST}")
    A("s_waitcnt lgkmcnt(0)")
    for m in range(4):
        A(f"v_sub_f32 {v(Z+m)}, {v(Z+m)}, v12")
        A(f"v_mul_f32 {v(Z+m)}, s44, {v(Z+m)}")
        A(f"v_exp_f32 {v(Z+m)}, {v(Z+m)}")
    A("s_nop 0")
    for m in range(4):
        A(f"v_mul_f32 {v(Z+m)}, {v(Z+m)}, v13")
        A(f"v_cvt_pk_bf16_f32 {v(Z+m)}, {v(Z+m)}, {v(Z+m)}")
    A("s_nop 1")
    for m in range(16):
        beta = m & 3
        k = m >> 2
        for j in range(4):
            rot = (4 * (j - beta)) & 15
            dst = KR + 4 * m + 2 + (j >> 1)
            msk = vMH if (j & 1) else vML
            ctl = f"row_ror:{rot}" if rot else "quad_perm:[0,1,2,3]"
            A(f"v_and_b32_dpp {v(dst)}, {v(Z+k)}, {v(msk)} {ctl} row_mask:0xf bank_mask:{1<<j:#x}")
    stamp(g, 7, stamps)
    A("s_nop 1")
    for m in range(16):
        wait_for(("V", m))
        c0 = "0" if m == 0 else v(O0, 4)
        c1 = "0" if m == 0 else v(O1, 4)
        A(f"v_mfma_f32_16x16x32_bf16 {v(O0,4)}, {v(VR+4*m,4)}, {v(KR+4*m+2,4)}, {c0}")
        A(f"v_mfma_f32_16x16x32_bf16 {v(O1,4)}, {v(VR+4*m,4)}, {v(KR+4*m,4)}, {c1}")
    stamp(g, 8, stamps)
    throttle[0] = False
    if bare:
        A("s_branch L_end")
    A("s_lshl_b32 s33, s28, 11")
    A("v_lshlrev_b32 v9, 5, v0")
    A("v_add_u32 v9, s33, v9")
    A("s_nop 6")
    A(f"ds_write_b128 v9, {v(O0,4)} offset:{RED}")
    A(f"ds_write_b128 v9, {v(O1,4)} offset:{RED+16}")
    A("s_waitcnt lgkmcnt(0)")
    A("s_barrier")
    Lr = g.newlabel("role")
    Lr2 = g.newlabel("role2")
    Lr3 = g.newlabel("role3")
    A("s_cmp_lg_u32 s51, 0")
    A(f"s_cbranch_scc1 {Lr}")
    wdma()
    A(f"s_branch {Lr3}")
    g.label(Lr)
    A("s_cmp_eq_u32 s51, 2")
    A(f"s_cbranch_scc1 {Lr2}")
    tile_gu(0, tg1)
    A(f"s_branch {Lr3}")
    g.label(Lr2)
    tile_dn(0, td1)
    g.label(Lr3)
    A("s_lshl_b32 s36, s32, 15")
    A("s_lshl_b32 s37, s28, 8")
    A("s_add_u32 s36, s36, s37")
    A(f"s_add_u32 s36, s36, {OP:#x}")
    A("v_lshlrev_b32 v9, 11, v1")
    A("v_and_b32 v4, 15, v0")
    A("v_lshlrev_b32 v10, 4, v4")
    A("v_add3_u32 v10, v9, v10, s36")
    for i in range(1, 4):
        A(f"v_add_u32 {v(10+i)}, {8192*i}, v10")
    A("s_lshr_b32 s33, s28, 1")
    A("s_lshl_b32 s33, s33, 11")
    A("s_and_b32 s34, s28, 1")
    A("s_lshl_b32 s34, s34, 7")
    A("s_add_u32 s33, s33, s34")
    A(f"s_add_u32 s33, s33, {WO_L}")
    A("v_lshlrev_b32 v5, 13, v1")
    A("v_lshlrev_b32 v6, 9, v2")
    A("v_lshlrev_b32 v7, 3, v3")
    A("v_add3_u32 v5, v5, v6, v7")
    A("v_add_u32 v5, s33, v5")
    A("s_lshl_b32 s33, s28, 7")
    A("v_lshlrev_b32 v6, 3, v4")
    A("v_add_u32 v6, s33, v6")
    A("v_lshlrev_b32 v7, 4, v1")
    A("v_add_u32 v7, s33, v7")
    A("s_waitcnt vmcnt(0)")
    stamp(g, 9, stamps)
    A("s_barrier")
    BR = 96
    AR = 88
    DR = 112
    for kk in range(2):
        for n in range(2):
            for u in range(2):
                A(f"ds_read_b64_tr_b16 {v(BR+8*kk+4*n+2*u,2)}, v5 offset:{64*kk+256*u+32*n}")
    loads = [f"global_load_dwordx4 {v(16+4*i,4)}, {v(10+i)}, s[26:27] sc1" for i in range(4)]
    poll_loop(g, loads, list(range(16, 32)), 9, "t1")
    stamp(g, 10, stamps)

    for k in range(4):
        A(f"v_add_f32 {v(16+k)}, {v(16+k)}, {v(20+k)}")
        A(f"v_add_f32 {v(24+k)}, {v(24+k)}, {v(28+k)}")
    for k in range(4):
        A(f"v_add_f32 {v(16+k)}, {v(16+k)}, {v(24+k)}")
    swap_reduce(g, [16, 17, 18, 19], [20, 21, 22, 23], "v_add_f32", (16, 32))
    A("v_cvt_pk_bf16_f32 v16, v16, v17")
    A("v_cvt_pk_bf16_f32 v17, v18, v19")
    A(f"ds_write_b64 v6, v[16:17] offset:{AO}")
    for kk in range(2):
        A(f"ds_read_b128 {v(AR+4*kk,4)}, v7 offset:{AO+64*kk}")
    A("s_waitcnt lgkmcnt(0)")
    for n in range(2):
        A(f"v_mfma_f32_16x16x32_bf16 {v(DR+4*n,4)}, {v(AR,4)}, {v(BR+4*n,4)}, 0")
    for n in range(2):
        A(f"v_mfma_f32_16x16x32_bf16 {v(DR+4*n,4)}, {v(AR+4,4)}, {v(BR+8+4*n,4)}, {v(DR+4*n,4)}")
    A("s_lshl_b32 s33, s28, 7")
    A("v_lshlrev_b32 v9, 2, v4")
    A("v_add_u32 v9, s33, v9")
    A("s_nop 6")
    A(f"ds_write_b32 v9, {v(DR)} offset:{R2}")
    A(f"ds_write_b32 v9, {v(DR+4)} offset:{R2+64}")
    A("s_waitcnt lgkmcnt(0)")
    A("s_barrier")
    A("s_cmp_eq_u32 s51, 0")
    A("s_cbranch_scc1 L_end")
    A("s_cmp_eq_u32 s51, 2")
    A("s_cbranch_scc1 L_sdown")
    GNT = " nt" if gnt else ""
    tile_gu(tg1, 8)
    A("s_lshl_b32 s36, s28, 8")
    A(f"s_add_u32 s36, s36, {YP:#x}")
    A("v_lshrrev_b32 v5, 5, v0")
    A("v_and_b32 v6, 1, v1")
    A("v_lshlrev_b32 v9, 11, v5")
    A("v_lshlrev_b32 v10, 12, v6")
    A("v_lshlrev_b32 v11, 4, v4")
    A("v_add3_u32 v10, v9, v10, v11")
    A("v_add_u32 v10, s36, v10")
    for i in range(1, 4):
        A(f"v_add_u32 {v(10+i)}, {8192*i}, v10")
    A("s_lshl_b32 s33, s28, 7")
    A("v_lshlrev_b32 v6, 10, v5")
    A("v_lshlrev_b32 v7, 3, v4")
    A("v_add3_u32 v6, v6, v7, s33")
    A(f"ds_read_b64 v[40:41], v6 offset:{XL}")
    A("v_lshlrev_b32 v7, 10, v5")
    A(f"ds_read_u16 v42, v7 offset:{XL}")
    A("s_lshl_b32 s34, s28, 3")
    A("v_lshlrev_b32 v7, 6, v5")
    A("v_add_u32 v8, s34, v7")
    A("v_and_b32 v9, 7, v0")
    A("v_lshlrev_b32 v9, 3, v9")
    A("v_add_u32 v7, v7, v9")
    A("s_lshl_b32 s34, s28, 8")
    A("v_lshlrev_b32 v14, 7, v5")
    A("v_lshlrev_b32 v15, 3, v4")
    A("v_add3_u32 v14, v14, v15, s34")
    A("v_and_b32 v15, 1, v0")
    A("v_lshlrev_b32 v15, 7, v15")
    A("v_lshlrev_b32 v9, 4, v1")
    A("v_add3_u32 v15, v15, v9, s34")
    A("s_lshl_b32 s33, s28, 12")
    A(f"s_add_u32 s33, s33, {GU_L}")
    A("v_lshlrev_b32 v44, 9, v1")
    A("v_lshlrev_b32 v45, 6, v2")
    A("v_lshlrev_b32 v46, 3, v3")
    A("v_add3_u32 v44, v44, v45, v46")
    A("v_add_u32 v44, s33, v44")
    A("s_waitcnt lgkmcnt(0)")
    A("v_lshlrev_b32 v36, 16, v40")
    A("v_and_b32 v37, 0xffff0000, v40")
    A("v_lshlrev_b32 v38, 16, v41")
    A("v_and_b32 v39, 0xffff0000, v41")
    A("v_lshlrev_b32 v42, 16, v42")
    stamp(g, 11, stamps)
    loads = [f"global_load_dwordx4 {v(16+4*i,4)}, {v(10+i)}, s[26:27] sc1" for i in range(4)]
    poll_loop(g, loads, list(range(16, 32)), 9, "t2")
    stamp(g, 12, stamps)
    GB = 96
    for mat in range(2):
        for n in range(2):
            for kk in range(2):
                for u in range(2):
                    A(f"ds_read_b64_tr_b16 {v(GB+16*mat+8*n+4*kk+2*u,2)}, v44 offset:{32768*mat+2048*kk+256*u+32*n}")
    for k in range(4):
        A(f"v_add_f32 {v(16+k)}, {v(16+k)}, {v(20+k)}")
        A(f"v_add_f32 {v(24+k)}, {v(24+k)}, {v(28+k)}")
    for k in range(4):
        A(f"v_add_f32 {v(16+k)}, {v(16+k)}, {v(24+k)}")
    swap_reduce(g, [16, 17, 18, 19], [20, 21, 22, 23], "v_add_f32", (16,))
    for i in (0, 2):
        A(f"v_cvt_pk_bf16_f32 v20, {v(16+i)}, {v(17+i)}")
        A(f"v_lshlrev_b32 {v(16+i)}, 16, v20")
        A(f"v_and_b32 {v(17+i)}, 0xffff0000, v20")
        A(f"v_add_f32 {v(16+i)}, {v(16+i)}, {v(36+i)}")
        A(f"v_add_f32 {v(17+i)}, {v(17+i)}, {v(37+i)}")
        A(f"v_cvt_pk_bf16_f32 {v(24+i//2)}, {v(16+i)}, {v(17+i)}")
        A(f"v_lshlrev_b32 {v(16+i)}, 16, {v(24+i//2)}")
        A(f"v_and_b32 {v(17+i)}, 0xffff0000, {v(24+i//2)}")
    for i in range(4):
        A(f"v_sub_f32 {v(20+i)}, {v(16+i)}, v42")
    A("v_add_f32 v26, v20, v21")
    A("v_mul_f32 v27, v20, v20")
    A("v_add_f32 v26, v26, v22")
    A("v_fmac_f32 v27, v21, v21")
    A("v_add_f32 v26, v26, v23")
    A("v_fmac_f32 v27, v22, v22")
    A("v_fmac_f32 v27, v23, v23")
    dpp_steps(g, [26, 27], "v_add_f32", ["quad_perm:[1,0,3,2]", "quad_perm:[2,3,0,1]", "row_ror:4", "row_ror:8"])
    A(f"ds_write_b64 v8, v[26:27] offset:{LS}")
    A("s_waitcnt lgkmcnt(0)")
    A("s_barrier")
    A(f"ds_read_b64 v[26:27], v7 offset:{LS}")
    A("s_waitcnt lgkmcnt(0)")
    dpp_steps(g, [26, 27], "v_add_f32", ["quad_perm:[1,0,3,2]", "quad_perm:[2,3,0,1]", "row_ror:4"])
    A(f"v_mul_f32 v26, {INV512:#x}, v26")
    A(f"v_mul_f32 v27, {INV512:#x}, v27")
    A("v_fma_f32 v27, -v26, v26, v27")
    A("v_max_f32 v27, 0, v27")
    A("v_add_f32 v26, v26, v42")
    ln_scalars(g, 26, 27, 28, 29)
    ln_finish_pair(g, 16, 17, 26, 27, 28, [30, 31, 32, 33, 34, 35], 24)
    ln_finish_pair(g, 18, 19, 26, 27, 28, [30, 31, 32, 33, 34, 35], 25)
    A(f"ds_write_b64 v14, v[24:25] offset:{HN}")
    for kk in range(2):
        A(f"ds_read_b128 {v(AR+4*kk,4)}, v15 offset:{HN+64*kk}")
    A("s_waitcnt lgkmcnt(0)")
    GD = 128
    for t in range(4):
        A(f"v_mfma_f32_16x16x32_bf16 {v(GD+4*t,4)}, {v(AR,4)}, {v(GB+8*t,4)}, 0")
    for t in range(4):
        A(f"v_mfma_f32_16x16x32_bf16 {v(GD+4*t,4)}, {v(AR+4,4)}, {v(GB+8*t+4,4)}, {v(GD+4*t,4)}")
    A("s_lshl_b32 s33, s28, 9")
    A("v_lshlrev_b32 v9, 2, v4")
    A("v_add_u32 v9, s33, v9")
    A("s_nop 4")
    for t in range(4):
        for b in range(2):
            A(f"ds_write_b32 v9, {v(GD+4*t+b)} offset:{R4+256*b+64*t}")
    A("s_waitcnt lgkmcnt(0)")
    A("s_barrier")
    A("s_branch L_end")
    g.label("L_sdown")
    tile_dn(td1, 7)
    A("s_mul_i32 s33, s28, 448")
    A(f"s_add_u32 s33, s33, {AC:#x}")
    A("v_min_u32 v5, 55, v0")
    A("v_cmp_lt_u32 vcc, 27, v5")
    A("v_mov_b32 v6, 0")
    A("v_mov_b32 v7, 3136")
    A("v_cndmask_b32 v6, v6, v7, vcc")
    A("v_lshlrev_b32 v5, 4, v5")
    A("v_add3_u32 v9, v5, v6, s33")
    A("s_lshl_b32 s34, s28, 10")
    A("v_add_u32 v5, s34, v5")
    A("v_and_b32 v6, 1, v0")
    A("v_mul_u32_u24 v6, 448, v6")
    A("v_lshlrev_b32 v7, 4, v1")
    A("v_add3_u32 v6, v6, v7, s34")
    A("s_mul_i32 s33, s28, 7168")
    A(f"s_add_u32 s33, s33, {WD_L}")
    A("v_lshlrev_b32 v11, 8, v1")
    A("v_lshlrev_b32 v12, 5, v2")
    A("v_lshlrev_b32 v13, 3, v3")
    A("v_add3_u32 v11, v11, v12, v13")
    A("v_add_u32 v11, s33, v11")
    A("s_lshl_b32 s33, s28, 7")
    A("v_lshlrev_b32 v10, 2, v4")
    A("v_add_u32 v10, s33, v10")
    A("s_waitcnt vmcnt(0)")
    for kk in range(7):
        for u in range(2):
            A(f"ds_read_b64_tr_b16 {v(48+4*kk+2*u,2)}, v11 offset:{1024*kk+128*u}")
    stamp(g, 13, stamps)
    poll_loop(g, ["global_load_dwordx4 v[84:87], v9, s[26:27] sc1"], [84, 85, 86, 87], 12, "t3", slp=True)
    stamp(g, 14, stamps)
    A(f"ds_write_b128 v5, v[84:87] offset:{RED}")
    for kk in range(7):
        A(f"ds_read_b128 {v(16+4*kk,4)}, v6 offset:{RED+64*kk}")
    A("s_waitcnt lgkmcnt(0)")
    for kk in range(7):
        c = "0" if kk == 0 else v(DR, 4)
        A(f"v_mfma_f32_16x16x32_bf16 {v(DR,4)}, {v(16+4*kk,4)}, {v(48+4*kk,4)}, {c}")
    A("s_nop 7")
    A(f"ds_write_b32 v10, {v(DR)} offset:{R5}")
    A(f"ds_write_b32 v10, {v(DR+1)} offset:{R5+64}")
    A("s_waitcnt lgkmcnt(0)")
    A("s_barrier")
    A("s_branch L_end")

    g.label("L_qk")
    stamp(g, 2, stamps)
    A("v_lshlrev_b32 v9, 8, v3")
    A("v_lshlrev_b32 v10, 6, v1")
    A("v_lshlrev_b32 v11, 4, v2")
    A("v_add3_u32 v9, v9, v10, v11")
    A(f"ds_read_b128 {v(QB,4)}, v9 offset:{QL}")
    A("s_waitcnt lgkmcnt(0)")
    for m in range(16):
        A(f"v_mfma_f32_16x16x32_bf16 {v(KR+4*m,4)}, {v(KR+4+4*m,4)}, {v(QB,4)}, 0")
    A("s_nop 3")
    for step in range(3):
        for m in range(16):
            D = KR + 4 * m
            beta = m & 3
            k = m >> 2
            e = (beta + 1 + step) & 3
            rot = (4 * (beta - e)) & 15
            if step < 2:
                A(f"v_add_f32_dpp {v(D+beta)}, {v(D+e)}, {v(D+beta)} row_ror:{rot} {DPP}")
            else:
                A(f"v_add_f32_dpp {v(Z+k)}, {v(D+e)}, {v(D+beta)} row_ror:{rot} row_mask:0xf bank_mask:{1<<beta:#x}")
    for m in range(0, 4, 2):
        A(f"v_cvt_pk_bf16_f32 v9, {v(Z+m)}, {v(Z+m+1)}")
        A("v_lshlrev_b32 v10, 16, v9")
        A("v_and_b32 v11, 0xffff0000, v9")
        A("v_mul_f32 v10, s45, v10")
        A("v_mul_f32 v11, s45, v11")
        A("v_cvt_pk_bf16_f32 v9, v10, v11")
        A(f"v_lshlrev_b32 {v(Z+m)}, 16, v9")
        A(f"v_and_b32 {v(Z+m+1)}, 0xffff0000, v9")
    A(f"v_max3_f32 v12, {v(Z)}, {v(Z+1)}, {v(Z+2)}")
    A(f"v_max_f32 v12, v12, {v(Z+3)}")
    dpp_steps(g, [12], "v_max_f32", ["row_ror:4", "row_ror:8"])
    swap_reduce(g, [12], [9], "v_max_f32", (16, 32))
    for m in range(4):
        A(f"v_sub_f32 {v(KR+m)}, {v(Z+m)}, v12")
        A(f"v_mul_f32 {v(KR+m)}, s44, {v(KR+m)}")
        A(f"v_exp_f32 {v(KR+m)}, {v(KR+m)}")
    A("s_nop 0")
    A(f"v_add_f32 v13, {v(KR)}, {v(KR+1)}")
    A(f"v_add_f32 v13, v13, {v(KR+2)}")
    A(f"v_add_f32 v13, v13, {v(KR+3)}")
    dpp_steps(g, [13], "v_add_f32", ["row_ror:4", "row_ror:8"])
    swap_reduce(g, [13], [9], "v_add_f32", (16, 32))
    A("s_lshl_b32 s33, s28, 5")
    A("v_lshlrev_b32 v9, 3, v3")
    A("v_add_u32 v9, s33, v9")
    A(f"ds_write_b64 v9, v[12:13] offset:{WST}")
    A("v_mov_b32 v10, 1")
    A("s_waitcnt lgkmcnt(0)")
    A(f"ds_add_u32 v164, v10 offset:{FLG+4}")
    A("s_mov_b32 s49, 2")
    stamp(g, 4, stamps)
    A("s_setpc_b64 s[54:55]")

    g.label("L_ctrl")
    stamp(g, 0, stamps)
    if cpf:
        A("s_getpc_b64 s[52:53]")
        g.label("L_pc1")
        A(f"s_sub_u32 s52, s52, L_pc1-{NAME}_kernel")
        A("s_subb_u32 s53, s53, 0")
        A("v_lshlrev_b32 v150, 7, v0")
        for i in range(cpf):
            A(f"global_load_dword {v(151+i)}, v150, s[52:53]")
            A("v_add_u32 v150, 8192, v150")
    Ln = g.newlabel("nonce")
    A("s_cmp_lg_u32 s2, 255")
    A(f"s_cbranch_scc1 {Ln}")
    A("s_memrealtime s[52:53]")
    A("s_waitcnt lgkmcnt(0)")
    A("s_or_b32 s52, s52, 1")
    A("v_mov_b32 v12, s52")
    A("v_mov_b32 v13, 0")
    A("v_mov_b32 v14, 0")
    A("s_mov_b64 exec, 0x1")
    A("global_atomic_cmpswap v14, v[12:13], s[24:25] sc1")
    A("s_mov_b64 exec, -1")
    g.label(Ln)
    A("v_lshlrev_b32 v1, 4, v0")
    A("v_mov_b32 v164, 0")
    A("v_mov_b32 v165, 0")
    A("v_mov_b32 v166, 0")
    A("v_mov_b32 v167, 0")
    A(f"ds_write_b128 v164, v[164:167] offset:{FLG}")
    A("s_waitcnt lgkmcnt(0)")
    if bare == 1:
        A("v_mov_b32 v165, 1")
        A(f"ds_write_b32 v164, v165 offset:{FLG}")
        A(f"ds_write_b32 v164, v165 offset:{FLG+8}")
        A("s_waitcnt lgkmcnt(0)")
        A("s_barrier")
        A("s_branch L_end")
    A("s_bfe_u32 s33, s2, 0x20003")
    A("s_lshl_b32 s34, s58, 2")
    A("s_add_u32 s36, s33, s34")
    A("s_bfe_u32 s37, s2, 0x20005")
    A("v_lshrrev_b32 v2, 4, v0")
    A("v_and_b32 v3, 15, v0")
    A("s_lshl_b32 s34, s29, 12")
    A("s_lshl_b32 s35, s30, 11")
    A("s_add_u32 s34, s34, s35")
    A("s_lshl_b32 s35, s59, 7")
    A("s_add_u32 s34, s34, s35")
    A(f"s_add_u32 s38, s34, {YP:#x}")
    WQR = 16

    def prefetch():
        A("s_lshr_b32 s33, s2, 3")
        A("v_lshrrev_b32 v140, 4, v0")
        A("s_cmp_lt_u32 s58, 4")
        A("s_cselect_b32 s34, 3, 2")
        A("v_min_u32 v140, s34, v140")
        A("v_lshlrev_b32 v140, 10, v140")
        A("v_and_b32 v141, 15, v0")
        A("v_mul_u32_u24 v141, 3584, v141")
        A("s_mul_i32 s34, s33, 57344")
        A("s_lshl_b32 s35, s58, 7")
        A("s_add_u32 s34, s34, s35")
        A("v_add3_u32 v140, v140, v141, s34")
        A("global_load_dword v142, v140, s[16:17]")
        A("global_load_dword v143, v140, s[18:19]")
        A("v_min_u32 v140, 55, v0")
        A("v_lshlrev_b32 v140, 10, v140")
        A("s_mul_i32 s34, s33, 57344")
        A("s_add_u32 s34, s34, s35")
        A("v_add_u32 v140, s34, v140")
        A("global_load_dword v144, v140, s[20:21]")

    def fills():
        for i in range(4):
            A(f"v_mov_b32 {v(16+i)}, -1")
        A("s_lshl_b32 s33, s32, 4")
        A("s_add_u32 s33, s33, s31")
        A("s_lshl_b32 s34, s33, 11")
        A(f"s_add_u32 s34, s34, {OP:#x}")
        A("v_add_u32 v160, s34, v1")
        A("global_store_dwordx4 v160, v[16:19], s[26:27] sc1")
        A("global_store_dwordx4 v160, v[16:19], s[26:27] offset:1024 sc1")
        A("v_add_u32 v161, s38, v1")
        A("s_mov_b64 exec, 0xff")
        A("global_store_dwordx4 v161, v[16:19], s[26:27] sc1")
        A("s_mov_b64 exec, -1")
        Lskip = g.newlabel("skip_acs")
        A("s_cmp_lg_u32 s51, 1")
        A(f"s_cbranch_scc1 {Lskip}")
        A("s_lshl_b32 s34, s50, 1")
        A(f"s_add_u32 s34, s34, {AC:#x}")
        A("v_lshrrev_b32 v162, 2, v0")
        A("v_mul_u32_u24 v162, 3584, v162")
        A("v_and_b32 v163, 3, v0")
        A("v_lshlrev_b32 v163, 4, v163")
        A("v_add3_u32 v162, v162, v163, s34")
        A("s_mov_b64 exec, 0xff")
        A("global_store_dwordx4 v162, v[16:19], s[26:27] sc1")
        A("s_mov_b64 exec, -1")
        g.label(Lskip)

    def nonce_loop(first_loaded):
        L = g.newlabel("nn")
        Ld = g.newlabel("nn_done")
        A(f"s_mov_b32 s46, {SPIN}")
        if first_loaded:
            A("s_waitcnt vmcnt(0)")
            A("v_readfirstlane_b32 s47, v5")
            A("s_cmp_lg_u32 s47, 0")
            A(f"s_cbranch_scc1 {Ld}")
        g.label(L)
        A("global_load_dword v5, v6, s[24:25] sc1")
        A("s_waitcnt vmcnt(0)")
        A("v_readfirstlane_b32 s47, v5")
        A("s_cmp_lg_u32 s47, 0")
        A(f"s_cbranch_scc1 {Ld}")
        if SLP:
            A(f"s_sleep {SLP}")
        A("s_sub_u32 s46, s46, 1")
        A("s_cmp_lg_u32 s46, 0")
        A(f"s_cbranch_scc1 {L}")
        g.label(Ld)

    Lnp = g.newlabel("noprod")
    Lnp2 = g.newlabel("front_done")
    A("s_cmp_ge_u32 s2, 128")
    A(f"s_cbranch_scc1 {Lnp}")
    A("global_load_dwordx4 v[4:7], v1, s[4:5]")
    A("global_load_dwordx4 v[8:11], v1, s[4:5] offset:1024")
    A("s_lshl_b32 s33, s37, 20")
    A("s_lshl_b32 s34, s36, 8")
    A("s_add_u32 s33, s33, s34")
    A("v_lshlrev_b32 v12, 13, v2")
    A("v_lshlrev_b32 v13, 4, v3")
    A("v_add3_u32 v12, v12, v13, s33")
    for i in range(32):
        if i:
            A("v_add_u32 v12, 0x8000, v12")
        A(f"global_load_dwordx4 {v(WQR+4*i,4)}, v12, s[10:11] nt")
    if b0 == 1:
        A("s_barrier")
    A("s_waitcnt vmcnt(32)")
    stamp(g, 13, stamps)
    A(f"ds_write_b128 v1, v[4:7] offset:{XL}")
    A(f"ds_write_b128 v1, v[8:11] offset:{XL+1024}")
    unpack8(g, 144, 4)
    unpack8(g, 152, 8)
    layernorm2(g, 144, 4, [12, 13, 14, 15] + list(range(160, 168)))
    A(f"ds_write_b128 v1, {v(4,4)} offset:{XN}")
    A(f"ds_write_b128 v1, {v(8,4)} offset:{XN+1024}")
    A("v_bfe_u32 v160, v0, 3, 1")
    A("v_lshlrev_b32 v160, 10, v160")
    A("v_lshlrev_b32 v161, 1, v2")
    A("s_lshl_b32 s33, s37, 8")
    A("v_add3_u32 v160, v160, v161, s33")
    A("s_waitcnt lgkmcnt(0)")
    A("v_and_b32 v5, 7, v0")
    A("v_mov_b32 v6, 0xffff")
    A("v_mov_b32 v7, 0xffff0000")
    for d in range(4):
        A(f"v_mov_b32 {v(8+d)}, 0")
        A(f"v_cmp_eq_u32 vcc, {2*d}, v5")
        A("s_nop 1")
        A(f"v_cndmask_b32 {v(8+d)}, {v(8+d)}, v6, vcc")
        A(f"v_cmp_eq_u32 vcc, {2*d+1}, v5")
        A("s_nop 1")
        A(f"v_cndmask_b32 {v(8+d)}, {v(8+d)}, v7, vcc")
    A("v_mov_b32 v6, 0")
    A("global_load_dword v5, v6, s[24:25] sc1")
    QD = 12
    for half in range(2):
        for i in range(16):
            A(f"ds_read_u16 {v(144+i)}, v160 offset:{XN+8*(16*half+i)}")
        A("s_waitcnt lgkmcnt(0)")
        if half == 0:
            A("s_waitcnt vmcnt(17)")
            if b0 == 2:
                A("s_barrier")
        else:
            A("s_waitcnt vmcnt(1)")
            if b0 == 3:
                A("s_barrier")
        stamp(g, 14 + half, stamps)
        for i in range(16):
            ii = 16 * half + i
            Bq = 160 + 4 * (i % 2)
            A(f"v_lshl_or_b32 {v(144+i)}, {v(144+i)}, 16, {v(144+i)}")
            for d in range(4):
                A(f"v_and_b32 {v(Bq+d)}, {v(144+i)}, {v(8+d)}")
            A("s_nop 1")
            c = "0" if ii == 0 else v(QD, 4)
            A(f"v_mfma_f32_16x16x32_bf16 {v(QD,4)}, {v(WQR+4*ii,4)}, {v(Bq,4)}, {c}")
        if half == 0:
            A("v_bfe_u32 v160, v0, 3, 1")
            A("v_lshlrev_b32 v160, 10, v160")
            A("v_lshlrev_b32 v161, 1, v2")
            A("v_add3_u32 v160, v160, v161, s33")
    stamp(g, 16, stamps)
    nonce_loop(True)
    stamp(g, 1, stamps)
    A("s_lshl_b32 s33, s37, 5")
    A("s_add_u32 s33, s33, s36")
    A("s_lshl_b32 s33, s33, 11")
    A("v_add_u32 v160, s33, v1")
    A(f"v_mov_b32 v20, {v(QD+3)}")
    A("v_mov_b32 v21, s47")
    A("v_mov_b32 v22, s47")
    A("v_mov_b32 v23, s47")
    A(f"v_mov_b32 {v(QD+3)}, s47")
    A(f"global_store_dwordx4 v160, {v(QD,4)}, s[26:27] offset:{QP} sc1")
    A(f"global_store_dwordx4 v160, v[20:23], s[26:27] offset:{QP+1024} sc1")
    if b0 == 4:
        A("s_barrier")
    fills()
    A(f"s_branch {Lnp2}")
    g.label(Lnp)
    if b0:
        A("s_barrier")
    A("global_load_dwordx4 v[8:11], v1, s[4:5]")
    A("global_load_dwordx4 v[12:15], v1, s[4:5] offset:1024")
    fills()
    A("v_mov_b32 v6, 0")
    nonce_loop(False)
    stamp(g, 1, stamps)
    A(f"ds_write_b128 v1, v[8:11] offset:{XL}")
    A(f"ds_write_b128 v1, v[12:15] offset:{XL+1024}")
    g.label(Lnp2)
    A("v_bfe_u32 v4, v0, 2, 2")
    A("v_and_b32 v5, 3, v0")
    A("v_lshlrev_b32 v4, 16, v4")
    A("v_lshlrev_b32 v5, 11, v5")
    A("s_lshl_b32 s33, s29, 13")
    A("v_add3_u32 v4, v4, v5, s33")
    poll_pipe(g, lambda r: f"global_load_dword {v(r)}, v4, s[26:27] offset:{QP+2044} sc1", 1, 100, 3, [0], 16, "ql", anyok=bool(qany))
    A("v_lshrrev_b32 v4, 5, v0")
    A("v_bfe_u32 v5, v0, 3, 2")
    A("v_and_b32 v6, 7, v0")
    A("s_lshl_b32 s34, s30, 7")
    A("s_add_u32 s33, s33, s34")
    A("v_lshlrev_b32 v7, 11, v4")
    A("v_lshlrev_b32 v8, 8, v5")
    A("v_lshlrev_b32 v9, 4, v6")
    A("v_add3_u32 v7, v7, v8, v9")
    A("v_add_u32 v7, s33, v7")
    for k in range(1, 8):
        A(f"v_add_u32 {v(7+k)}, {4096*(k%2) + 65536*(k//2)}, v7")
    loads = []
    for ks in range(4):
        for hp in range(2):
            for gr in range(2):
                loads.append(f"global_load_dwordx4 {v(24+16*ks+8*hp+4*gr,4)}, {v(7+2*ks+hp)}, s[26:27] offset:{QP+1024*gr} sc1")
    poll_tag(g, loads, [24 + 4 * k + 3 for k in range(16)], 16, "qg")
    stamp(g, 2, stamps)
    for ks in range(4):
        for hp in range(2):
            A(f"v_mov_b32 {v(24+16*ks+8*hp+3)}, {v(24+16*ks+8*hp+4)}")
    for ks in range(1, 4):
        for hp in range(2):
            for i in range(4):
                A(f"v_add_f32 {v(24+8*hp+i)}, {v(24+8*hp+i)}, {v(24+16*ks+8*hp+i)}")
    A("v_lshlrev_b32 v7, 8, v4")
    A("v_lshlrev_b32 v8, 6, v5")
    A("v_lshlrev_b32 v9, 1, v6")
    A("v_add3_u32 v7, v7, v8, v9")
    for hp in range(2):
        for r in range(4):
            A(f"v_cvt_pk_bf16_f32 {v(16+4*hp+r)}, {v(24+8*hp+r)}, {v(24+8*hp+r)}")
            A(f"ds_write_b16 v7, {v(16+4*hp+r)} offset:{QL+512*hp+16*r}")
    A("s_waitcnt lgkmcnt(0)")
    A("v_mov_b32 v164, 0")
    A("v_mov_b32 v165, 1")
    A(f"ds_write_b32 v164, v165 offset:{FLG}")
    stamp(g, 3, stamps)
    if pfp == 1:
        prefetch()
    if bare == 2:
        A(f"ds_write_b32 v164, v165 offset:{FLG+8}")
        A("s_branch L_end")
    A("v_and_b32 v4, 31, v0")
    A("v_lshlrev_b32 v4, 3, v4")
    A("s_lshl_b32 s33, s32, 10")
    A("s_lshl_b32 s34, s31, 6")
    A(f"s_add_u32 s33, s33, {ST:#x}")
    A("s_add_u32 s34, s34, s33")
    A("v_add_u32 v6, s34, v1")
    A("v_add_u32 v7, s33, v1")
    A("s_lshl_b32 s33, s2, 2")
    A(f"s_add_u32 s33, s33, {FL:#x}")
    A("v_mov_b32 v8, s33")
    A("v_mov_b32 v9, s47")
    L = g.newlabel("wc")
    Ld = g.newlabel("wc_done")
    A(f"s_mov_b32 s46, {SPIN*16}")
    g.label(L)
    A(f"ds_read_b32 v166, v164 offset:{FLG+4}")
    A("s_waitcnt lgkmcnt(0)")
    A("v_readfirstlane_b32 s48, v166")
    A("s_cmp_eq_u32 s48, 512")
    A(f"s_cbranch_scc1 {Ld}")
    A("s_sub_u32 s46, s46, 1")
    A("s_cmp_lg_u32 s46, 0")
    A(f"s_cbranch_scc1 {L}")
    g.label(Ld)
    stamp(g, 4, stamps)
    A(f"ds_read_b64 v[12:13], v4 offset:{WST}")
    A("s_waitcnt lgkmcnt(0)")
    A("v_mov_b32 v14, v12")

    def red_s4(reg, tmp, op, full):
        dpp_steps(g, [reg], op, ["row_ror:4", "row_ror:8"])
        swap_reduce(g, [reg], [tmp], op, (16, 32) if full else (16,))

    red_s4(14, 15, "v_max_f32", False)
    A("v_sub_f32 v12, v12, v14")
    A("v_mul_f32 v12, s44, v12")
    A("v_exp_f32 v12, v12")
    A("s_nop 0")
    A("v_mul_f32 v13, v13, v12")
    red_s4(13, 15, "v_add_f32", False)
    A("v_mov_b32 v12, v14")
    A("v_mov_b32 v14, s47")
    A("v_mov_b32 v15, s47")
    A("s_mov_b64 exec, 0xf")
    A("global_store_dwordx4 v6, v[12:15], s[26:27] sc1")
    A("s_mov_b64 exec, 0x1")
    A("global_store_dword v8, v9, s[26:27] sc1")
    A("s_mov_b64 exec, -1")
    poll_pipe(g, lambda r: f"global_load_dwordx4 {v(r,4)}, v7, s[26:27] sc1", 4, 100, stk, [3], 16, "st", dst=12, slp=bool(sts), force=True)
    stamp(g, 5, stamps)
    A("v_mov_b32 v14, v12")
    red_s4(14, 15, "v_max_f32", True)
    A("v_sub_f32 v12, v12, v14")
    A("v_mul_f32 v12, s44, v12")
    A("v_exp_f32 v12, v12")
    A("s_nop 0")
    A("v_mul_f32 v13, v13, v12")
    red_s4(13, 15, "v_add_f32", True)
    A("v_rcp_f32 v15, v13")
    A("s_nop 0")
    A("v_fma_f32 v12, -v13, v15, 1.0")
    A("v_fmac_f32 v15, v12, v15")
    A("v_mov_b32 v12, v14")
    A("v_mov_b32 v13, v15")
    A("v_and_b32 v4, 3, v0")
    A("v_lshlrev_b32 v4, 3, v4")
    A(f"ds_write_b64 v4, v[12:13] offset:{GST}")
    A("s_waitcnt lgkmcnt(0)")
    A(f"ds_write_b32 v164, v165 offset:{FLG+8}")
    stamp(g, 6, stamps)
    if pfp == 2:
        prefetch()
    if bare == 3:
        A("s_branch L_end")
    Lnof = g.newlabel("nofl")
    A("s_cmp_eq_u32 s51, 0")
    A(f"s_cbranch_scc1 {Lnof}")
    A(f"v_add_u32 v6, {FL:#x}, v1")
    poll_pipe(g, lambda r: f"global_load_dwordx4 {v(r,4)}, v6, s[26:27] sc1", 4, 100, 1, [0, 1, 2, 3], 16, "fl")
    g.label(Lnof)
    A("s_lshl_b32 s33, s32, 15")
    A("s_lshl_b32 s34, s31, 11")
    A("s_add_u32 s33, s33, s34")
    A(f"s_add_u32 s33, s33, {OP:#x}")
    A("v_add_u32 v6, s33, v1")
    A("s_lshl_b32 s33, s32, 8")
    A(f"s_add_u32 s33, s33, {F1:#x}")
    A("s_lshl_b32 s34, s31, 2")
    A("s_add_u32 s34, s34, s33")
    A("v_mov_b32 v8, s34")
    A("v_lshlrev_b32 v7, 2, v3")
    A("v_add_u32 v7, s33, v7")
    A("v_mov_b32 v9, s47")
    A("s_barrier")
    stamp(g, 7, stamps)
    for c in range(2):
        for w in range(8):
            A(f"ds_read_b128 {v(16+32*c+4*w,4)}, v1 offset:{RED+2048*w+1024*c}")
    for c in range(2):
        A(f"s_waitcnt lgkmcnt({8*(1-c)})")
        b = 16 + 32 * c
        for i in range(4):
            A(f"v_add_f32 {v(b+i)}, {v(b+i)}, {v(b+4+i)}")
            A(f"v_add_f32 {v(b+8+i)}, {v(b+8+i)}, {v(b+12+i)}")
            A(f"v_add_f32 {v(b+16+i)}, {v(b+16+i)}, {v(b+20+i)}")
            A(f"v_add_f32 {v(b+24+i)}, {v(b+24+i)}, {v(b+28+i)}")
        for i in range(4):
            A(f"v_add_f32 {v(b+i)}, {v(b+i)}, {v(b+8+i)}")
            A(f"v_add_f32 {v(b+16+i)}, {v(b+16+i)}, {v(b+24+i)}")
        for i in range(4):
            A(f"v_add_f32 {v(b+i)}, {v(b+i)}, {v(b+16+i)}")
            A(f"v_min_u32 {v(b+i)}, 0xfffffffe, {v(b+i)}")
        A(f"global_store_dwordx4 v6, {v(b,4)}, s[26:27] offset:{1024*c} sc1")
    A("s_mov_b64 exec, 0x1")
    A("global_store_dword v8, v9, s[26:27] sc1")
    A("s_mov_b64 exec, -1")
    if pfp == 3:
        prefetch()
    poll_pipe(g, lambda r: f"global_load_dword {v(r)}, v7, s[26:27] sc1", 1, 100, f1k, [0], 16, "f1", slp=bool(f1s), force=True)
    stamp(g, 8, stamps)
    A("s_barrier")
    if pfp == 4:
        prefetch()
    A("v_and_b32 v4, 31, v0")
    A("v_lshlrev_b32 v4, 2, v4")
    A("v_add_u32 v6, s38, v4")
    A("s_barrier")
    stamp(g, 9, stamps)
    for w in range(8):
        A(f"ds_read_b32 {v(16+w)}, v4 offset:{R2+128*w}")
    A("s_waitcnt lgkmcnt(0)")
    for w in range(0, 8, 2):
        A(f"v_add_f32 {v(16+w)}, {v(16+w)}, {v(17+w)}")
    A("v_add_f32 v16, v16, v18")
    A("v_add_f32 v20, v20, v22")
    A("v_add_f32 v16, v16, v20")
    A("v_min_u32 v16, 0xfffffffe, v16")
    A("s_mov_b32 exec_hi, 0")
    A("global_store_dword v6, v16, s[26:27] sc1")
    A("s_mov_b64 exec, -1")
    A("s_cmp_eq_u32 s51, 0")
    A("s_cbranch_scc1 L_end")
    A("s_cmp_eq_u32 s51, 2")
    A("s_cbranch_scc1 L_cdown")
    A("v_lshrrev_b32 v4, 5, v0")
    A("v_and_b32 v5, 31, v0")
    A("v_lshlrev_b32 v10, 8, v4")
    A("v_lshlrev_b32 v11, 2, v5")
    A("v_add_u32 v10, v10, v11")
    A("s_lshl_b32 s33, s50, 1")
    A(f"s_add_u32 s33, s33, {AC:#x}")
    A("v_mul_u32_u24 v6, 3584, v4")
    A("v_lshlrev_b32 v11, 1, v5")
    A("v_add3_u32 v6, v6, v11, s33")
    A("s_mov_b32 s39, 0x200")
    A("s_mov_b32 s52, 0x55555555")
    A("s_mov_b32 s53, 0x55555555")
    A("s_barrier")
    A("s_barrier")
    stamp(g, 11, stamps)
    for w in range(8):
        A(f"ds_read_b32 {v(16+w)}, v10 offset:{R4+512*w}")
        A(f"ds_read_b32 {v(24+w)}, v10 offset:{R4+512*w+128}")
    A("s_waitcnt lgkmcnt(0)")
    for base in (16, 24):
        for w in range(0, 8, 2):
            A(f"v_add_f32 {v(base+w)}, {v(base+w)}, {v(base+w+1)}")
        A(f"v_add_f32 {v(base)}, {v(base)}, {v(base+2)}")
        A(f"v_add_f32 {v(base+4)}, {v(base+4)}, {v(base+6)}")
        A(f"v_add_f32 {v(base)}, {v(base)}, {v(base+4)}")
    A("v_cvt_pk_bf16_f32 v18, v16, v24")
    A("v_lshlrev_b32 v16, 16, v18")
    A("v_and_b32 v24, 0xffff0000, v18")
    A("v_mul_f32 v18, s44, v16")
    A("v_exp_f32 v18, -v18")
    A("s_nop 0")
    A("v_add_f32 v18, 1.0, v18")
    A("v_rcp_f32 v20, v18")
    A("s_nop 0")
    A("v_mul_f32 v22, v16, v20")
    A("v_mov_b32 v21, v22")
    A("v_fma_f32 v23, -v22, v18, v16")
    A("v_fmac_f32 v22, v23, v20")
    A("v_cmp_class_f32 vcc, v18, s39")
    A("s_nop 1")
    A("v_cndmask_b32 v22, v22, v21, vcc")
    bf16r(g, 22, 22, 18)
    A("v_mul_f32 v22, v22, v24")
    A("v_cvt_pk_bf16_f32 v18, v22, v22")
    A("v_and_b32 v18, 0xffff, v18")
    A("s_nop 1")
    A(f"v_mov_b32_dpp v19, v18 quad_perm:[1,0,3,2] {DPP}")
    A("v_lshl_or_b32 v18, v19, 16, v18")
    A("v_min_u32 v18, 0xfffffffe, v18")
    A("s_mov_b64 exec, s[52:53]")
    A("global_store_dword v6, v18, s[26:27] sc1")
    A("s_mov_b64 exec, -1")
    A("s_branch L_end")
    g.label("L_cdown")
    A("v_lshrrev_b32 v4, 3, v0")
    A("v_bfe_u32 v5, v0, 2, 1")
    A("v_and_b32 v7, 3, v0")
    A("v_lshlrev_b32 v8, 12, v4")
    A("v_lshlrev_b32 v10, 11, v5")
    A("v_lshlrev_b32 v11, 4, v7")
    A("v_add3_u32 v8, v8, v10, v11")
    A("s_lshl_b32 s33, s50, 2")
    A(f"s_add_u32 s33, s33, {YP:#x}")
    A("v_add_u32 v8, s33, v8")
    A("v_lshlrev_b32 v10, 10, v5")
    A("v_lshlrev_b32 v11, 3, v7")
    A("s_lshl_b32 s33, s50, 1")
    A("v_add3_u32 v10, v10, v11, s33")
    A(f"ds_read_b64 v[40:41], v10 offset:{XL}")
    A("v_lshlrev_b32 v11, 6, v5")
    A("v_lshlrev_b32 v12, 4, v7")
    A("v_add_u32 v11, v11, v12")
    poll_loop(g, ["global_load_dwordx4 v[16:19], v8, s[26:27] sc1"], [16, 17, 18, 19], 12, "hy", slp=True)
    dpp_steps(g, [16, 17, 18, 19], "v_add_f32", ["row_ror:8"])
    swap_reduce(g, [16, 17, 18, 19], [20, 21, 22, 23], "v_add_f32", (16, 32))
    A("s_waitcnt lgkmcnt(0)")
    A("v_lshlrev_b32 v36, 16, v40")
    A("v_and_b32 v37, 0xffff0000, v40")
    A("v_lshlrev_b32 v38, 16, v41")
    A("v_and_b32 v39, 0xffff0000, v41")
    for i in (0, 2):
        A(f"v_cvt_pk_bf16_f32 v20, {v(16+i)}, {v(17+i)}")
        A(f"v_lshlrev_b32 {v(16+i)}, 16, v20")
        A(f"v_and_b32 {v(17+i)}, 0xffff0000, v20")
        A(f"v_add_f32 {v(16+i)}, {v(16+i)}, {v(36+i)}")
        A(f"v_add_f32 {v(17+i)}, {v(17+i)}, {v(37+i)}")
        A(f"v_cvt_pk_bf16_f32 v20, {v(16+i)}, {v(17+i)}")
        A(f"v_lshlrev_b32 {v(36+i)}, 16, v20")
        A(f"v_and_b32 {v(37+i)}, 0xffff0000, v20")
    A("s_barrier")
    stamp(g, 17, stamps)
    for w in range(8):
        A(f"ds_read_b128 {v(48+4*w,4)}, v11 offset:{R5+128*w}")
    A("s_waitcnt lgkmcnt(0)")
    for i in range(4):
        for w in range(0, 8, 2):
            A(f"v_add_f32 {v(48+4*w+i)}, {v(48+4*w+i)}, {v(52+4*w+i)}")
        A(f"v_add_f32 {v(48+i)}, {v(48+i)}, {v(56+i)}")
        A(f"v_add_f32 {v(64+i)}, {v(64+i)}, {v(72+i)}")
        A(f"v_add_f32 {v(48+i)}, {v(48+i)}, {v(64+i)}")
    for i in (0, 2):
        A(f"v_cvt_pk_bf16_f32 v20, {v(48+i)}, {v(49+i)}")
        A(f"v_lshlrev_b32 {v(48+i)}, 16, v20")
        A(f"v_and_b32 {v(49+i)}, 0xffff0000, v20")
        A(f"v_add_f32 {v(48+i)}, {v(48+i)}, {v(36+i)}")
        A(f"v_add_f32 {v(49+i)}, {v(49+i)}, {v(37+i)}")
        A(f"v_cvt_pk_bf16_f32 {v(16+i//2)}, {v(48+i)}, {v(49+i)}")
    A("s_mov_b64 exec, 0xff")
    A("global_store_dwordx2 v10, v[16:17], s[22:23]")
    A("s_mov_b64 exec, -1")
    g.label("L_end")
    if stamps:
        A("s_waitcnt vmcnt(0)")
        stamp(g, 31, True)
        A("v_mov_b32 v166, s62")
        for i in range(32):
            A(f"v_mov_b32 v167, s{64+i}")
            A(f"global_store_dword v166, v167, s[26:27] offset:{4*i}")
    g.label("L_end2")
    A("s_endpgm")

    tail = []
    tail.append('.section .rodata,"a"')
    tail.append(".p2align 6")
    tail.append(f".amdhsa_kernel {NAME}_kernel")
    tail.append("  .amdhsa_next_free_vgpr 168")
    tail.append("  .amdhsa_next_free_sgpr 102")
    tail.append("  .amdhsa_accum_offset 168")
    tail.append("  .amdhsa_group_segment_fixed_size 0")
    tail.append("  .amdhsa_kernarg_size 96")
    tail.append("  .amdhsa_user_sgpr_count 2")
    tail.append("  .amdhsa_user_sgpr_kernarg_segment_ptr 1")
    tail.append("  .amdhsa_system_sgpr_workgroup_id_x 1")
    tail.append(".end_amdhsa_kernel")
    return "\n".join(hdr + g.L + tail) + "\n"


if __name__ == "__main__":
    import argparse
    ap = argparse.ArgumentParser()
    ap.add_argument("-o", default="k.s")
    ap.add_argument("--depth", type=int, default=3)
    ap.add_argument("--n1", type=int, default=3)
    ap.add_argument("--n2", type=int, default=10)
    ap.add_argument("--wnt", type=int, default=1)
    ap.add_argument("--stamps", type=int, default=0)
    ap.add_argument("--b0", type=int, default=1)
    ap.add_argument("--rp", type=int, default=1)
    ap.add_argument("--qany", type=int, default=1)
    ap.add_argument("--rpos", type=int, default=0)
    ap.add_argument("--now", type=int, default=0)
    ap.add_argument("--bare", type=int, default=0)
    ap.add_argument("--rpg", type=int, default=1)
    ap.add_argument("--rpd", type=int, default=1)
    ap.add_argument("--gnt", type=int, default=0)
    ap.add_argument("--wpos", type=int, default=0)
    ap.add_argument("--dsw", type=int, default=99)
    ap.add_argument("--mp", type=int, default=0)
    ap.add_argument("--tpos", type=int, default=0)
    ap.add_argument("--pfp", type=int, default=0)
    ap.add_argument("--tg1", type=int, default=3)
    ap.add_argument("--nb0", type=int, default=0)
    ap.add_argument("--f1k", type=int, default=1)
    ap.add_argument("--cpf", type=int, default=0)
    ap.add_argument("--f1s", type=int, default=1)
    ap.add_argument("--stk", type=int, default=1)
    ap.add_argument("--sts", type=int, default=1)
    ap.add_argument("--td1", type=int, default=2)
    ap.add_argument("--depth2", type=int, default=3)
    ap.add_argument("--pk", type=int, default=3)
    ap.add_argument("--slp", type=int, default=0)
    ap.add_argument("--slp2", type=int, default=0)
    a = ap.parse_args()
    PK = a.pk
    SLP = a.slp
    SLP2 = a.slp2
    open(a.o, "w").write(gen(a.depth, a.n1, a.n2, bool(a.wnt), bool(a.stamps), a.b0, a.rp, a.qany, a.rpos, a.now, a.bare, a.rpg, a.rpd, a.gnt, a.wpos, a.dsw, a.depth2, a.mp, a.tpos, a.pfp, a.tg1, a.td1, a.nb0, a.f1k, a.f1s, a.stk, a.sts, a.cpf))
```

```python
import sys

NAME = "sequential_preLN__gqa_block_cached__swiglu_ffn__decode"

QP = 0x00000
ST = 0x40000
OP = 0x80000
YP = 0x100000
AC = 0x110000
FL = 0x120000
F1 = 0x121000
F2 = 0x122000
F3 = 0x123000
TS = 0x200000
GT = 0x300000
DT = 0x700000

XL = 0
XN = XL + 2048
QL = XN + 2048
WST = QL + 1024
GST = WST + 256
FLG = GST + 128
RED = GST + 256
AO = RED + 16384
R2 = AO + 1024
LS = R2 + 1024
HN = LS + 256
R4 = HN + 2048
R5 = R4
WO_L = 32768
assert R4 + 4096 <= WO_L
GU_L = WO_L + 32768
WD_L = GU_L
LDS_TOTAL = GU_L + 65536

LOG2E = 0x3FB8AA3B
SCALE = 0x3DB504F3
EPS = 0x3727C5AC
INV512 = 0x3B000000
SPIN = 4000
PK = 3
SLP = 0
SLP2 = 0


class G:
    def __init__(self):
        self.L = []
        self.nlab = 0

    def __call__(self, s):
        self.L.append("  " + s)

    def label(self, name):
        self.L.append(name + ":")

    def newlabel(self, base):
        self.nlab += 1
        return f"L_{base}_{self.nlab}"


def v(i, n=1):
    return f"v{i}" if n == 1 else f"v[{i}:{i+n-1}]"


DPP = "row_mask:0xf bank_mask:0xf"


def bf16r(g, dst, src, tmp):
    g(f"v_cvt_pk_bf16_f32 {v(tmp)}, {v(src)}, {v(src)}")
    g(f"v_lshlrev_b32 {v(dst)}, 16, {v(tmp)}")


def dpp_steps(g, regs, op, steps):
    for st in steps:
        if len(regs) < 3:
            g("s_nop 1")
        for r in regs:
            g(f"{op}_dpp {v(r)}, {v(r)}, {v(r)} {st} {DPP}")


def swap_reduce(g, regs, tmps, op, which):
    for sw in which:
        ins = {16: "v_permlane16_swap_b32", 32: "v_permlane32_swap_b32"}[sw]
        for r, t in zip(regs, tmps):
            g(f"v_mov_b32 {v(t)}, {v(r)}")
        g("s_nop 1")
        for r, t in zip(regs, tmps):
            g(f"{ins} {v(r)}, {v(t)}")
        for r, t in zip(regs, tmps):
            g(f"{op} {v(r)}, {v(r)}, {v(t)}")


def wave_reduce(g, regs, tmps, op):
    dpp_steps(g, regs, op, ["quad_perm:[1,0,3,2]", "quad_perm:[2,3,0,1]", "row_ror:4", "row_ror:8"])
    swap_reduce(g, regs, tmps, op, (16, 32))


def unpack8(g, dst, src):
    for i in range(4):
        g(f"v_lshlrev_b32 {v(dst+2*i)}, 16, {v(src+i)}")
        g(f"v_and_b32 {v(dst+2*i+1)}, 0xffff0000, {v(src+i)}")


def ln_finish_pair(g, f0, f1, mean_b, den, rc, D, out):
    g(f"v_sub_f32 {v(D[0])}, {v(f0)}, {v(mean_b)}")
    g(f"v_sub_f32 {v(D[1])}, {v(f1)}, {v(mean_b)}")
    g(f"v_cvt_pk_bf16_f32 {v(D[2])}, {v(D[0])}, {v(D[1])}")
    g(f"v_lshlrev_b32 {v(D[0])}, 16, {v(D[2])}")
    g(f"v_and_b32 {v(D[1])}, 0xffff0000, {v(D[2])}")
    g(f"v_mul_f32 {v(D[2])}, {v(D[0])}, {v(rc)}")
    g(f"v_mul_f32 {v(D[3])}, {v(D[1])}, {v(rc)}")
    g(f"v_fma_f32 {v(D[4])}, -{v(D[2])}, {v(den)}, {v(D[0])}")
    g(f"v_fma_f32 {v(D[5])}, -{v(D[3])}, {v(den)}, {v(D[1])}")
    g(f"v_fmac_f32 {v(D[2])}, {v(D[4])}, {v(rc)}")
    g(f"v_fmac_f32 {v(D[3])}, {v(D[5])}, {v(rc)}")
    g(f"v_cvt_pk_bf16_f32 {v(out)}, {v(D[2])}, {v(D[3])}")


def ln_scalars(g, mean, var, rc, t):
    bf16r(g, var, var, t)
    g(f"v_add_f32 {v(var)}, {EPS:#x}, {v(var)}")
    bf16r(g, var, var, t)
    g(f"v_sqrt_f32 {v(var)}, {v(var)}")
    bf16r(g, mean, mean, t)
    bf16r(g, var, var, t)
    g(f"v_rcp_f32 {v(rc)}, {v(var)}")
    g("s_nop 0")


def layernorm2(g, F, OUTP, T):
    s0, s1, q0, q1, r0, r1 = T[:6]
    D = T[6:12]
    t0, t1 = D[0], D[1]
    for b, s in ((0, s0), (1, s1)):
        f = F + 8 * b
        g(f"v_add_f32 {v(s)}, {v(f)}, {v(f+1)}")
        for i in range(2, 8):
            g(f"v_add_f32 {v(s)}, {v(s)}, {v(f+i)}")
    wave_reduce(g, [s0, s1], [t0, t1], "v_add_f32")
    g(f"v_mul_f32 {v(s0)}, {INV512:#x}, {v(s0)}")
    g(f"v_mul_f32 {v(s1)}, {INV512:#x}, {v(s1)}")
    for b, s, q in ((0, s0, q0), (1, s1, q1)):
        f = F + 8 * b
        for i in range(8):
            d = D[i % 4]
            g(f"v_sub_f32 {v(d)}, {v(f+i)}, {v(s)}")
            if i == 0:
                g(f"v_mul_f32 {v(q)}, {v(d)}, {v(d)}")
            else:
                g(f"v_fmac_f32 {v(q)}, {v(d)}, {v(d)}")
    wave_reduce(g, [q0, q1], [t0, t1], "v_add_f32")
    for s, q, r in ((s0, q0, r0), (s1, q1, r1)):
        g(f"v_mul_f32 {v(q)}, {INV512:#x}, {v(q)}")
        ln_scalars(g, s, q, r, t0)
    for b, s, q, r in ((0, s0, q0, r0), (1, s1, q1, r1)):
        f = F + 8 * b
        for i in range(0, 8, 2):
            ln_finish_pair(g, f + i, f + i + 1, s, q, r, D, OUTP + 4 * b + i // 2)


def poll_loop(g, loads, regs, tmp, name, slp=False):
    L = g.newlabel(name)
    Ld = g.newlabel(name + "_done")
    g(f"s_mov_b32 s46, {SPIN}")
    g.label(L)
    for l in loads:
        g(l)
    g("s_waitcnt vmcnt(0)")
    rs = list(regs)
    g(f"v_max_u32 {v(tmp)}, {v(rs[0])}, {v(rs[1])}")
    rest = rs[2:]
    while len(rest) >= 2:
        g(f"v_max3_u32 {v(tmp)}, {v(tmp)}, {v(rest[0])}, {v(rest[1])}")
        rest = rest[2:]
    if rest:
        g(f"v_max_u32 {v(tmp)}, {v(tmp)}, {v(rest[0])}")
    g(f"v_cmp_eq_u32 vcc, -1, {v(tmp)}")
    g(f"s_cbranch_vccz {Ld}")
    if slp and SLP2:
        g(f"s_sleep {SLP2}")
    g("s_sub_u32 s46, s46, 1")
    g("s_cmp_lg_u32 s46, 0")
    g(f"s_cbranch_scc1 {L}")
    g.label(Ld)


def poll_tag(g, loads, regs, tmp, name):
    L = g.newlabel(name)
    Ld = g.newlabel(name + "_done")
    g(f"s_mov_b32 s46, {SPIN}")
    g.label(L)
    for l in loads:
        g(l)
    g("s_waitcnt vmcnt(0)")
    rs = list(regs)
    if len(rs) == 1:
        g(f"v_cmp_ne_u32 vcc, s47, {v(rs[0])}")
    else:
        g(f"v_xor_b32 {v(tmp)}, s47, {v(rs[0])}")
        for r in rs[1:]:
            g(f"v_xor_b32 {v(tmp+1)}, s47, {v(r)}")
            g(f"v_or_b32 {v(tmp)}, {v(tmp)}, {v(tmp+1)}")
        g(f"v_cmp_ne_u32 vcc, 0, {v(tmp)}")
    g(f"s_cbranch_vccz {Ld}")
    g("s_sub_u32 s46, s46, 1")
    g("s_cmp_lg_u32 s46, 0")
    g(f"s_cbranch_scc1 {L}")
    g.label(Ld)


def poll_pipe(g, mk_load, nreg, sb, K, chk, tmp, name, dst=None, anyok=False, slp=True, force=False):
    if not force:
        K = min(K, PK)
    Ld = g.newlabel(name + "_done")
    L = g.newlabel(name)
    g(f"s_mov_b32 s46, {SPIN}")
    for k in range(K):
        g(mk_load(sb + nreg * k))
    g.label(L)
    outs = []
    for k in range(K):
        r = sb + nreg * k
        g(f"s_waitcnt vmcnt({K-1})")
        if len(chk) == 1:
            g(f"v_cmp_ne_u32 vcc, s47, {v(r+chk[0])}")
        else:
            g(f"v_xor_b32 {v(tmp)}, s47, {v(r+chk[0])}")
            for c in chk[1:]:
                g(f"v_xor_b32 {v(tmp+1)}, s47, {v(r+c)}")
                g(f"v_or_b32 {v(tmp)}, {v(tmp)}, {v(tmp+1)}")
            g(f"v_cmp_ne_u32 vcc, 0, {v(tmp)}")
        Lk = g.newlabel(name + f"_ok{k}")
        outs.append((Lk, r))
        if anyok:
            g("s_cmp_lg_u64 vcc, -1")
            g(f"s_cbranch_scc1 {Lk}")
        else:
            g(f"s_cbranch_vccz {Lk}")
        if SLP and slp:
            g(f"s_sleep {SLP}")
        g(mk_load(r))
    g("s_sub_u32 s46, s46, 1")
    g("s_cmp_lg_u32 s46, 0")
    g(f"s_cbranch_scc1 {L}")
    g(f"s_branch {Ld}")
    for n, (Lk, r) in enumerate(outs):
        g.label(Lk)
        if dst is not None:
            for i in range(nreg):
                g(f"v_mov_b32 {v(dst+i)}, {v(r+i)}")
        if n != len(outs) - 1:
            g(f"s_branch {Ld}")
    g.label(Ld)


def stamp(g, idx, on):
    if not on:
        return
    g("s_memrealtime s[60:61]")
    g("s_waitcnt lgkmcnt(0)")
    g(f"s_mov_b32 s{64+idx}, s60")


def gen(depth=3, n1=3, n2=10, wnt=True, stamps=False, b0=1, rp=1, qany=1, rpos=0, now=0, bare=0, rpg=1, rpd=1, gnt=0, wpos=0, dsw=99, depth2=3, mp=0, tpos=0, pfp=0, tg1=3, td1=2, nb0=0, f1k=1, f1s=1, stk=1, sts=1, cpf=0, prio=0, rw=1):
    g = G()
    A = g
    hdr = []
    hdr.append(f"; @launch grid=(256,1,1) block=(576,1,1) lds={LDS_TOTAL}")
    hdr.append('.amdgcn_target "amdgcn-amd-amdhsa--gfx950"')
    hdr.append(".text")
    hdr.append(f".globl {NAME}_kernel")
    hdr.append(".p2align 8")
    hdr.append(f".type {NAME}_kernel,@function")
    hdr.append(f"{NAME}_kernel:")
    WNT = " nt" if wnt else ""
    A("s_cmp_ge_u32 s2, 256")
    A("s_cbranch_scc1 L_end2")
    A("s_load_dwordx16 s[4:19], s[0:1], 0")
    A("s_load_dwordx8 s[20:27], s[0:1], 64")
    A("v_lshrrev_b32 v1, 6, v0")
    A("v_and_b32 v0, 63, v0")
    A("s_nop 0")
    A("v_readfirstlane_b32 s28, v1")
    A("s_and_b32 s58, s2, 7")
    if mp == 0:
        A("s_and_b32 s29, s2, 7")
        A("s_bfe_u32 s30, s2, 0x10003")
        A("s_lshr_b32 s31, s2, 4")
        A("s_and_b32 s32, s2, 15")
    else:
        A("s_bfe_u32 s29, s2, 0x30004")
        A("s_lshr_b32 s30, s2, 7")
        A("s_and_b32 s31, s2, 15")
        A("s_lshr_b32 s32, s2, 4")
    A(f"s_mov_b32 s44, {LOG2E:#x}")
    A(f"s_mov_b32 s45, {SCALE:#x}")
    A("s_and_b32 s33, s31, 7")
    A("s_lshl_b32 s33, s33, 1")
    A("s_lshr_b32 s34, s31, 3")
    A("s_or_b32 s59, s33, s34")
    A("s_bfe_u32 s33, s2, 0x20004")
    A("s_lshl_b32 s33, s33, 3")
    A("s_add_u32 s33, s33, s58")
    A("s_bfe_u32 s34, s2, 0x10003")
    A("s_lshl_b32 s50, s33, 6")
    A("s_lshl_b32 s34, s34, 5")
    A("s_add_u32 s50, s50, s34")
    A("s_mov_b32 s51, 0")
    A("s_cmp_lt_u32 s33, 28")
    A("s_cselect_b32 s51, 1, 0")
    A("s_cmp_lt_u32 s2, 64")
    A("s_cselect_b32 s51, s51, 0")
    A("s_bfe_u32 s34, s2, 0x20003")
    A("s_lshl_b32 s34, s34, 4")
    A("s_lshl_b32 s33, s58, 6")
    A("s_add_u32 s33, s33, s34")
    A("s_lshr_b32 s34, s2, 5")
    A("s_cmp_eq_u32 s34, 2")
    A("s_cselect_b32 s51, 2, s51")
    A("s_cselect_b32 s50, s33, s50")
    if stamps:
        A("s_mul_i32 s62, s2, 9")
        A("s_add_u32 s62, s62, s28")
        A("s_lshl_b32 s62, s62, 7")
        A(f"s_add_u32 s62, s62, {TS:#x}")
        for i in range(32):
            A(f"s_mov_b32 s{64+i}, 0")
    A("s_waitcnt lgkmcnt(0)")
    A("s_cmp_eq_u32 s28, 8")
    A("s_cbranch_scc1 L_ctrl")

    vK, vV, vML, vMH, vW = 4, 5, 6, 7, 8
    KR = 16
    VR = 84
    QB = 148
    Z = 152
    O0, O1 = 156, 160
    stamp(g, 0, stamps)
    A("s_lshl_b32 s33, s32, 21")
    A("s_lshl_b32 s34, s31, 17")
    A("s_add_u32 s33, s33, s34")
    A("s_lshl_b32 s34, s28, 14")
    A("s_add_u32 s33, s33, s34")
    A("v_lshrrev_b32 v1, 4, v0")
    A("v_bfe_u32 v2, v0, 2, 2")
    A("v_and_b32 v3, 3, v0")
    A("v_lshlrev_b32 v9, 6, v1")
    A("v_lshlrev_b32 v10, 8, v2")
    A("v_lshlrev_b32 v11, 4, v3")
    A("v_add3_u32 v9, v9, v10, v11")
    A(f"v_add_u32 {v(vK)}, s33, v9")
    A("v_lshlrev_b32 v9, 4, v0")
    A(f"v_add_u32 {v(vV)}, s33, v9")
    A(f"v_mov_b32 {v(vML)}, 0xffff")
    A(f"v_mov_b32 {v(vMH)}, 0xffff0000")

    seq = []

    def issue(name):
        kind, m = name
        dd = depth if len(seq) < dsw else depth2
        if len(seq) >= dd and throttle[0]:
            A(f"s_waitcnt vmcnt({dd-1})")
        if kind == "K":
            if m % 4 == 0 and m > 0:
                A(f"v_add_u32 {v(vK)}, 4096, {v(vK)}")
            r = KR + 4 + 4 * m
            A(f"global_load_dwordx4 {v(r,4)}, {v(vK)}, s[6:7] offset:{(m%4)*1024} nt")
        elif kind == "V":
            if m % 4 == 0 and m > 0:
                A(f"v_add_u32 {v(vV)}, 4096, {v(vV)}")
            r = VR + 4 * m
            A(f"global_load_dwordx4 {v(r,4)}, {v(vV)}, s[8:9] offset:{(m%4)*1024} nt")
        elif kind == "W":
            if m > 0:
                A(f"v_add_u32 {v(vW)}, 16384, {v(vW)}")
            A(f"s_add_u32 m0, s35, {m*1024}")
            A("s_nop 0")
            A(f"global_load_lds_dwordx4 {v(vW)}, s[12:13]{WNT}")
        elif kind == "R":
            if m == 0:
                A("s_min_u32 s33, s28, 6")
                A("s_and_b32 s34, s2, 3")
                A("s_mul_i32 s34, s34, 7")
                A("s_add_u32 s34, s34, s33")
                A("s_lshr_b32 s36, s2, 2")
                A("s_mul_i32 s36, s36, 28672")
                A("s_lshl_b32 s37, s34, 7")
                A("s_add_u32 s36, s36, s37")
                A("v_lshrrev_b32 v9, 3, v0")
                A("v_and_b32 v10, 7, v0")
                A("v_mul_u32_u24 v11, 3584, v10")
                A("v_lshlrev_b32 v9, 4, v9")
                A("v_add3_u32 v11, v11, v9, s36")
                A("s_mul_i32 s34, s2, 7")
                A("s_add_u32 s34, s34, s33")
                A("s_lshr_b32 s36, s34, 3")
                A("s_and_b32 s34, s34, 7")
                A("s_lshl_b32 s36, s36, 13")
                A("s_lshl_b32 s37, s34, 7")
                A("s_add_u32 s36, s36, s37")
                A("v_lshlrev_b32 v10, 10, v10")
                A("v_add3_u32 v10, v10, v9, s36")
                A("s_mul_i32 s36, s28, 3072")
                A(f"s_add_u32 s36, s36, {GU_L}")
            addr = "v11" if m < 2 else "v10"
            base = ("s[16:17]", "s[18:19]", "s[20:21]")[m]
            A(f"s_add_u32 m0, s36, {1024*m}")
            A("s_nop 0")
            A(f"global_load_lds_dwordx4 {addr}, {base} nt")
        seq.append(name)

    def wait_for(name):
        idx = seq.index(name)
        n = len(seq) - 1 - idx
        A(f"s_waitcnt vmcnt({n})")

    throttle = [True]
    RP = VR + 52
    A("s_lshl_b32 s33, s29, 19")
    A("s_lshl_b32 s34, s28, 16")
    A("s_add_u32 s33, s33, s34")
    A("s_lshl_b32 s34, s59, 6")
    A("s_add_u32 s33, s33, s34")
    A("v_lshrrev_b32 v9, 2, v0")
    A("v_lshlrev_b32 v9, 10, v9")
    A("v_lshlrev_b32 v10, 4, v3")
    A(f"v_add3_u32 {v(vW)}, v9, v10, s33")
    A("s_lshl_b32 s35, s28, 12")
    A(f"s_add_u32 s35, s35, {WO_L}")
    A("v_mov_b32 v164, 0")
    A("s_mov_b32 s49, 1")
    A("s_getpc_b64 s[56:57]")
    g.label("L_pc0")
    A("s_add_u32 s56, s56, L_qk-L_pc0")
    A("s_addc_u32 s57, s57, 0")
    if nb0 == 0:
        A("s_barrier")
    GNT = " nt" if gnt else ""

    def tile_gu(lo=0, hi=8):
        A("s_mul_i32 s33, s28, 229376")
        A("s_lshl_b32 s34, s50, 1")
        A("s_add_u32 s33, s33, s34")
        A("v_lshrrev_b32 v9, 2, v0")
        A("v_mul_u32_u24 v9, 3584, v9")
        A("v_lshlrev_b32 v10, 4, v3")
        A("v_add3_u32 v9, v9, v10, s33")
        A("s_lshl_b32 s34, s28, 12")
        A(f"s_add_u32 s34, s34, {GU_L}")
        cur = 0
        for j in range(lo, hi):
            i, mat = j >> 1, j & 1
            if i != cur:
                A(f"v_add_u32 v9, {57344*(i-cur)}, v9")
                cur = i
            A(f"s_add_u32 m0, s34, {32768*mat+1024*i}")
            A("s_nop 0")
            A(f"global_load_lds_dwordx4 v9, {('s[16:17]','s[18:19]')[mat]}{GNT}")

    def tile_dn(lo=0, hi=7):
        A("s_mul_i32 s33, s28, 229376")
        A("s_lshl_b32 s34, s50, 1")
        A("s_add_u32 s33, s33, s34")
        A("v_lshrrev_b32 v9, 1, v0")
        A("v_lshlrev_b32 v9, 10, v9")
        A("v_and_b32 v10, 1, v0")
        A("v_lshlrev_b32 v10, 4, v10")
        A("v_add3_u32 v9, v9, v10, s33")
        A("s_mul_i32 s34, s28, 7168")
        A(f"s_add_u32 s34, s34, {WD_L}")
        cur = 0
        for i in range(lo, hi):
            if i != cur:
                A(f"v_add_u32 v9, {0x8000*(i-cur)}, v9")
                cur = i
            A(f"s_add_u32 m0, s34, {1024*i}")
            A("s_nop 0")
            A(f"global_load_lds_dwordx4 v9, s[20:21]{GNT}")

    def wdma():
        for m in range(4):
            if m > 0:
                A(f"v_add_u32 {v(vW)}, 16384, {v(vW)}")
            A(f"s_add_u32 m0, s35, {m*1024}")
            A("s_nop 0")
            A(f"global_load_lds_dwordx4 {v(vW)}, s[12:13]{WNT}")

    def tiles():
        Lx = g.newlabel("notile")
        Ld2 = g.newlabel("dtile")
        A("s_cmp_eq_u32 s51, 0")
        A(f"s_cbranch_scc1 {Lx}")
        A("s_cmp_eq_u32 s51, 2")
        A(f"s_cbranch_scc1 {Ld2}")
        tile_gu()
        A(f"s_branch {Lx}")
        g.label(Ld2)
        tile_dn()
        g.label(Lx)

    if tpos == 1:
        tiles()

    def check():
        Ls = g.newlabel("nocall")
        A(f"ds_read_b32 v165, v164 offset:{FLG}")
        A("s_waitcnt lgkmcnt(0)")
        A("v_readfirstlane_b32 s48, v165")
        A("s_cmp_eq_u32 s48, s49")
        A(f"s_cbranch_scc0 {Ls}")
        A("s_swappc_b64 s[54:55], s[56:57]")
        g.label(Ls)

    order = []
    order += [("K", m) for m in range(16)]
    order += [("V", m) for m in range(16)]
    k15 = order.index(("K", 15))
    first_check = k15 + depth
    for i, op in enumerate(order):
        if tpos >= 2 and i == tpos:
            tiles()
        issue(op)
        if nb0 and i == nb0 - 1:
            A("s_barrier")
        if i == first_check:
            wait_for(("K", 15))
        if i >= first_check and op[0] != "R":
            check()
    if rw == 1:
        Lw = g.newlabel("now")
        A("s_cmp_eq_u32 s51, 0")
        A(f"s_cbranch_scc1 {Lw}")
        wdma()
        g.label(Lw)
    elif rw == 2:
        wdma()
    stamp(g, 1, stamps)
    L = g.newlabel("wq")
    Ld = g.newlabel("wq_done")
    A(f"s_mov_b32 s46, {SPIN*16}")
    g.label(L)
    A("s_cmp_eq_u32 s49, 2")
    A(f"s_cbranch_scc1 {Ld}")
    check()
    A("s_sub_u32 s46, s46, 1")
    A("s_cmp_lg_u32 s46, 0")
    A(f"s_cbranch_scc1 {L}")
    g.label(Ld)
    for i in range(66):
        A(f"v_mov_b32 {v(KR+i)}, 0")
    A("v_lshlrev_b32 v9, 3, v3")
    stamp(g, 5, stamps)
    L = g.newlabel("wg")
    Ld = g.newlabel("wg_done")
    A(f"s_mov_b32 s46, {SPIN*16}")
    g.label(L)
    A(f"ds_read_b32 v165, v164 offset:{FLG+8}")
    A("s_waitcnt lgkmcnt(0)")
    A("v_readfirstlane_b32 s48, v165")
    A("s_cmp_eq_u32 s48, 1")
    A(f"s_cbranch_scc1 {Ld}")
    A("s_sub_u32 s46, s46, 1")
    A("s_cmp_lg_u32 s46, 0")
    A(f"s_cbranch_scc1 {L}")
    g.label(Ld)
    stamp(g, 6, stamps)
    A(f"ds_read_b64 v[12:13], v9 offset:{GST}")
    A("s_waitcnt lgkmcnt(0)")
    for m in range(4):
        A(f"v_sub_f32 {v(Z+m)}, {v(Z+m)}, v12")
        A(f"v_mul_f32 {v(Z+m)}, s44, {v(Z+m)}")
        A(f"v_exp_f32 {v(Z+m)}, {v(Z+m)}")
    A("s_nop 0")
    for m in range(4):
        A(f"v_mul_f32 {v(Z+m)}, {v(Z+m)}, v13")
        A(f"v_cvt_pk_bf16_f32 {v(Z+m)}, {v(Z+m)}, {v(Z+m)}")
    A("s_nop 1")
    for m in range(16):
        beta = m & 3
        k = m >> 2
        for j in range(4):
            rot = (4 * (j - beta)) & 15
            dst = KR + 4 * m + 2 + (j >> 1)
            msk = vMH if (j & 1) else vML
            ctl = f"row_ror:{rot}" if rot else "quad_perm:[0,1,2,3]"
            A(f"v_and_b32_dpp {v(dst)}, {v(Z+k)}, {v(msk)} {ctl} row_mask:0xf bank_mask:{1<<j:#x}")
    stamp(g, 7, stamps)
    A("s_nop 1")
    for m in range(16):
        wait_for(("V", m))
        c0 = "0" if m == 0 else v(O0, 4)
        c1 = "0" if m == 0 else v(O1, 4)
        A(f"v_mfma_f32_16x16x32_bf16 {v(O0,4)}, {v(VR+4*m,4)}, {v(KR+4*m+2,4)}, {c0}")
        A(f"v_mfma_f32_16x16x32_bf16 {v(O1,4)}, {v(VR+4*m,4)}, {v(KR+4*m,4)}, {c1}")
    stamp(g, 8, stamps)
    throttle[0] = False
    if bare:
        A("s_branch L_end")
    A("s_lshl_b32 s33, s28, 11")
    A("v_lshlrev_b32 v9, 5, v0")
    A("v_add_u32 v9, s33, v9")
    A("s_nop 6")
    A(f"ds_write_b128 v9, {v(O0,4)} offset:{RED}")
    A(f"ds_write_b128 v9, {v(O1,4)} offset:{RED+16}")
    A("s_waitcnt lgkmcnt(0)")
    A("s_barrier")
    Lr = g.newlabel("role")
    Lr2 = g.newlabel("role2")
    Lr3 = g.newlabel("role3")
    if rw == 0:
        wdma()
    A("s_cmp_lg_u32 s51, 0")
    A(f"s_cbranch_scc1 {Lr}")
    if rw == 1:
        wdma()
    A(f"s_branch {Lr3}")
    g.label(Lr)
    A("s_cmp_eq_u32 s51, 2")
    A(f"s_cbranch_scc1 {Lr2}")
    tile_gu(0, tg1)
    A(f"s_branch {Lr3}")
    g.label(Lr2)
    tile_dn(0, td1)
    g.label(Lr3)
    A("s_lshl_b32 s36, s32, 15")
    A("s_lshl_b32 s37, s28, 8")
    A("s_add_u32 s36, s36, s37")
    A(f"s_add_u32 s36, s36, {OP:#x}")
    A("v_lshlrev_b32 v9, 11, v1")
    A("v_and_b32 v4, 15, v0")
    A("v_lshlrev_b32 v10, 4, v4")
    A("v_add3_u32 v10, v9, v10, s36")
    for i in range(1, 4):
        A(f"v_add_u32 {v(10+i)}, {8192*i}, v10")
    A("s_lshr_b32 s33, s28, 1")
    A("s_lshl_b32 s33, s33, 11")
    A("s_and_b32 s34, s28, 1")
    A("s_lshl_b32 s34, s34, 7")
    A("s_add_u32 s33, s33, s34")
    A(f"s_add_u32 s33, s33, {WO_L}")
    A("v_lshlrev_b32 v5, 13, v1")
    A("v_lshlrev_b32 v6, 9, v2")
    A("v_lshlrev_b32 v7, 3, v3")
    A("v_add3_u32 v5, v5, v6, v7")
    A("v_add_u32 v5, s33, v5")
    A("s_lshl_b32 s33, s28, 7")
    A("v_lshlrev_b32 v6, 3, v4")
    A("v_add_u32 v6, s33, v6")
    A("v_lshlrev_b32 v7, 4, v1")
    A("v_add_u32 v7, s33, v7")
    A("s_waitcnt vmcnt(0)")
    stamp(g, 9, stamps)
    A("s_barrier")
    BR = 96
    AR = 88
    DR = 112
    for kk in range(2):
        for n in range(2):
            for u in range(2):
                A(f"ds_read_b64_tr_b16 {v(BR+8*kk+4*n+2*u,2)}, v5 offset:{64*kk+256*u+32*n}")
    loads = [f"global_load_dwordx4 {v(16+4*i,4)}, {v(10+i)}, s[26:27] sc1" for i in range(4)]
    poll_loop(g, loads, list(range(16, 32)), 9, "t1")
    stamp(g, 10, stamps)

    for k in range(4):
        A(f"v_add_f32 {v(16+k)}, {v(16+k)}, {v(20+k)}")
        A(f"v_add_f32 {v(24+k)}, {v(24+k)}, {v(28+k)}")
    for k in range(4):
        A(f"v_add_f32 {v(16+k)}, {v(16+k)}, {v(24+k)}")
    swap_reduce(g, [16, 17, 18, 19], [20, 21, 22, 23], "v_add_f32", (16, 32))
    A("v_cvt_pk_bf16_f32 v16, v16, v17")
    A("v_cvt_pk_bf16_f32 v17, v18, v19")
    A(f"ds_write_b64 v6, v[16:17] offset:{AO}")
    for kk in range(2):
        A(f"ds_read_b128 {v(AR+4*kk,4)}, v7 offset:{AO+64*kk}")
    A("s_waitcnt lgkmcnt(0)")
    for n in range(2):
        A(f"v_mfma_f32_16x16x32_bf16 {v(DR+4*n,4)}, {v(AR,4)}, {v(BR+4*n,4)}, 0")
    for n in range(2):
        A(f"v_mfma_f32_16x16x32_bf16 {v(DR+4*n,4)}, {v(AR+4,4)}, {v(BR+8+4*n,4)}, {v(DR+4*n,4)}")
    A("s_lshl_b32 s33, s28, 7")
    A("v_lshlrev_b32 v9, 2, v4")
    A("v_add_u32 v9, s33, v9")
    A("s_nop 6")
    A(f"ds_write_b32 v9, {v(DR)} offset:{R2}")
    A(f"ds_write_b32 v9, {v(DR+4)} offset:{R2+64}")
    A("s_waitcnt lgkmcnt(0)")
    A("s_barrier")
    A("s_cmp_eq_u32 s51, 0")
    A("s_cbranch_scc1 L_end")
    A("s_cmp_eq_u32 s51, 2")
    A("s_cbranch_scc1 L_sdown")
    GNT = " nt" if gnt else ""
    tile_gu(tg1, 8)
    A("s_lshl_b32 s36, s28, 8")
    A(f"s_add_u32 s36, s36, {YP:#x}")
    A("v_lshrrev_b32 v5, 5, v0")
    A("v_and_b32 v6, 1, v1")
    A("v_lshlrev_b32 v9, 11, v5")
    A("v_lshlrev_b32 v10, 12, v6")
    A("v_lshlrev_b32 v11, 4, v4")
    A("v_add3_u32 v10, v9, v10, v11")
    A("v_add_u32 v10, s36, v10")
    for i in range(1, 4):
        A(f"v_add_u32 {v(10+i)}, {8192*i}, v10")
    A("s_lshl_b32 s33, s28, 7")
    A("v_lshlrev_b32 v6, 10, v5")
    A("v_lshlrev_b32 v7, 3, v4")
    A("v_add3_u32 v6, v6, v7, s33")
    A(f"ds_read_b64 v[40:41], v6 offset:{XL}")
    A("v_lshlrev_b32 v7, 10, v5")
    A(f"ds_read_u16 v42, v7 offset:{XL}")
    A("s_lshl_b32 s34, s28, 3")
    A("v_lshlrev_b32 v7, 6, v5")
    A("v_add_u32 v8, s34, v7")
    A("v_and_b32 v9, 7, v0")
    A("v_lshlrev_b32 v9, 3, v9")
    A("v_add_u32 v7, v7, v9")
    A("s_lshl_b32 s34, s28, 8")
    A("v_lshlrev_b32 v14, 7, v5")
    A("v_lshlrev_b32 v15, 3, v4")
    A("v_add3_u32 v14, v14, v15, s34")
    A("v_and_b32 v15, 1, v0")
    A("v_lshlrev_b32 v15, 7, v15")
    A("v_lshlrev_b32 v9, 4, v1")
    A("v_add3_u32 v15, v15, v9, s34")
    A("s_lshl_b32 s33, s28, 12")
    A(f"s_add_u32 s33, s33, {GU_L}")
    A("v_lshlrev_b32 v44, 9, v1")
    A("v_lshlrev_b32 v45, 6, v2")
    A("v_lshlrev_b32 v46, 3, v3")
    A("v_add3_u32 v44, v44, v45, v46")
    A("v_add_u32 v44, s33, v44")
    A("s_waitcnt lgkmcnt(0)")
    A("v_lshlrev_b32 v36, 16, v40")
    A("v_and_b32 v37, 0xffff0000, v40")
    A("v_lshlrev_b32 v38, 16, v41")
    A("v_and_b32 v39, 0xffff0000, v41")
    A("v_lshlrev_b32 v42, 16, v42")
    stamp(g, 11, stamps)
    loads = [f"global_load_dwordx4 {v(16+4*i,4)}, {v(10+i)}, s[26:27] sc1" for i in range(4)]
    poll_loop(g, loads, list(range(16, 32)), 9, "t2")
    stamp(g, 12, stamps)
    GB = 96
    for mat in range(2):
        for n in range(2):
            for kk in range(2):
                for u in range(2):
                    A(f"ds_read_b64_tr_b16 {v(GB+16*mat+8*n+4*kk+2*u,2)}, v44 offset:{32768*mat+2048*kk+256*u+32*n}")
    for k in range(4):
        A(f"v_add_f32 {v(16+k)}, {v(16+k)}, {v(20+k)}")
        A(f"v_add_f32 {v(24+k)}, {v(24+k)}, {v(28+k)}")
    for k in range(4):
        A(f"v_add_f32 {v(16+k)}, {v(16+k)}, {v(24+k)}")
    swap_reduce(g, [16, 17, 18, 19], [20, 21, 22, 23], "v_add_f32", (16,))
    for i in (0, 2):
        A(f"v_cvt_pk_bf16_f32 v20, {v(16+i)}, {v(17+i)}")
        A(f"v_lshlrev_b32 {v(16+i)}, 16, v20")
        A(f"v_and_b32 {v(17+i)}, 0xffff0000, v20")
        A(f"v_add_f32 {v(16+i)}, {v(16+i)}, {v(36+i)}")
        A(f"v_add_f32 {v(17+i)}, {v(17+i)}, {v(37+i)}")
        A(f"v_cvt_pk_bf16_f32 {v(24+i//2)}, {v(16+i)}, {v(17+i)}")
        A(f"v_lshlrev_b32 {v(16+i)}, 16, {v(24+i//2)}")
        A(f"v_and_b32 {v(17+i)}, 0xffff0000, {v(24+i//2)}")
    for i in range(4):
        A(f"v_sub_f32 {v(20+i)}, {v(16+i)}, v42")
    A("v_add_f32 v26, v20, v21")
    A("v_mul_f32 v27, v20, v20")
    A("v_add_f32 v26, v26, v22")
    A("v_fmac_f32 v27, v21, v21")
    A("v_add_f32 v26, v26, v23")
    A("v_fmac_f32 v27, v22, v22")
    A("v_fmac_f32 v27, v23, v23")
    dpp_steps(g, [26, 27], "v_add_f32", ["quad_perm:[1,0,3,2]", "quad_perm:[2,3,0,1]", "row_ror:4", "row_ror:8"])
    A(f"ds_write_b64 v8, v[26:27] offset:{LS}")
    A("s_waitcnt lgkmcnt(0)")
    A("s_barrier")
    A(f"ds_read_b64 v[26:27], v7 offset:{LS}")
    A("s_waitcnt lgkmcnt(0)")
    dpp_steps(g, [26, 27], "v_add_f32", ["quad_perm:[1,0,3,2]", "quad_perm:[2,3,0,1]", "row_ror:4"])
    A(f"v_mul_f32 v26, {INV512:#x}, v26")
    A(f"v_mul_f32 v27, {INV512:#x}, v27")
    A("v_fma_f32 v27, -v26, v26, v27")
    A("v_max_f32 v27, 0, v27")
    A("v_add_f32 v26, v26, v42")
    ln_scalars(g, 26, 27, 28, 29)
    ln_finish_pair(g, 16, 17, 26, 27, 28, [30, 31, 32, 33, 34, 35], 24)
    ln_finish_pair(g, 18, 19, 26, 27, 28, [30, 31, 32, 33, 34, 35], 25)
    A(f"ds_write_b64 v14, v[24:25] offset:{HN}")
    for kk in range(2):
        A(f"ds_read_b128 {v(AR+4*kk,4)}, v15 offset:{HN+64*kk}")
    A("s_waitcnt lgkmcnt(0)")
    GD = 128
    for t in range(4):
        A(f"v_mfma_f32_16x16x32_bf16 {v(GD+4*t,4)}, {v(AR,4)}, {v(GB+8*t,4)}, 0")
    for t in range(4):
        A(f"v_mfma_f32_16x16x32_bf16 {v(GD+4*t,4)}, {v(AR+4,4)}, {v(GB+8*t+4,4)}, {v(GD+4*t,4)}")
    A("s_lshl_b32 s33, s28, 9")
    A("v_lshlrev_b32 v9, 2, v4")
    A("v_add_u32 v9, s33, v9")
    A("s_nop 4")
    for t in range(4):
        for b in range(2):
            A(f"ds_write_b32 v9, {v(GD+4*t+b)} offset:{R4+256*b+64*t}")
    A("s_waitcnt lgkmcnt(0)")
    A("s_barrier")
    A("s_branch L_end")
    g.label("L_sdown")
    tile_dn(td1, 7)
    A("s_mul_i32 s33, s28, 448")
    A(f"s_add_u32 s33, s33, {AC:#x}")
    A("v_min_u32 v5, 55, v0")
    A("v_cmp_lt_u32 vcc, 27, v5")
    A("v_mov_b32 v6, 0")
    A("v_mov_b32 v7, 3136")
    A("v_cndmask_b32 v6, v6, v7, vcc")
    A("v_lshlrev_b32 v5, 4, v5")
    A("v_add3_u32 v9, v5, v6, s33")
    A("s_lshl_b32 s34, s28, 10")
    A("v_add_u32 v5, s34, v5")
    A("v_and_b32 v6, 1, v0")
    A("v_mul_u32_u24 v6, 448, v6")
    A("v_lshlrev_b32 v7, 4, v1")
    A("v_add3_u32 v6, v6, v7, s34")
    A("s_mul_i32 s33, s28, 7168")
    A(f"s_add_u32 s33, s33, {WD_L}")
    A("v_lshlrev_b32 v11, 8, v1")
    A("v_lshlrev_b32 v12, 5, v2")
    A("v_lshlrev_b32 v13, 3, v3")
    A("v_add3_u32 v11, v11, v12, v13")
    A("v_add_u32 v11, s33, v11")
    A("s_lshl_b32 s33, s28, 7")
    A("v_lshlrev_b32 v10, 2, v4")
    A("v_add_u32 v10, s33, v10")
    A("s_waitcnt vmcnt(0)")
    for kk in range(7):
        for u in range(2):
            A(f"ds_read_b64_tr_b16 {v(48+4*kk+2*u,2)}, v11 offset:{1024*kk+128*u}")
    stamp(g, 13, stamps)
    poll_loop(g, ["global_load_dwordx4 v[84:87], v9, s[26:27] sc1"], [84, 85, 86, 87], 12, "t3", slp=True)
    stamp(g, 14, stamps)
    A(f"ds_write_b128 v5, v[84:87] offset:{RED}")
    for kk in range(7):
        A(f"ds_read_b128 {v(16+4*kk,4)}, v6 offset:{RED+64*kk}")
    A("s_waitcnt lgkmcnt(0)")
    for kk in range(7):
        c = "0" if kk == 0 else v(DR, 4)
        A(f"v_mfma_f32_16x16x32_bf16 {v(DR,4)}, {v(16+4*kk,4)}, {v(48+4*kk,4)}, {c}")
    A("s_nop 7")
    A(f"ds_write_b32 v10, {v(DR)} offset:{R5}")
    A(f"ds_write_b32 v10, {v(DR+1)} offset:{R5+64}")
    A("s_waitcnt lgkmcnt(0)")
    A("s_barrier")
    A("s_branch L_end")

    g.label("L_qk")
    stamp(g, 2, stamps)
    A("v_lshlrev_b32 v9, 8, v3")
    A("v_lshlrev_b32 v10, 6, v1")
    A("v_lshlrev_b32 v11, 4, v2")
    A("v_add3_u32 v9, v9, v10, v11")
    A(f"ds_read_b128 {v(QB,4)}, v9 offset:{QL}")
    A("s_waitcnt lgkmcnt(0)")
    for m in range(16):
        A(f"v_mfma_f32_16x16x32_bf16 {v(KR+4*m,4)}, {v(KR+4+4*m,4)}, {v(QB,4)}, 0")
    A("s_nop 3")
    for step in range(3):
        for m in range(16):
            D = KR + 4 * m
            beta = m & 3
            k = m >> 2
            e = (beta + 1 + step) & 3
            rot = (4 * (beta - e)) & 15
            if step < 2:
                A(f"v_add_f32_dpp {v(D+beta)}, {v(D+e)}, {v(D+beta)} row_ror:{rot} {DPP}")
            else:
                A(f"v_add_f32_dpp {v(Z+k)}, {v(D+e)}, {v(D+beta)} row_ror:{rot} row_mask:0xf bank_mask:{1<<beta:#x}")
    for m in range(0, 4, 2):
        A(f"v_cvt_pk_bf16_f32 v9, {v(Z+m)}, {v(Z+m+1)}")
        A("v_lshlrev_b32 v10, 16, v9")
        A("v_and_b32 v11, 0xffff0000, v9")
        A("v_mul_f32 v10, s45, v10")
        A("v_mul_f32 v11, s45, v11")
        A("v_cvt_pk_bf16_f32 v9, v10, v11")
        A(f"v_lshlrev_b32 {v(Z+m)}, 16, v9")
        A(f"v_and_b32 {v(Z+m+1)}, 0xffff0000, v9")
    A(f"v_max3_f32 v12, {v(Z)}, {v(Z+1)}, {v(Z+2)}")
    A(f"v_max_f32 v12, v12, {v(Z+3)}")
    dpp_steps(g, [12], "v_max_f32", ["row_ror:4", "row_ror:8"])
    swap_reduce(g, [12], [9], "v_max_f32", (16, 32))
    for m in range(4):
        A(f"v_sub_f32 {v(KR+m)}, {v(Z+m)}, v12")
        A(f"v_mul_f32 {v(KR+m)}, s44, {v(KR+m)}")
        A(f"v_exp_f32 {v(KR+m)}, {v(KR+m)}")
    A("s_nop 0")
    A(f"v_add_f32 v13, {v(KR)}, {v(KR+1)}")
    A(f"v_add_f32 v13, v13, {v(KR+2)}")
    A(f"v_add_f32 v13, v13, {v(KR+3)}")
    dpp_steps(g, [13], "v_add_f32", ["row_ror:4", "row_ror:8"])
    swap_reduce(g, [13], [9], "v_add_f32", (16, 32))
    A("s_lshl_b32 s33, s28, 5")
    A("v_lshlrev_b32 v9, 3, v3")
    A("v_add_u32 v9, s33, v9")
    A(f"ds_write_b64 v9, v[12:13] offset:{WST}")
    A("v_mov_b32 v10, 1")
    A("s_waitcnt lgkmcnt(0)")
    A(f"ds_add_u32 v164, v10 offset:{FLG+4}")
    A("s_mov_b32 s49, 2")
    stamp(g, 4, stamps)
    A("s_setpc_b64 s[54:55]")

    g.label("L_ctrl")
    if prio:
        A(f"s_setprio {prio}")
    stamp(g, 0, stamps)
    if cpf:
        A("s_getpc_b64 s[52:53]")
        g.label("L_pc1")
        A(f"s_sub_u32 s52, s52, L_pc1-{NAME}_kernel")
        A("s_subb_u32 s53, s53, 0")
        A("v_lshlrev_b32 v150, 7, v0")
        A(f"s_mov_b32 s33, L_end2-{NAME}_kernel")
        for i in range(cpf):
            A("v_min_u32 v149, s33, v150")
            A(f"global_load_dword {v(151+i)}, v149, s[52:53]")
            A("v_add_u32 v150, 8192, v150")
    Ln = g.newlabel("nonce")
    A("s_cmp_lg_u32 s2, 255")
    A(f"s_cbranch_scc1 {Ln}")
    A("s_memrealtime s[52:53]")
    A("s_waitcnt lgkmcnt(0)")
    A("s_or_b32 s52, s52, 1")
    A("v_mov_b32 v12, s52")
    A("v_mov_b32 v13, 0")
    A("v_mov_b32 v14, 0")
    A("s_mov_b64 exec, 0x1")
    A("global_atomic_cmpswap v14, v[12:13], s[24:25] sc1")
    A("s_mov_b64 exec, -1")
    g.label(Ln)
    A("v_lshlrev_b32 v1, 4, v0")
    A("v_mov_b32 v164, 0")
    A("v_mov_b32 v165, 0")
    A("v_mov_b32 v166, 0")
    A("v_mov_b32 v167, 0")
    A(f"ds_write_b128 v164, v[164:167] offset:{FLG}")
    A("s_waitcnt lgkmcnt(0)")
    if bare == 1:
        A("v_mov_b32 v165, 1")
        A(f"ds_write_b32 v164, v165 offset:{FLG}")
        A(f"ds_write_b32 v164, v165 offset:{FLG+8}")
        A("s_waitcnt lgkmcnt(0)")
        A("s_barrier")
        A("s_branch L_end")
    A("s_bfe_u32 s33, s2, 0x20003")
    A("s_lshl_b32 s34, s58, 2")
    A("s_add_u32 s36, s33, s34")
    A("s_bfe_u32 s37, s2, 0x20005")
    A("v_lshrrev_b32 v2, 4, v0")
    A("v_and_b32 v3, 15, v0")
    A("s_lshl_b32 s34, s29, 12")
    A("s_lshl_b32 s35, s30, 11")
    A("s_add_u32 s34, s34, s35")
    A("s_lshl_b32 s35, s59, 7")
    A("s_add_u32 s34, s34, s35")
    A(f"s_add_u32 s38, s34, {YP:#x}")
    WQR = 16

    def prefetch():
        A("s_lshr_b32 s33, s2, 3")
        A("v_lshrrev_b32 v140, 4, v0")
        A("s_cmp_lt_u32 s58, 4")
        A("s_cselect_b32 s34, 3, 2")
        A("v_min_u32 v140, s34, v140")
        A("v_lshlrev_b32 v140, 10, v140")
        A("v_and_b32 v141, 15, v0")
        A("v_mul_u32_u24 v141, 3584, v141")
        A("s_mul_i32 s34, s33, 57344")
        A("s_lshl_b32 s35, s58, 7")
        A("s_add_u32 s34, s34, s35")
        A("v_add3_u32 v140, v140, v141, s34")
        A("global_load_dword v142, v140, s[16:17]")
        A("global_load_dword v143, v140, s[18:19]")
        A("v_min_u32 v140, 55, v0")
        A("v_lshlrev_b32 v140, 10, v140")
        A("s_mul_i32 s34, s33, 57344")
        A("s_add_u32 s34, s34, s35")
        A("v_add_u32 v140, s34, v140")
        A("global_load_dword v144, v140, s[20:21]")

    def fills():
        for i in range(4):
            A(f"v_mov_b32 {v(16+i)}, -1")
        A("s_lshl_b32 s33, s32, 4")
        A("s_add_u32 s33, s33, s31")
        A("s_lshl_b32 s34, s33, 11")
        A(f"s_add_u32 s34, s34, {OP:#x}")
        A("v_add_u32 v160, s34, v1")
        A("global_store_dwordx4 v160, v[16:19], s[26:27] sc1")
        A("global_store_dwordx4 v160, v[16:19], s[26:27] offset:1024 sc1")
        A("v_add_u32 v161, s38, v1")
        A("s_mov_b64 exec, 0xff")
        A("global_store_dwordx4 v161, v[16:19], s[26:27] sc1")
        A("s_mov_b64 exec, -1")
        Lskip = g.newlabel("skip_acs")
        A("s_cmp_lg_u32 s51, 1")
        A(f"s_cbranch_scc1 {Lskip}")
        A("s_lshl_b32 s34, s50, 1")
        A(f"s_add_u32 s34, s34, {AC:#x}")
        A("v_lshrrev_b32 v162, 2, v0")
        A("v_mul_u32_u24 v162, 3584, v162")
        A("v_and_b32 v163, 3, v0")
        A("v_lshlrev_b32 v163, 4, v163")
        A("v_add3_u32 v162, v162, v163, s34")
        A("s_mov_b64 exec, 0xff")
        A("global_store_dwordx4 v162, v[16:19], s[26:27] sc1")
        A("s_mov_b64 exec, -1")
        g.label(Lskip)

    def nonce_loop(first_loaded):
        L = g.newlabel("nn")
        Ld = g.newlabel("nn_done")
        A(f"s_mov_b32 s46, {SPIN}")
        if first_loaded:
            A("s_waitcnt vmcnt(0)")
            A("v_readfirstlane_b32 s47, v5")
            A("s_cmp_lg_u32 s47, 0")
            A(f"s_cbranch_scc1 {Ld}")
        g.label(L)
        A("global_load_dword v5, v6, s[24:25] sc1")
        A("s_waitcnt vmcnt(0)")
        A("v_readfirstlane_b32 s47, v5")
        A("s_cmp_lg_u32 s47, 0")
        A(f"s_cbranch_scc1 {Ld}")
        if SLP:
            A(f"s_sleep {SLP}")
        A("s_sub_u32 s46, s46, 1")
        A("s_cmp_lg_u32 s46, 0")
        A(f"s_cbranch_scc1 {L}")
        g.label(Ld)

    Lnp = g.newlabel("noprod")
    Lnp2 = g.newlabel("front_done")
    A("s_cmp_ge_u32 s2, 128")
    A(f"s_cbranch_scc1 {Lnp}")
    A("global_load_dwordx4 v[4:7], v1, s[4:5]")
    A("global_load_dwordx4 v[8:11], v1, s[4:5] offset:1024")
    A("s_lshl_b32 s33, s37, 20")
    A("s_lshl_b32 s34, s36, 8")
    A("s_add_u32 s33, s33, s34")
    A("v_lshlrev_b32 v12, 13, v2")
    A("v_lshlrev_b32 v13, 4, v3")
    A("v_add3_u32 v12, v12, v13, s33")
    for i in range(32):
        if i:
            A("v_add_u32 v12, 0x8000, v12")
        A(f"global_load_dwordx4 {v(WQR+4*i,4)}, v12, s[10:11] nt")
    if b0 == 1:
        A("s_barrier")
    A("s_waitcnt vmcnt(32)")
    stamp(g, 13, stamps)
    A(f"ds_write_b128 v1, v[4:7] offset:{XL}")
    A(f"ds_write_b128 v1, v[8:11] offset:{XL+1024}")
    unpack8(g, 144, 4)
    unpack8(g, 152, 8)
    layernorm2(g, 144, 4, [12, 13, 14, 15] + list(range(160, 168)))
    A(f"ds_write_b128 v1, {v(4,4)} offset:{XN}")
    A(f"ds_write_b128 v1, {v(8,4)} offset:{XN+1024}")
    A("v_bfe_u32 v160, v0, 3, 1")
    A("v_lshlrev_b32 v160, 10, v160")
    A("v_lshlrev_b32 v161, 1, v2")
    A("s_lshl_b32 s33, s37, 8")
    A("v_add3_u32 v160, v160, v161, s33")
    A("s_waitcnt lgkmcnt(0)")
    A("v_and_b32 v5, 7, v0")
    A("v_mov_b32 v6, 0xffff")
    A("v_mov_b32 v7, 0xffff0000")
    for d in range(4):
        A(f"v_mov_b32 {v(8+d)}, 0")
        A(f"v_cmp_eq_u32 vcc, {2*d}, v5")
        A("s_nop 1")
        A(f"v_cndmask_b32 {v(8+d)}, {v(8+d)}, v6, vcc")
        A(f"v_cmp_eq_u32 vcc, {2*d+1}, v5")
        A("s_nop 1")
        A(f"v_cndmask_b32 {v(8+d)}, {v(8+d)}, v7, vcc")
    A("v_mov_b32 v6, 0")
    A("global_load_dword v5, v6, s[24:25] sc1")
    QD = 12
    for half in range(2):
        for i in range(16):
            A(f"ds_read_u16 {v(144+i)}, v160 offset:{XN+8*(16*half+i)}")
        A("s_waitcnt lgkmcnt(0)")
        if half == 0:
            A("s_waitcnt vmcnt(17)")
            if b0 == 2:
                A("s_barrier")
        else:
            A("s_waitcnt vmcnt(1)")
            if b0 == 3:
                A("s_barrier")
        stamp(g, 14 + half, stamps)
        for i in range(16):
            ii = 16 * half + i
            Bq = 160 + 4 * (i % 2)
            A(f"v_lshl_or_b32 {v(144+i)}, {v(144+i)}, 16, {v(144+i)}")
            for d in range(4):
                A(f"v_and_b32 {v(Bq+d)}, {v(144+i)}, {v(8+d)}")
            A("s_nop 1")
            c = "0" if ii == 0 else v(QD, 4)
            A(f"v_mfma_f32_16x16x32_bf16 {v(QD,4)}, {v(WQR+4*ii,4)}, {v(Bq,4)}, {c}")
        if half == 0:
            A("v_bfe_u32 v160, v0, 3, 1")
            A("v_lshlrev_b32 v160, 10, v160")
            A("v_lshlrev_b32 v161, 1, v2")
            A("v_add3_u32 v160, v160, v161, s33")
    stamp(g, 16, stamps)
    nonce_loop(True)
    stamp(g, 1, stamps)
    A("s_lshl_b32 s33, s37, 5")
    A("s_add_u32 s33, s33, s36")
    A("s_lshl_b32 s33, s33, 11")
    A("v_add_u32 v160, s33, v1")
    A(f"v_mov_b32 v20, {v(QD+3)}")
    A("v_mov_b32 v21, s47")
    A("v_mov_b32 v22, s47")
    A("v_mov_b32 v23, s47")
    A(f"v_mov_b32 {v(QD+3)}, s47")
    A(f"global_store_dwordx4 v160, {v(QD,4)}, s[26:27] offset:{QP} sc1")
    A(f"global_store_dwordx4 v160, v[20:23], s[26:27] offset:{QP+1024} sc1")
    if b0 == 4:
        A("s_barrier")
    fills()
    A(f"s_branch {Lnp2}")
    g.label(Lnp)
    if b0:
        A("s_barrier")
    A("global_load_dwordx4 v[8:11], v1, s[4:5]")
    A("global_load_dwordx4 v[12:15], v1, s[4:5] offset:1024")
    fills()
    A("v_mov_b32 v6, 0")
    nonce_loop(False)
    stamp(g, 1, stamps)
    A(f"ds_write_b128 v1, v[8:11] offset:{XL}")
    A(f"ds_write_b128 v1, v[12:15] offset:{XL+1024}")
    g.label(Lnp2)
    A("v_bfe_u32 v4, v0, 2, 2")
    A("v_and_b32 v5, 3, v0")
    A("v_lshlrev_b32 v4, 16, v4")
    A("v_lshlrev_b32 v5, 11, v5")
    A("s_lshl_b32 s33, s29, 13")
    A("v_add3_u32 v4, v4, v5, s33")
    poll_pipe(g, lambda r: f"global_load_dword {v(r)}, v4, s[26:27] offset:{QP+2044} sc1", 1, 100, 3, [0], 16, "ql", anyok=bool(qany))
    A("v_lshrrev_b32 v4, 5, v0")
    A("v_bfe_u32 v5, v0, 3, 2")
    A("v_and_b32 v6, 7, v0")
    A("s_lshl_b32 s34, s30, 7")
    A("s_add_u32 s33, s33, s34")
    A("v_lshlrev_b32 v7, 11, v4")
    A("v_lshlrev_b32 v8, 8, v5")
    A("v_lshlrev_b32 v9, 4, v6")
    A("v_add3_u32 v7, v7, v8, v9")
    A("v_add_u32 v7, s33, v7")
    for k in range(1, 8):
        A(f"v_add_u32 {v(7+k)}, {4096*(k%2) + 65536*(k//2)}, v7")
    loads = []
    for ks in range(4):
        for hp in range(2):
            for gr in range(2):
                loads.append(f"global_load_dwordx4 {v(24+16*ks+8*hp+4*gr,4)}, {v(7+2*ks+hp)}, s[26:27] offset:{QP+1024*gr} sc1")
    poll_tag(g, loads, [24 + 4 * k + 3 for k in range(16)], 16, "qg")
    stamp(g, 2, stamps)
    for ks in range(4):
        for hp in range(2):
            A(f"v_mov_b32 {v(24+16*ks+8*hp+3)}, {v(24+16*ks+8*hp+4)}")
    for ks in range(1, 4):
        for hp in range(2):
            for i in range(4):
                A(f"v_add_f32 {v(24+8*hp+i)}, {v(24+8*hp+i)}, {v(24+16*ks+8*hp+i)}")
    A("v_lshlrev_b32 v7, 8, v4")
    A("v_lshlrev_b32 v8, 6, v5")
    A("v_lshlrev_b32 v9, 1, v6")
    A("v_add3_u32 v7, v7, v8, v9")
    for hp in range(2):
        for r in range(4):
            A(f"v_cvt_pk_bf16_f32 {v(16+4*hp+r)}, {v(24+8*hp+r)}, {v(24+8*hp+r)}")
            A(f"ds_write_b16 v7, {v(16+4*hp+r)} offset:{QL+512*hp+16*r}")
    A("s_waitcnt lgkmcnt(0)")
    A("v_mov_b32 v164, 0")
    A("v_mov_b32 v165, 1")
    A(f"ds_write_b32 v164, v165 offset:{FLG}")
    stamp(g, 3, stamps)
    if pfp == 1:
        prefetch()
    if bare == 2:
        A(f"ds_write_b32 v164, v165 offset:{FLG+8}")
        A("s_branch L_end")
    A("v_and_b32 v4, 31, v0")
    A("v_lshlrev_b32 v4, 3, v4")
    A("s_lshl_b32 s33, s32, 10")
    A("s_lshl_b32 s34, s31, 6")
    A(f"s_add_u32 s33, s33, {ST:#x}")
    A("s_add_u32 s34, s34, s33")
    A("v_add_u32 v6, s34, v1")
    A("v_add_u32 v7, s33, v1")
    A("s_lshl_b32 s33, s2, 2")
    A(f"s_add_u32 s33, s33, {FL:#x}")
    A("v_mov_b32 v8, s33")
    A("v_mov_b32 v9, s47")
    L = g.newlabel("wc")
    Ld = g.newlabel("wc_done")
    A(f"s_mov_b32 s46, {SPIN*16}")
    g.label(L)
    A(f"ds_read_b32 v166, v164 offset:{FLG+4}")
    A("s_waitcnt lgkmcnt(0)")
    A("v_readfirstlane_b32 s48, v166")
    A("s_cmp_eq_u32 s48, 512")
    A(f"s_cbranch_scc1 {Ld}")
    A("s_sub_u32 s46, s46, 1")
    A("s_cmp_lg_u32 s46, 0")
    A(f"s_cbranch_scc1 {L}")
    g.label(Ld)
    stamp(g, 4, stamps)
    A(f"ds_read_b64 v[12:13], v4 offset:{WST}")
    A("s_waitcnt lgkmcnt(0)")
    A("v_mov_b32 v14, v12")

    def red_s4(reg, tmp, op, full):
        dpp_steps(g, [reg], op, ["row_ror:4", "row_ror:8"])
        swap_reduce(g, [reg], [tmp], op, (16, 32) if full else (16,))

    red_s4(14, 15, "v_max_f32", False)
    A("v_sub_f32 v12, v12, v14")
    A("v_mul_f32 v12, s44, v12")
    A("v_exp_f32 v12, v12")
    A("s_nop 0")
    A("v_mul_f32 v13, v13, v12")
    red_s4(13, 15, "v_add_f32", False)
    A("v_mov_b32 v12, v14")
    A("v_mov_b32 v14, s47")
    A("v_mov_b32 v15, s47")
    A("s_mov_b64 exec, 0xf")
    A("global_store_dwordx4 v6, v[12:15], s[26:27] sc1")
    A("s_mov_b64 exec, 0x1")
    A("global_store_dword v8, v9, s[26:27] sc1")
    A("s_mov_b64 exec, -1")
    poll_pipe(g, lambda r: f"global_load_dwordx4 {v(r,4)}, v7, s[26:27] sc1", 4, 100, stk, [3], 16, "st", dst=12, slp=bool(sts), force=True)
    stamp(g, 5, stamps)
    A("v_mov_b32 v14, v12")
    red_s4(14, 15, "v_max_f32", True)
    A("v_sub_f32 v12, v12, v14")
    A("v_mul_f32 v12, s44, v12")
    A("v_exp_f32 v12, v12")
    A("s_nop 0")
    A("v_mul_f32 v13, v13, v12")
    red_s4(13, 15, "v_add_f32", True)
    A("v_rcp_f32 v15, v13")
    A("s_nop 0")
    A("v_fma_f32 v12, -v13, v15, 1.0")
    A("v_fmac_f32 v15, v12, v15")
    A("v_mov_b32 v12, v14")
    A("v_mov_b32 v13, v15")
    A("v_and_b32 v4, 3, v0")
    A("v_lshlrev_b32 v4, 3, v4")
    A(f"ds_write_b64 v4, v[12:13] offset:{GST}")
    A("s_waitcnt lgkmcnt(0)")
    A(f"ds_write_b32 v164, v165 offset:{FLG+8}")
    stamp(g, 6, stamps)
    if pfp == 2:
        prefetch()
    if bare == 3:
        A("s_branch L_end")
    Lnof = g.newlabel("nofl")
    A("s_cmp_eq_u32 s51, 0")
    A(f"s_cbranch_scc1 {Lnof}")
    A(f"v_add_u32 v6, {FL:#x}, v1")
    poll_pipe(g, lambda r: f"global_load_dwordx4 {v(r,4)}, v6, s[26:27] sc1", 4, 100, 1, [0, 1, 2, 3], 16, "fl")
    g.label(Lnof)
    A("s_lshl_b32 s33, s32, 15")
    A("s_lshl_b32 s34, s31, 11")
    A("s_add_u32 s33, s33, s34")
    A(f"s_add_u32 s33, s33, {OP:#x}")
    A("v_add_u32 v6, s33, v1")
    A("s_lshl_b32 s33, s32, 8")
    A(f"s_add_u32 s33, s33, {F1:#x}")
    A("s_lshl_b32 s34, s31, 2")
    A("s_add_u32 s34, s34, s33")
    A("v_mov_b32 v8, s34")
    A("v_lshlrev_b32 v7, 2, v3")
    A("v_add_u32 v7, s33, v7")
    A("v_mov_b32 v9, s47")
    A("s_barrier")
    stamp(g, 7, stamps)
    for c in range(2):
        for w in range(8):
            A(f"ds_read_b128 {v(16+32*c+4*w,4)}, v1 offset:{RED+2048*w+1024*c}")
    for c in range(2):
        A(f"s_waitcnt lgkmcnt({8*(1-c)})")
        b = 16 + 32 * c
        for i in range(4):
            A(f"v_add_f32 {v(b+i)}, {v(b+i)}, {v(b+4+i)}")
            A(f"v_add_f32 {v(b+8+i)}, {v(b+8+i)}, {v(b+12+i)}")
            A(f"v_add_f32 {v(b+16+i)}, {v(b+16+i)}, {v(b+20+i)}")
            A(f"v_add_f32 {v(b+24+i)}, {v(b+24+i)}, {v(b+28+i)}")
        for i in range(4):
            A(f"v_add_f32 {v(b+i)}, {v(b+i)}, {v(b+8+i)}")
            A(f"v_add_f32 {v(b+16+i)}, {v(b+16+i)}, {v(b+24+i)}")
        for i in range(4):
            A(f"v_add_f32 {v(b+i)}, {v(b+i)}, {v(b+16+i)}")
            A(f"v_min_u32 {v(b+i)}, 0xfffffffe, {v(b+i)}")
        A(f"global_store_dwordx4 v6, {v(b,4)}, s[26:27] offset:{1024*c} sc1")
    A("s_mov_b64 exec, 0x1")
    A("global_store_dword v8, v9, s[26:27] sc1")
    A("s_mov_b64 exec, -1")
    if pfp == 3:
        prefetch()
    poll_pipe(g, lambda r: f"global_load_dword {v(r)}, v7, s[26:27] sc1", 1, 100, f1k, [0], 16, "f1", slp=bool(f1s), force=True)
    stamp(g, 8, stamps)
    A("s_barrier")
    if pfp == 4:
        prefetch()
    A("v_and_b32 v4, 31, v0")
    A("v_lshlrev_b32 v4, 2, v4")
    A("v_add_u32 v6, s38, v4")
    A("s_barrier")
    stamp(g, 9, stamps)
    for w in range(8):
        A(f"ds_read_b32 {v(16+w)}, v4 offset:{R2+128*w}")
    A("s_waitcnt lgkmcnt(0)")
    for w in range(0, 8, 2):
        A(f"v_add_f32 {v(16+w)}, {v(16+w)}, {v(17+w)}")
    A("v_add_f32 v16, v16, v18")
    A("v_add_f32 v20, v20, v22")
    A("v_add_f32 v16, v16, v20")
    A("v_min_u32 v16, 0xfffffffe, v16")
    A("s_mov_b32 exec_hi, 0")
    A("global_store_dword v6, v16, s[26:27] sc1")
    A("s_mov_b64 exec, -1")
    A("s_cmp_eq_u32 s51, 0")
    A("s_cbranch_scc1 L_end")
    A("s_cmp_eq_u32 s51, 2")
    A("s_cbranch_scc1 L_cdown")
    A("v_lshrrev_b32 v4, 5, v0")
    A("v_and_b32 v5, 31, v0")
    A("v_lshlrev_b32 v10, 8, v4")
    A("v_lshlrev_b32 v11, 2, v5")
    A("v_add_u32 v10, v10, v11")
    A("s_lshl_b32 s33, s50, 1")
    A(f"s_add_u32 s33, s33, {AC:#x}")
    A("v_mul_u32_u24 v6, 3584, v4")
    A("v_lshlrev_b32 v11, 1, v5")
    A("v_add3_u32 v6, v6, v11, s33")
    A("s_mov_b32 s39, 0x200")
    A("s_mov_b32 s52, 0x55555555")
    A("s_mov_b32 s53, 0x55555555")
    A("s_barrier")
    A("s_barrier")
    stamp(g, 11, stamps)
    for w in range(8):
        A(f"ds_read_b32 {v(16+w)}, v10 offset:{R4+512*w}")
        A(f"ds_read_b32 {v(24+w)}, v10 offset:{R4+512*w+128}")
    A("s_waitcnt lgkmcnt(0)")
    for base in (16, 24):
        for w in range(0, 8, 2):
            A(f"v_add_f32 {v(base+w)}, {v(base+w)}, {v(base+w+1)}")
        A(f"v_add_f32 {v(base)}, {v(base)}, {v(base+2)}")
        A(f"v_add_f32 {v(base+4)}, {v(base+4)}, {v(base+6)}")
        A(f"v_add_f32 {v(base)}, {v(base)}, {v(base+4)}")
    A("v_cvt_pk_bf16_f32 v18, v16, v24")
    A("v_lshlrev_b32 v16, 16, v18")
    A("v_and_b32 v24, 0xffff0000, v18")
    A("v_mul_f32 v18, s44, v16")
    A("v_exp_f32 v18, -v18")
    A("s_nop 0")
    A("v_add_f32 v18, 1.0, v18")
    A("v_rcp_f32 v20, v18")
    A("s_nop 0")
    A("v_mul_f32 v22, v16, v20")
    A("v_mov_b32 v21, v22")
    A("v_fma_f32 v23, -v22, v18, v16")
    A("v_fmac_f32 v22, v23, v20")
    A("v_cmp_class_f32 vcc, v18, s39")
    A("s_nop 1")
    A("v_cndmask_b32 v22, v22, v21, vcc")
    bf16r(g, 22, 22, 18)
    A("v_mul_f32 v22, v22, v24")
    A("v_cvt_pk_bf16_f32 v18, v22, v22")
    A("v_and_b32 v18, 0xffff, v18")
    A("s_nop 1")
    A(f"v_mov_b32_dpp v19, v18 quad_perm:[1,0,3,2] {DPP}")
    A("v_lshl_or_b32 v18, v19, 16, v18")
    A("v_min_u32 v18, 0xfffffffe, v18")
    A("s_mov_b64 exec, s[52:53]")
    A("global_store_dword v6, v18, s[26:27] sc1")
    A("s_mov_b64 exec, -1")
    A("s_branch L_end")
    g.label("L_cdown")
    A("v_lshrrev_b32 v4, 3, v0")
    A("v_bfe_u32 v5, v0, 2, 1")
    A("v_and_b32 v7, 3, v0")
    A("v_lshlrev_b32 v8, 12, v4")
    A("v_lshlrev_b32 v10, 11, v5")
    A("v_lshlrev_b32 v11, 4, v7")
    A("v_add3_u32 v8, v8, v10, v11")
    A("s_lshl_b32 s33, s50, 2")
    A(f"s_add_u32 s33, s33, {YP:#x}")
    A("v_add_u32 v8, s33, v8")
    A("v_lshlrev_b32 v10, 10, v5")
    A("v_lshlrev_b32 v11, 3, v7")
    A("s_lshl_b32 s33, s50, 1")
    A("v_add3_u32 v10, v10, v11, s33")
    A(f"ds_read_b64 v[40:41], v10 offset:{XL}")
    A("v_lshlrev_b32 v11, 6, v5")
    A("v_lshlrev_b32 v12, 4, v7")
    A("v_add_u32 v11, v11, v12")
    poll_loop(g, ["global_load_dwordx4 v[16:19], v8, s[26:27] sc1"], [16, 17, 18, 19], 12, "hy", slp=True)
    dpp_steps(g, [16, 17, 18, 19], "v_add_f32", ["row_ror:8"])
    swap_reduce(g, [16, 17, 18, 19], [20, 21, 22, 23], "v_add_f32", (16, 32))
    A("s_waitcnt lgkmcnt(0)")
    A("v_lshlrev_b32 v36, 16, v40")
    A("v_and_b32 v37, 0xffff0000, v40")
    A("v_lshlrev_b32 v38, 16, v41")
    A("v_and_b32 v39, 0xffff0000, v41")
    for i in (0, 2):
        A(f"v_cvt_pk_bf16_f32 v20, {v(16+i)}, {v(17+i)}")
        A(f"v_lshlrev_b32 {v(16+i)}, 16, v20")
        A(f"v_and_b32 {v(17+i)}, 0xffff0000, v20")
        A(f"v_add_f32 {v(16+i)}, {v(16+i)}, {v(36+i)}")
        A(f"v_add_f32 {v(17+i)}, {v(17+i)}, {v(37+i)}")
        A(f"v_cvt_pk_bf16_f32 v20, {v(16+i)}, {v(17+i)}")
        A(f"v_lshlrev_b32 {v(36+i)}, 16, v20")
        A(f"v_and_b32 {v(37+i)}, 0xffff0000, v20")
    A("s_barrier")
    stamp(g, 17, stamps)
    for w in range(8):
        A(f"ds_read_b128 {v(48+4*w,4)}, v11 offset:{R5+128*w}")
    A("s_waitcnt lgkmcnt(0)")
    for i in range(4):
        for w in range(0, 8, 2):
            A(f"v_add_f32 {v(48+4*w+i)}, {v(48+4*w+i)}, {v(52+4*w+i)}")
        A(f"v_add_f32 {v(48+i)}, {v(48+i)}, {v(56+i)}")
        A(f"v_add_f32 {v(64+i)}, {v(64+i)}, {v(72+i)}")
        A(f"v_add_f32 {v(48+i)}, {v(48+i)}, {v(64+i)}")
    for i in (0, 2):
        A(f"v_cvt_pk_bf16_f32 v20, {v(48+i)}, {v(49+i)}")
        A(f"v_lshlrev_b32 {v(48+i)}, 16, v20")
        A(f"v_and_b32 {v(49+i)}, 0xffff0000, v20")
        A(f"v_add_f32 {v(48+i)}, {v(48+i)}, {v(36+i)}")
        A(f"v_add_f32 {v(49+i)}, {v(49+i)}, {v(37+i)}")
        A(f"v_cvt_pk_bf16_f32 {v(16+i//2)}, {v(48+i)}, {v(49+i)}")
    A("s_mov_b64 exec, 0xff")
    A("global_store_dwordx2 v10, v[16:17], s[22:23]")
    A("s_mov_b64 exec, -1")
    g.label("L_end")
    if stamps:
        A("s_waitcnt vmcnt(0)")
        stamp(g, 31, True)
        A("v_mov_b32 v166, s62")
        for i in range(32):
            A(f"v_mov_b32 v167, s{64+i}")
            A(f"global_store_dword v166, v167, s[26:27] offset:{4*i}")
    g.label("L_end2")
    A("s_endpgm")

    tail = []
    tail.append('.section .rodata,"a"')
    tail.append(".p2align 6")
    tail.append(f".amdhsa_kernel {NAME}_kernel")
    tail.append("  .amdhsa_next_free_vgpr 168")
    tail.append("  .amdhsa_next_free_sgpr 102")
    tail.append("  .amdhsa_accum_offset 168")
    tail.append("  .amdhsa_group_segment_fixed_size 0")
    tail.append("  .amdhsa_kernarg_size 96")
    tail.append("  .amdhsa_user_sgpr_count 2")
    tail.append("  .amdhsa_user_sgpr_kernarg_segment_ptr 1")
    tail.append("  .amdhsa_system_sgpr_workgroup_id_x 1")
    tail.append(".end_amdhsa_kernel")
    return "\n".join(hdr + g.L + tail) + "\n"


if __name__ == "__main__":
    import argparse
    ap = argparse.ArgumentParser()
    ap.add_argument("-o", default="k.s")
    ap.add_argument("--depth", type=int, default=3)
    ap.add_argument("--n1", type=int, default=3)
    ap.add_argument("--n2", type=int, default=10)
    ap.add_argument("--wnt", type=int, default=1)
    ap.add_argument("--stamps", type=int, default=0)
    ap.add_argument("--b0", type=int, default=1)
    ap.add_argument("--rp", type=int, default=1)
    ap.add_argument("--qany", type=int, default=1)
    ap.add_argument("--rpos", type=int, default=0)
    ap.add_argument("--now", type=int, default=0)
    ap.add_argument("--bare", type=int, default=0)
    ap.add_argument("--rpg", type=int, default=1)
    ap.add_argument("--rpd", type=int, default=1)
    ap.add_argument("--gnt", type=int, default=0)
    ap.add_argument("--wpos", type=int, default=0)
    ap.add_argument("--dsw", type=int, default=99)
    ap.add_argument("--mp", type=int, default=0)
    ap.add_argument("--tpos", type=int, default=0)
    ap.add_argument("--pfp", type=int, default=0)
    ap.add_argument("--tg1", type=int, default=3)
    ap.add_argument("--nb0", type=int, default=0)
    ap.add_argument("--f1k", type=int, default=1)
    ap.add_argument("--cpf", type=int, default=0)
    ap.add_argument("--prio", type=int, default=0)
    ap.add_argument("--rw", type=int, default=1)
    ap.add_argument("--f1s", type=int, default=1)
    ap.add_argument("--stk", type=int, default=1)
    ap.add_argument("--sts", type=int, default=1)
    ap.add_argument("--td1", type=int, default=2)
    ap.add_argument("--depth2", type=int, default=3)
    ap.add_argument("--pk", type=int, default=3)
    ap.add_argument("--slp", type=int, default=0)
    ap.add_argument("--slp2", type=int, default=0)
    a = ap.parse_args()
    PK = a.pk
    SLP = a.slp
    SLP2 = a.slp2
    open(a.o, "w").write(gen(a.depth, a.n1, a.n2, bool(a.wnt), bool(a.stamps), a.b0, a.rp, a.qany, a.rpos, a.now, a.bare, a.rpg, a.rpd, a.gnt, a.wpos, a.dsw, a.depth2, a.mp, a.tpos, a.pfp, a.tg1, a.td1, a.nb0, a.f1k, a.f1s, a.stk, a.sts, a.cpf, a.prio, a.rw))
```

```python
import sys

NAME = "sequential_preLN__gqa_block_cached__swiglu_ffn__decode"

QP = 0x00000
ST = 0x40000
OP = 0x80000
YP = 0x100000
AC = 0x110000
FL = 0x120000
F1 = 0x121000
F2 = 0x122000
F3 = 0x123000
TS = 0x200000
GT = 0x300000
DT = 0x700000

XL = 0
XN = XL + 2048
QL = XN + 2048
WST = QL + 1024
GST = WST + 256
FLG = GST + 128
RED = GST + 256
AO = RED + 16384
R2 = AO + 1024
LS = R2 + 1024
HN = LS + 256
R4 = HN + 2048
R5 = R4
WO_L = 32768
assert R4 + 4096 <= WO_L
GU_L = WO_L + 32768
WD_L = GU_L
LDS_TOTAL = GU_L + 65536

LOG2E = 0x3FB8AA3B
SCALE = 0x3DB504F3
EPS = 0x3727C5AC
INV512 = 0x3B000000
SPIN = 4000
PK = 3
SLP = 0
SLP2 = 0


class G:
    def __init__(self):
        self.L = []
        self.nlab = 0

    def __call__(self, s):
        self.L.append("  " + s)

    def label(self, name):
        self.L.append(name + ":")

    def newlabel(self, base):
        self.nlab += 1
        return f"L_{base}_{self.nlab}"


def v(i, n=1):
    return f"v{i}" if n == 1 else f"v[{i}:{i+n-1}]"


DPP = "row_mask:0xf bank_mask:0xf"


def bf16r(g, dst, src, tmp):
    g(f"v_cvt_pk_bf16_f32 {v(tmp)}, {v(src)}, {v(src)}")
    g(f"v_lshlrev_b32 {v(dst)}, 16, {v(tmp)}")


def dpp_steps(g, regs, op, steps):
    for st in steps:
        if len(regs) < 3:
            g("s_nop 1")
        for r in regs:
            g(f"{op}_dpp {v(r)}, {v(r)}, {v(r)} {st} {DPP}")


def swap_reduce(g, regs, tmps, op, which):
    for sw in which:
        ins = {16: "v_permlane16_swap_b32", 32: "v_permlane32_swap_b32"}[sw]
        for r, t in zip(regs, tmps):
            g(f"v_mov_b32 {v(t)}, {v(r)}")
        g("s_nop 1")
        for r, t in zip(regs, tmps):
            g(f"{ins} {v(r)}, {v(t)}")
        for r, t in zip(regs, tmps):
            g(f"{op} {v(r)}, {v(r)}, {v(t)}")


def wave_reduce(g, regs, tmps, op):
    dpp_steps(g, regs, op, ["quad_perm:[1,0,3,2]", "quad_perm:[2,3,0,1]", "row_ror:4", "row_ror:8"])
    swap_reduce(g, regs, tmps, op, (16, 32))


def unpack8(g, dst, src):
    for i in range(4):
        g(f"v_lshlrev_b32 {v(dst+2*i)}, 16, {v(src+i)}")
        g(f"v_and_b32 {v(dst+2*i+1)}, 0xffff0000, {v(src+i)}")


def ln_finish_pair(g, f0, f1, mean_b, den, rc, D, out):
    g(f"v_sub_f32 {v(D[0])}, {v(f0)}, {v(mean_b)}")
    g(f"v_sub_f32 {v(D[1])}, {v(f1)}, {v(mean_b)}")
    g(f"v_cvt_pk_bf16_f32 {v(D[2])}, {v(D[0])}, {v(D[1])}")
    g(f"v_lshlrev_b32 {v(D[0])}, 16, {v(D[2])}")
    g(f"v_and_b32 {v(D[1])}, 0xffff0000, {v(D[2])}")
    g(f"v_mul_f32 {v(D[2])}, {v(D[0])}, {v(rc)}")
    g(f"v_mul_f32 {v(D[3])}, {v(D[1])}, {v(rc)}")
    g(f"v_fma_f32 {v(D[4])}, -{v(D[2])}, {v(den)}, {v(D[0])}")
    g(f"v_fma_f32 {v(D[5])}, -{v(D[3])}, {v(den)}, {v(D[1])}")
    g(f"v_fmac_f32 {v(D[2])}, {v(D[4])}, {v(rc)}")
    g(f"v_fmac_f32 {v(D[3])}, {v(D[5])}, {v(rc)}")
    g(f"v_cvt_pk_bf16_f32 {v(out)}, {v(D[2])}, {v(D[3])}")


def ln_scalars(g, mean, var, rc, t):
    bf16r(g, var, var, t)
    g(f"v_add_f32 {v(var)}, {EPS:#x}, {v(var)}")
    bf16r(g, var, var, t)
    g(f"v_sqrt_f32 {v(var)}, {v(var)}")
    bf16r(g, mean, mean, t)
    bf16r(g, var, var, t)
    g(f"v_rcp_f32 {v(rc)}, {v(var)}")
    g("s_nop 0")


def layernorm2(g, F, OUTP, T):
    s0, s1, q0, q1, r0, r1 = T[:6]
    D = T[6:12]
    t0, t1 = D[0], D[1]
    for b, s in ((0, s0), (1, s1)):
        f = F + 8 * b
        g(f"v_add_f32 {v(s)}, {v(f)}, {v(f+1)}")
        for i in range(2, 8):
            g(f"v_add_f32 {v(s)}, {v(s)}, {v(f+i)}")
    wave_reduce(g, [s0, s1], [t0, t1], "v_add_f32")
    g(f"v_mul_f32 {v(s0)}, {INV512:#x}, {v(s0)}")
    g(f"v_mul_f32 {v(s1)}, {INV512:#x}, {v(s1)}")
    for b, s, q in ((0, s0, q0), (1, s1, q1)):
        f = F + 8 * b
        for i in range(8):
            d = D[i % 4]
            g(f"v_sub_f32 {v(d)}, {v(f+i)}, {v(s)}")
            if i == 0:
                g(f"v_mul_f32 {v(q)}, {v(d)}, {v(d)}")
            else:
                g(f"v_fmac_f32 {v(q)}, {v(d)}, {v(d)}")
    wave_reduce(g, [q0, q1], [t0, t1], "v_add_f32")
    for s, q, r in ((s0, q0, r0), (s1, q1, r1)):
        g(f"v_mul_f32 {v(q)}, {INV512:#x}, {v(q)}")
        ln_scalars(g, s, q, r, t0)
    for b, s, q, r in ((0, s0, q0, r0), (1, s1, q1, r1)):
        f = F + 8 * b
        for i in range(0, 8, 2):
            ln_finish_pair(g, f + i, f + i + 1, s, q, r, D, OUTP + 4 * b + i // 2)


def poll_loop(g, loads, regs, tmp, name, slp=False):
    L = g.newlabel(name)
    Ld = g.newlabel(name + "_done")
    g(f"s_mov_b32 s46, {SPIN}")
    g.label(L)
    for l in loads:
        g(l)
    g("s_waitcnt vmcnt(0)")
    rs = list(regs)
    g(f"v_max_u32 {v(tmp)}, {v(rs[0])}, {v(rs[1])}")
    rest = rs[2:]
    while len(rest) >= 2:
        g(f"v_max3_u32 {v(tmp)}, {v(tmp)}, {v(rest[0])}, {v(rest[1])}")
        rest = rest[2:]
    if rest:
        g(f"v_max_u32 {v(tmp)}, {v(tmp)}, {v(rest[0])}")
    g(f"v_cmp_eq_u32 vcc, -1, {v(tmp)}")
    g(f"s_cbranch_vccz {Ld}")
    if slp and SLP2:
        g(f"s_sleep {SLP2}")
    g("s_sub_u32 s46, s46, 1")
    g("s_cmp_lg_u32 s46, 0")
    g(f"s_cbranch_scc1 {L}")
    g.label(Ld)


def poll_tag(g, loads, regs, tmp, name):
    L = g.newlabel(name)
    Ld = g.newlabel(name + "_done")
    g(f"s_mov_b32 s46, {SPIN}")
    g.label(L)
    for l in loads:
        g(l)
    g("s_waitcnt vmcnt(0)")
    rs = list(regs)
    if len(rs) == 1:
        g(f"v_cmp_ne_u32 vcc, s47, {v(rs[0])}")
    else:
        g(f"v_xor_b32 {v(tmp)}, s47, {v(rs[0])}")
        for r in rs[1:]:
            g(f"v_xor_b32 {v(tmp+1)}, s47, {v(r)}")
            g(f"v_or_b32 {v(tmp)}, {v(tmp)}, {v(tmp+1)}")
        g(f"v_cmp_ne_u32 vcc, 0, {v(tmp)}")
    g(f"s_cbranch_vccz {Ld}")
    g("s_sub_u32 s46, s46, 1")
    g("s_cmp_lg_u32 s46, 0")
    g(f"s_cbranch_scc1 {L}")
    g.label(Ld)


def poll_pipe(g, mk_load, nreg, sb, K, chk, tmp, name, dst=None, anyok=False, slp=True, force=False):
    if not force:
        K = min(K, PK)
    Ld = g.newlabel(name + "_done")
    L = g.newlabel(name)
    g(f"s_mov_b32 s46, {SPIN}")
    for k in range(K):
        g(mk_load(sb + nreg * k))
    g.label(L)
    outs = []
    for k in range(K):
        r = sb + nreg * k
        g(f"s_waitcnt vmcnt({K-1})")
        if len(chk) == 1:
            g(f"v_cmp_ne_u32 vcc, s47, {v(r+chk[0])}")
        else:
            g(f"v_xor_b32 {v(tmp)}, s47, {v(r+chk[0])}")
            for c in chk[1:]:
                g(f"v_xor_b32 {v(tmp+1)}, s47, {v(r+c)}")
                g(f"v_or_b32 {v(tmp)}, {v(tmp)}, {v(tmp+1)}")
            g(f"v_cmp_ne_u32 vcc, 0, {v(tmp)}")
        Lk = g.newlabel(name + f"_ok{k}")
        outs.append((Lk, r))
        if anyok:
            g("s_cmp_lg_u64 vcc, -1")
            g(f"s_cbranch_scc1 {Lk}")
        else:
            g(f"s_cbranch_vccz {Lk}")
        if SLP and slp:
            g(f"s_sleep {SLP}")
        g(mk_load(r))
    g("s_sub_u32 s46, s46, 1")
    g("s_cmp_lg_u32 s46, 0")
    g(f"s_cbranch_scc1 {L}")
    g(f"s_branch {Ld}")
    for n, (Lk, r) in enumerate(outs):
        g.label(Lk)
        if dst is not None:
            for i in range(nreg):
                g(f"v_mov_b32 {v(dst+i)}, {v(r+i)}")
        if n != len(outs) - 1:
            g(f"s_branch {Ld}")
    g.label(Ld)


def stamp(g, idx, on):
    if not on:
        return
    g("s_memrealtime s[60:61]")
    g("s_waitcnt lgkmcnt(0)")
    g(f"s_mov_b32 s{64+idx}, s60")


def gen(depth=3, n1=3, n2=10, wnt=True, stamps=False, b0=1, rp=1, qany=1, rpos=0, now=0, bare=0, rpg=1, rpd=1, gnt=0, wpos=0, dsw=99, depth2=3, mp=0, tpos=0, pfp=0, tg1=3, td1=2, nb0=0, f1k=1, f1s=1, stk=1, sts=1, cpf=0, prio=0, rw=1, dyn=0):
    g = G()
    A = g
    hdr = []
    hdr.append(f"; @launch grid=(256,1,1) block=(576,1,1) lds={LDS_TOTAL}")
    hdr.append('.amdgcn_target "amdgcn-amd-amdhsa--gfx950"')
    hdr.append(".text")
    hdr.append(f".globl {NAME}_kernel")
    hdr.append(".p2align 8")
    hdr.append(f".type {NAME}_kernel,@function")
    hdr.append(f"{NAME}_kernel:")
    WNT = " nt" if wnt else ""
    A("s_cmp_ge_u32 s2, 256")
    A("s_cbranch_scc1 L_end2")
    A("s_load_dwordx16 s[4:19], s[0:1], 0")
    A("s_load_dwordx8 s[20:27], s[0:1], 64")
    A("v_lshrrev_b32 v1, 6, v0")
    A("v_and_b32 v0, 63, v0")
    A("s_nop 0")
    A("v_readfirstlane_b32 s28, v1")
    A("s_and_b32 s58, s2, 7")
    if mp == 0:
        A("s_and_b32 s29, s2, 7")
        A("s_bfe_u32 s30, s2, 0x10003")
        A("s_lshr_b32 s31, s2, 4")
        A("s_and_b32 s32, s2, 15")
    else:
        A("s_bfe_u32 s29, s2, 0x30004")
        A("s_lshr_b32 s30, s2, 7")
        A("s_and_b32 s31, s2, 15")
        A("s_lshr_b32 s32, s2, 4")
    A(f"s_mov_b32 s44, {LOG2E:#x}")
    A(f"s_mov_b32 s45, {SCALE:#x}")
    A("s_and_b32 s33, s31, 7")
    A("s_lshl_b32 s33, s33, 1")
    A("s_lshr_b32 s34, s31, 3")
    A("s_or_b32 s59, s33, s34")
    A("s_bfe_u32 s33, s2, 0x20004")
    A("s_lshl_b32 s33, s33, 3")
    A("s_add_u32 s33, s33, s58")
    A("s_bfe_u32 s34, s2, 0x10003")
    A("s_lshl_b32 s50, s33, 6")
    A("s_lshl_b32 s34, s34, 5")
    A("s_add_u32 s50, s50, s34")
    A("s_mov_b32 s51, 0")
    A("s_cmp_lt_u32 s33, 28")
    A("s_cselect_b32 s51, 1, 0")
    A("s_cmp_lt_u32 s2, 64")
    A("s_cselect_b32 s51, s51, 0")
    A("s_bfe_u32 s34, s2, 0x20003")
    A("s_lshl_b32 s34, s34, 4")
    A("s_lshl_b32 s33, s58, 6")
    A("s_add_u32 s33, s33, s34")
    A("s_lshr_b32 s34, s2, 5")
    A("s_cmp_eq_u32 s34, 2")
    A("s_cselect_b32 s51, 2, s51")
    A("s_cselect_b32 s50, s33, s50")
    if stamps:
        A("s_mul_i32 s62, s2, 9")
        A("s_add_u32 s62, s62, s28")
        A("s_lshl_b32 s62, s62, 7")
        A(f"s_add_u32 s62, s62, {TS:#x}")
        for i in range(32):
            A(f"s_mov_b32 s{64+i}, 0")
    A("s_waitcnt lgkmcnt(0)")
    A("s_cmp_eq_u32 s28, 8")
    A("s_cbranch_scc1 L_ctrl")

    vK, vV, vML, vMH, vW = 4, 5, 6, 7, 8
    KR = 16
    VR = 84
    QB = 148
    Z = 152
    O0, O1 = 156, 160
    stamp(g, 0, stamps)
    A("s_lshl_b32 s33, s32, 21")
    A("s_lshl_b32 s34, s31, 17")
    A("s_add_u32 s33, s33, s34")
    A("s_lshl_b32 s34, s28, 14")
    A("s_add_u32 s33, s33, s34")
    A("v_lshrrev_b32 v1, 4, v0")
    A("v_bfe_u32 v2, v0, 2, 2")
    A("v_and_b32 v3, 3, v0")
    A("v_lshlrev_b32 v9, 6, v1")
    A("v_lshlrev_b32 v10, 8, v2")
    A("v_lshlrev_b32 v11, 4, v3")
    A("v_add3_u32 v9, v9, v10, v11")
    A(f"v_add_u32 {v(vK)}, s33, v9")
    A("v_lshlrev_b32 v9, 4, v0")
    A(f"v_add_u32 {v(vV)}, s33, v9")
    A(f"v_mov_b32 {v(vML)}, 0xffff")
    A(f"v_mov_b32 {v(vMH)}, 0xffff0000")

    seq = []

    def issue(name):
        kind, m = name
        dd = depth if len(seq) < dsw else depth2
        if dyn and len(seq) >= dyn and throttle[0]:
            Lt = g.newlabel("thr")
            A("s_cmp_lg_u32 s63, 0")
            A(f"s_cbranch_scc1 {Lt}")
            A(f"s_waitcnt vmcnt({depth-1})")
            g.label(Lt)
            A(f"s_waitcnt vmcnt({depth2-1})")
        elif len(seq) >= dd and throttle[0]:
            A(f"s_waitcnt vmcnt({dd-1})")
        if kind == "K":
            if m % 4 == 0 and m > 0:
                A(f"v_add_u32 {v(vK)}, 4096, {v(vK)}")
            r = KR + 4 + 4 * m
            A(f"global_load_dwordx4 {v(r,4)}, {v(vK)}, s[6:7] offset:{(m%4)*1024} nt")
        elif kind == "V":
            if m % 4 == 0 and m > 0:
                A(f"v_add_u32 {v(vV)}, 4096, {v(vV)}")
            r = VR + 4 * m
            A(f"global_load_dwordx4 {v(r,4)}, {v(vV)}, s[8:9] offset:{(m%4)*1024} nt")
        elif kind == "W":
            if m > 0:
                A(f"v_add_u32 {v(vW)}, 16384, {v(vW)}")
            A(f"s_add_u32 m0, s35, {m*1024}")
            A("s_nop 0")
            A(f"global_load_lds_dwordx4 {v(vW)}, s[12:13]{WNT}")
        elif kind == "R":
            if m == 0:
                A("s_min_u32 s33, s28, 6")
                A("s_and_b32 s34, s2, 3")
                A("s_mul_i32 s34, s34, 7")
                A("s_add_u32 s34, s34, s33")
                A("s_lshr_b32 s36, s2, 2")
                A("s_mul_i32 s36, s36, 28672")
                A("s_lshl_b32 s37, s34, 7")
                A("s_add_u32 s36, s36, s37")
                A("v_lshrrev_b32 v9, 3, v0")
                A("v_and_b32 v10, 7, v0")
                A("v_mul_u32_u24 v11, 3584, v10")
                A("v_lshlrev_b32 v9, 4, v9")
                A("v_add3_u32 v11, v11, v9, s36")
                A("s_mul_i32 s34, s2, 7")
                A("s_add_u32 s34, s34, s33")
                A("s_lshr_b32 s36, s34, 3")
                A("s_and_b32 s34, s34, 7")
                A("s_lshl_b32 s36, s36, 13")
                A("s_lshl_b32 s37, s34, 7")
                A("s_add_u32 s36, s36, s37")
                A("v_lshlrev_b32 v10, 10, v10")
                A("v_add3_u32 v10, v10, v9, s36")
                A("s_mul_i32 s36, s28, 3072")
                A(f"s_add_u32 s36, s36, {GU_L}")
            addr = "v11" if m < 2 else "v10"
            base = ("s[16:17]", "s[18:19]", "s[20:21]")[m]
            A(f"s_add_u32 m0, s36, {1024*m}")
            A("s_nop 0")
            A(f"global_load_lds_dwordx4 {addr}, {base} nt")
        seq.append(name)

    def wait_for(name):
        idx = seq.index(name)
        n = len(seq) - 1 - idx
        A(f"s_waitcnt vmcnt({n})")

    throttle = [True]
    RP = VR + 52
    A("s_lshl_b32 s33, s29, 19")
    A("s_lshl_b32 s34, s28, 16")
    A("s_add_u32 s33, s33, s34")
    A("s_lshl_b32 s34, s59, 6")
    A("s_add_u32 s33, s33, s34")
    A("v_lshrrev_b32 v9, 2, v0")
    A("v_lshlrev_b32 v9, 10, v9")
    A("v_lshlrev_b32 v10, 4, v3")
    A(f"v_add3_u32 {v(vW)}, v9, v10, s33")
    A("s_lshl_b32 s35, s28, 12")
    A(f"s_add_u32 s35, s35, {WO_L}")
    A("v_mov_b32 v164, 0")
    A("s_mov_b32 s49, 1")
    A("s_mov_b32 s63, 0")
    A("s_getpc_b64 s[56:57]")
    g.label("L_pc0")
    A("s_add_u32 s56, s56, L_qk-L_pc0")
    A("s_addc_u32 s57, s57, 0")
    if nb0 == 0:
        A("s_barrier")
    GNT = " nt" if gnt else ""

    def tile_gu(lo=0, hi=8):
        A("s_mul_i32 s33, s28, 229376")
        A("s_lshl_b32 s34, s50, 1")
        A("s_add_u32 s33, s33, s34")
        A("v_lshrrev_b32 v9, 2, v0")
        A("v_mul_u32_u24 v9, 3584, v9")
        A("v_lshlrev_b32 v10, 4, v3")
        A("v_add3_u32 v9, v9, v10, s33")
        A("s_lshl_b32 s34, s28, 12")
        A(f"s_add_u32 s34, s34, {GU_L}")
        cur = 0
        for j in range(lo, hi):
            i, mat = j >> 1, j & 1
            if i != cur:
                A(f"v_add_u32 v9, {57344*(i-cur)}, v9")
                cur = i
            A(f"s_add_u32 m0, s34, {32768*mat+1024*i}")
            A("s_nop 0")
            A(f"global_load_lds_dwordx4 v9, {('s[16:17]','s[18:19]')[mat]}{GNT}")

    def tile_dn(lo=0, hi=7):
        A("s_mul_i32 s33, s28, 229376")
        A("s_lshl_b32 s34, s50, 1")
        A("s_add_u32 s33, s33, s34")
        A("v_lshrrev_b32 v9, 1, v0")
        A("v_lshlrev_b32 v9, 10, v9")
        A("v_and_b32 v10, 1, v0")
        A("v_lshlrev_b32 v10, 4, v10")
        A("v_add3_u32 v9, v9, v10, s33")
        A("s_mul_i32 s34, s28, 7168")
        A(f"s_add_u32 s34, s34, {WD_L}")
        cur = 0
        for i in range(lo, hi):
            if i != cur:
                A(f"v_add_u32 v9, {0x8000*(i-cur)}, v9")
                cur = i
            A(f"s_add_u32 m0, s34, {1024*i}")
            A("s_nop 0")
            A(f"global_load_lds_dwordx4 v9, s[20:21]{GNT}")

    def wdma():
        for m in range(4):
            if m > 0:
                A(f"v_add_u32 {v(vW)}, 16384, {v(vW)}")
            A(f"s_add_u32 m0, s35, {m*1024}")
            A("s_nop 0")
            A(f"global_load_lds_dwordx4 {v(vW)}, s[12:13]{WNT}")

    def tiles():
        Lx = g.newlabel("notile")
        Ld2 = g.newlabel("dtile")
        A("s_cmp_eq_u32 s51, 0")
        A(f"s_cbranch_scc1 {Lx}")
        A("s_cmp_eq_u32 s51, 2")
        A(f"s_cbranch_scc1 {Ld2}")
        tile_gu()
        A(f"s_branch {Lx}")
        g.label(Ld2)
        tile_dn()
        g.label(Lx)

    if tpos == 1:
        tiles()

    def check():
        Ls = g.newlabel("nocall")
        A(f"ds_read_b32 v165, v164 offset:{FLG}")
        if dyn:
            A(f"ds_read_b32 v166, v164 offset:{FLG+8}")
        A("s_waitcnt lgkmcnt(0)")
        A("v_readfirstlane_b32 s48, v165")
        if dyn:
            A("v_readfirstlane_b32 s63, v166")
        A("s_cmp_eq_u32 s48, s49")
        A(f"s_cbranch_scc0 {Ls}")
        A("s_swappc_b64 s[54:55], s[56:57]")
        g.label(Ls)

    order = []
    order += [("K", m) for m in range(16)]
    order += [("V", m) for m in range(16)]
    k15 = order.index(("K", 15))
    first_check = k15 + depth
    for i, op in enumerate(order):
        if tpos >= 2 and i == tpos:
            tiles()
        issue(op)
        if nb0 and i == nb0 - 1:
            A("s_barrier")
        if i == first_check:
            wait_for(("K", 15))
        if i >= first_check and op[0] != "R":
            check()
    if rw == 1:
        Lw = g.newlabel("now")
        A("s_cmp_eq_u32 s51, 0")
        A(f"s_cbranch_scc1 {Lw}")
        wdma()
        g.label(Lw)
    elif rw == 2:
        wdma()
    stamp(g, 1, stamps)
    L = g.newlabel("wq")
    Ld = g.newlabel("wq_done")
    A(f"s_mov_b32 s46, {SPIN*16}")
    g.label(L)
    A("s_cmp_eq_u32 s49, 2")
    A(f"s_cbranch_scc1 {Ld}")
    check()
    A("s_sub_u32 s46, s46, 1")
    A("s_cmp_lg_u32 s46, 0")
    A(f"s_cbranch_scc1 {L}")
    g.label(Ld)
    for i in range(66):
        A(f"v_mov_b32 {v(KR+i)}, 0")
    A("v_lshlrev_b32 v9, 3, v3")
    stamp(g, 5, stamps)
    L = g.newlabel("wg")
    Ld = g.newlabel("wg_done")
    A(f"s_mov_b32 s46, {SPIN*16}")
    g.label(L)
    A(f"ds_read_b32 v165, v164 offset:{FLG+8}")
    A("s_waitcnt lgkmcnt(0)")
    A("v_readfirstlane_b32 s48, v165")
    A("s_cmp_eq_u32 s48, 1")
    A(f"s_cbranch_scc1 {Ld}")
    A("s_sub_u32 s46, s46, 1")
    A("s_cmp_lg_u32 s46, 0")
    A(f"s_cbranch_scc1 {L}")
    g.label(Ld)
    stamp(g, 6, stamps)
    A(f"ds_read_b64 v[12:13], v9 offset:{GST}")
    A("s_waitcnt lgkmcnt(0)")
    for m in range(4):
        A(f"v_sub_f32 {v(Z+m)}, {v(Z+m)}, v12")
        A(f"v_mul_f32 {v(Z+m)}, s44, {v(Z+m)}")
        A(f"v_exp_f32 {v(Z+m)}, {v(Z+m)}")
    A("s_nop 0")
    for m in range(4):
        A(f"v_mul_f32 {v(Z+m)}, {v(Z+m)}, v13")
        A(f"v_cvt_pk_bf16_f32 {v(Z+m)}, {v(Z+m)}, {v(Z+m)}")
    A("s_nop 1")
    for m in range(16):
        beta = m & 3
        k = m >> 2
        for j in range(4):
            rot = (4 * (j - beta)) & 15
            dst = KR + 4 * m + 2 + (j >> 1)
            msk = vMH if (j & 1) else vML
            ctl = f"row_ror:{rot}" if rot else "quad_perm:[0,1,2,3]"
            A(f"v_and_b32_dpp {v(dst)}, {v(Z+k)}, {v(msk)} {ctl} row_mask:0xf bank_mask:{1<<j:#x}")
    stamp(g, 7, stamps)
    A("s_nop 1")
    for m in range(16):
        wait_for(("V", m))
        c0 = "0" if m == 0 else v(O0, 4)
        c1 = "0" if m == 0 else v(O1, 4)
        A(f"v_mfma_f32_16x16x32_bf16 {v(O0,4)}, {v(VR+4*m,4)}, {v(KR+4*m+2,4)}, {c0}")
        A(f"v_mfma_f32_16x16x32_bf16 {v(O1,4)}, {v(VR+4*m,4)}, {v(KR+4*m,4)}, {c1}")
    stamp(g, 8, stamps)
    throttle[0] = False
    if bare:
        A("s_branch L_end")
    A("s_lshl_b32 s33, s28, 11")
    A("v_lshlrev_b32 v9, 5, v0")
    A("v_add_u32 v9, s33, v9")
    A("s_nop 6")
    A(f"ds_write_b128 v9, {v(O0,4)} offset:{RED}")
    A(f"ds_write_b128 v9, {v(O1,4)} offset:{RED+16}")
    A("s_waitcnt lgkmcnt(0)")
    A("s_barrier")
    Lr = g.newlabel("role")
    Lr2 = g.newlabel("role2")
    Lr3 = g.newlabel("role3")
    if rw == 0:
        wdma()
    A("s_cmp_lg_u32 s51, 0")
    A(f"s_cbranch_scc1 {Lr}")
    if rw == 1:
        wdma()
    A(f"s_branch {Lr3}")
    g.label(Lr)
    A("s_cmp_eq_u32 s51, 2")
    A(f"s_cbranch_scc1 {Lr2}")
    tile_gu(0, tg1)
    A(f"s_branch {Lr3}")
    g.label(Lr2)
    tile_dn(0, td1)
    g.label(Lr3)
    A("s_lshl_b32 s36, s32, 15")
    A("s_lshl_b32 s37, s28, 8")
    A("s_add_u32 s36, s36, s37")
    A(f"s_add_u32 s36, s36, {OP:#x}")
    A("v_lshlrev_b32 v9, 11, v1")
    A("v_and_b32 v4, 15, v0")
    A("v_lshlrev_b32 v10, 4, v4")
    A("v_add3_u32 v10, v9, v10, s36")
    for i in range(1, 4):
        A(f"v_add_u32 {v(10+i)}, {8192*i}, v10")
    A("s_lshr_b32 s33, s28, 1")
    A("s_lshl_b32 s33, s33, 11")
    A("s_and_b32 s34, s28, 1")
    A("s_lshl_b32 s34, s34, 7")
    A("s_add_u32 s33, s33, s34")
    A(f"s_add_u32 s33, s33, {WO_L}")
    A("v_lshlrev_b32 v5, 13, v1")
    A("v_lshlrev_b32 v6, 9, v2")
    A("v_lshlrev_b32 v7, 3, v3")
    A("v_add3_u32 v5, v5, v6, v7")
    A("v_add_u32 v5, s33, v5")
    A("s_lshl_b32 s33, s28, 7")
    A("v_lshlrev_b32 v6, 3, v4")
    A("v_add_u32 v6, s33, v6")
    A("v_lshlrev_b32 v7, 4, v1")
    A("v_add_u32 v7, s33, v7")
    A("s_waitcnt vmcnt(0)")
    stamp(g, 9, stamps)
    A("s_barrier")
    BR = 96
    AR = 88
    DR = 112
    for kk in range(2):
        for n in range(2):
            for u in range(2):
                A(f"ds_read_b64_tr_b16 {v(BR+8*kk+4*n+2*u,2)}, v5 offset:{64*kk+256*u+32*n}")
    loads = [f"global_load_dwordx4 {v(16+4*i,4)}, {v(10+i)}, s[26:27] sc1" for i in range(4)]
    poll_loop(g, loads, list(range(16, 32)), 9, "t1")
    stamp(g, 10, stamps)

    for k in range(4):
        A(f"v_add_f32 {v(16+k)}, {v(16+k)}, {v(20+k)}")
        A(f"v_add_f32 {v(24+k)}, {v(24+k)}, {v(28+k)}")
    for k in range(4):
        A(f"v_add_f32 {v(16+k)}, {v(16+k)}, {v(24+k)}")
    swap_reduce(g, [16, 17, 18, 19], [20, 21, 22, 23], "v_add_f32", (16, 32))
    A("v_cvt_pk_bf16_f32 v16, v16, v17")
    A("v_cvt_pk_bf16_f32 v17, v18, v19")
    A(f"ds_write_b64 v6, v[16:17] offset:{AO}")
    for kk in range(2):
        A(f"ds_read_b128 {v(AR+4*kk,4)}, v7 offset:{AO+64*kk}")
    A("s_waitcnt lgkmcnt(0)")
    for n in range(2):
        A(f"v_mfma_f32_16x16x32_bf16 {v(DR+4*n,4)}, {v(AR,4)}, {v(BR+4*n,4)}, 0")
    for n in range(2):
        A(f"v_mfma_f32_16x16x32_bf16 {v(DR+4*n,4)}, {v(AR+4,4)}, {v(BR+8+4*n,4)}, {v(DR+4*n,4)}")
    A("s_lshl_b32 s33, s28, 7")
    A("v_lshlrev_b32 v9, 2, v4")
    A("v_add_u32 v9, s33, v9")
    A("s_nop 6")
    A(f"ds_write_b32 v9, {v(DR)} offset:{R2}")
    A(f"ds_write_b32 v9, {v(DR+4)} offset:{R2+64}")
    A("s_waitcnt lgkmcnt(0)")
    A("s_barrier")
    A("s_cmp_eq_u32 s51, 0")
    A("s_cbranch_scc1 L_end")
    A("s_cmp_eq_u32 s51, 2")
    A("s_cbranch_scc1 L_sdown")
    GNT = " nt" if gnt else ""
    tile_gu(tg1, 8)
    A("s_lshl_b32 s36, s28, 8")
    A(f"s_add_u32 s36, s36, {YP:#x}")
    A("v_lshrrev_b32 v5, 5, v0")
    A("v_and_b32 v6, 1, v1")
    A("v_lshlrev_b32 v9, 11, v5")
    A("v_lshlrev_b32 v10, 12, v6")
    A("v_lshlrev_b32 v11, 4, v4")
    A("v_add3_u32 v10, v9, v10, v11")
    A("v_add_u32 v10, s36, v10")
    for i in range(1, 4):
        A(f"v_add_u32 {v(10+i)}, {8192*i}, v10")
    A("s_lshl_b32 s33, s28, 7")
    A("v_lshlrev_b32 v6, 10, v5")
    A("v_lshlrev_b32 v7, 3, v4")
    A("v_add3_u32 v6, v6, v7, s33")
    A(f"ds_read_b64 v[40:41], v6 offset:{XL}")
    A("v_lshlrev_b32 v7, 10, v5")
    A(f"ds_read_u16 v42, v7 offset:{XL}")
    A("s_lshl_b32 s34, s28, 3")
    A("v_lshlrev_b32 v7, 6, v5")
    A("v_add_u32 v8, s34, v7")
    A("v_and_b32 v9, 7, v0")
    A("v_lshlrev_b32 v9, 3, v9")
    A("v_add_u32 v7, v7, v9")
    A("s_lshl_b32 s34, s28, 8")
    A("v_lshlrev_b32 v14, 7, v5")
    A("v_lshlrev_b32 v15, 3, v4")
    A("v_add3_u32 v14, v14, v15, s34")
    A("v_and_b32 v15, 1, v0")
    A("v_lshlrev_b32 v15, 7, v15")
    A("v_lshlrev_b32 v9, 4, v1")
    A("v_add3_u32 v15, v15, v9, s34")
    A("s_lshl_b32 s33, s28, 12")
    A(f"s_add_u32 s33, s33, {GU_L}")
    A("v_lshlrev_b32 v44, 9, v1")
    A("v_lshlrev_b32 v45, 6, v2")
    A("v_lshlrev_b32 v46, 3, v3")
    A("v_add3_u32 v44, v44, v45, v46")
    A("v_add_u32 v44, s33, v44")
    A("s_waitcnt lgkmcnt(0)")
    A("v_lshlrev_b32 v36, 16, v40")
    A("v_and_b32 v37, 0xffff0000, v40")
    A("v_lshlrev_b32 v38, 16, v41")
    A("v_and_b32 v39, 0xffff0000, v41")
    A("v_lshlrev_b32 v42, 16, v42")
    stamp(g, 11, stamps)
    loads = [f"global_load_dwordx4 {v(16+4*i,4)}, {v(10+i)}, s[26:27] sc1" for i in range(4)]
    poll_loop(g, loads, list(range(16, 32)), 9, "t2")
    stamp(g, 12, stamps)
    GB = 96
    for mat in range(2):
        for n in range(2):
            for kk in range(2):
                for u in range(2):
                    A(f"ds_read_b64_tr_b16 {v(GB+16*mat+8*n+4*kk+2*u,2)}, v44 offset:{32768*mat+2048*kk+256*u+32*n}")
    for k in range(4):
        A(f"v_add_f32 {v(16+k)}, {v(16+k)}, {v(20+k)}")
        A(f"v_add_f32 {v(24+k)}, {v(24+k)}, {v(28+k)}")
    for k in range(4):
        A(f"v_add_f32 {v(16+k)}, {v(16+k)}, {v(24+k)}")
    swap_reduce(g, [16, 17, 18, 19], [20, 21, 22, 23], "v_add_f32", (16,))
    for i in (0, 2):
        A(f"v_cvt_pk_bf16_f32 v20, {v(16+i)}, {v(17+i)}")
        A(f"v_lshlrev_b32 {v(16+i)}, 16, v20")
        A(f"v_and_b32 {v(17+i)}, 0xffff0000, v20")
        A(f"v_add_f32 {v(16+i)}, {v(16+i)}, {v(36+i)}")
        A(f"v_add_f32 {v(17+i)}, {v(17+i)}, {v(37+i)}")
        A(f"v_cvt_pk_bf16_f32 {v(24+i//2)}, {v(16+i)}, {v(17+i)}")
        A(f"v_lshlrev_b32 {v(16+i)}, 16, {v(24+i//2)}")
        A(f"v_and_b32 {v(17+i)}, 0xffff0000, {v(24+i//2)}")
    for i in range(4):
        A(f"v_sub_f32 {v(20+i)}, {v(16+i)}, v42")
    A("v_add_f32 v26, v20, v21")
    A("v_mul_f32 v27, v20, v20")
    A("v_add_f32 v26, v26, v22")
    A("v_fmac_f32 v27, v21, v21")
    A("v_add_f32 v26, v26, v23")
    A("v_fmac_f32 v27, v22, v22")
    A("v_fmac_f32 v27, v23, v23")
    dpp_steps(g, [26, 27], "v_add_f32", ["quad_perm:[1,0,3,2]", "quad_perm:[2,3,0,1]", "row_ror:4", "row_ror:8"])
    A(f"ds_write_b64 v8, v[26:27] offset:{LS}")
    A("s_waitcnt lgkmcnt(0)")
    A("s_barrier")
    A(f"ds_read_b64 v[26:27], v7 offset:{LS}")
    A("s_waitcnt lgkmcnt(0)")
    dpp_steps(g, [26, 27], "v_add_f32", ["quad_perm:[1,0,3,2]", "quad_perm:[2,3,0,1]", "row_ror:4"])
    A(f"v_mul_f32 v26, {INV512:#x}, v26")
    A(f"v_mul_f32 v27, {INV512:#x}, v27")
    A("v_fma_f32 v27, -v26, v26, v27")
    A("v_max_f32 v27, 0, v27")
    A("v_add_f32 v26, v26, v42")
    ln_scalars(g, 26, 27, 28, 29)
    ln_finish_pair(g, 16, 17, 26, 27, 28, [30, 31, 32, 33, 34, 35], 24)
    ln_finish_pair(g, 18, 19, 26, 27, 28, [30, 31, 32, 33, 34, 35], 25)
    A(f"ds_write_b64 v14, v[24:25] offset:{HN}")
    for kk in range(2):
        A(f"ds_read_b128 {v(AR+4*kk,4)}, v15 offset:{HN+64*kk}")
    A("s_waitcnt lgkmcnt(0)")
    GD = 128
    for t in range(4):
        A(f"v_mfma_f32_16x16x32_bf16 {v(GD+4*t,4)}, {v(AR,4)}, {v(GB+8*t,4)}, 0")
    for t in range(4):
        A(f"v_mfma_f32_16x16x32_bf16 {v(GD+4*t,4)}, {v(AR+4,4)}, {v(GB+8*t+4,4)}, {v(GD+4*t,4)}")
    A("s_lshl_b32 s33, s28, 9")
    A("v_lshlrev_b32 v9, 2, v4")
    A("v_add_u32 v9, s33, v9")
    A("s_nop 4")
    for t in range(4):
        for b in range(2):
            A(f"ds_write_b32 v9, {v(GD+4*t+b)} offset:{R4+256*b+64*t}")
    A("s_waitcnt lgkmcnt(0)")
    A("s_barrier")
    A("s_branch L_end")
    g.label("L_sdown")
    tile_dn(td1, 7)
    A("s_mul_i32 s33, s28, 448")
    A(f"s_add_u32 s33, s33, {AC:#x}")
    A("v_min_u32 v5, 55, v0")
    A("v_cmp_lt_u32 vcc, 27, v5")
    A("v_mov_b32 v6, 0")
    A("v_mov_b32 v7, 3136")
    A("v_cndmask_b32 v6, v6, v7, vcc")
    A("v_lshlrev_b32 v5, 4, v5")
    A("v_add3_u32 v9, v5, v6, s33")
    A("s_lshl_b32 s34, s28, 10")
    A("v_add_u32 v5, s34, v5")
    A("v_and_b32 v6, 1, v0")
    A("v_mul_u32_u24 v6, 448, v6")
    A("v_lshlrev_b32 v7, 4, v1")
    A("v_add3_u32 v6, v6, v7, s34")
    A("s_mul_i32 s33, s28, 7168")
    A(f"s_add_u32 s33, s33, {WD_L}")
    A("v_lshlrev_b32 v11, 8, v1")
    A("v_lshlrev_b32 v12, 5, v2")
    A("v_lshlrev_b32 v13, 3, v3")
    A("v_add3_u32 v11, v11, v12, v13")
    A("v_add_u32 v11, s33, v11")
    A("s_lshl_b32 s33, s28, 7")
    A("v_lshlrev_b32 v10, 2, v4")
    A("v_add_u32 v10, s33, v10")
    A("s_waitcnt vmcnt(0)")
    for kk in range(7):
        for u in range(2):
            A(f"ds_read_b64_tr_b16 {v(48+4*kk+2*u,2)}, v11 offset:{1024*kk+128*u}")
    stamp(g, 13, stamps)
    poll_loop(g, ["global_load_dwordx4 v[84:87], v9, s[26:27] sc1"], [84, 85, 86, 87], 12, "t3", slp=True)
    stamp(g, 14, stamps)
    A(f"ds_write_b128 v5, v[84:87] offset:{RED}")
    for kk in range(7):
        A(f"ds_read_b128 {v(16+4*kk,4)}, v6 offset:{RED+64*kk}")
    A("s_waitcnt lgkmcnt(0)")
    for kk in range(7):
        c = "0" if kk == 0 else v(DR, 4)
        A(f"v_mfma_f32_16x16x32_bf16 {v(DR,4)}, {v(16+4*kk,4)}, {v(48+4*kk,4)}, {c}")
    A("s_nop 7")
    A(f"ds_write_b32 v10, {v(DR)} offset:{R5}")
    A(f"ds_write_b32 v10, {v(DR+1)} offset:{R5+64}")
    A("s_waitcnt lgkmcnt(0)")
    A("s_barrier")
    A("s_branch L_end")

    g.label("L_qk")
    stamp(g, 2, stamps)
    A("v_lshlrev_b32 v9, 8, v3")
    A("v_lshlrev_b32 v10, 6, v1")
    A("v_lshlrev_b32 v11, 4, v2")
    A("v_add3_u32 v9, v9, v10, v11")
    A(f"ds_read_b128 {v(QB,4)}, v9 offset:{QL}")
    A("s_waitcnt lgkmcnt(0)")
    for m in range(16):
        A(f"v_mfma_f32_16x16x32_bf16 {v(KR+4*m,4)}, {v(KR+4+4*m,4)}, {v(QB,4)}, 0")
    A("s_nop 3")
    for step in range(3):
        for m in range(16):
            D = KR + 4 * m
            beta = m & 3
            k = m >> 2
            e = (beta + 1 + step) & 3
            rot = (4 * (beta - e)) & 15
            if step < 2:
                A(f"v_add_f32_dpp {v(D+beta)}, {v(D+e)}, {v(D+beta)} row_ror:{rot} {DPP}")
            else:
                A(f"v_add_f32_dpp {v(Z+k)}, {v(D+e)}, {v(D+beta)} row_ror:{rot} row_mask:0xf bank_mask:{1<<beta:#x}")
    for m in range(0, 4, 2):
        A(f"v_cvt_pk_bf16_f32 v9, {v(Z+m)}, {v(Z+m+1)}")
        A("v_lshlrev_b32 v10, 16, v9")
        A("v_and_b32 v11, 0xffff0000, v9")
        A("v_mul_f32 v10, s45, v10")
        A("v_mul_f32 v11, s45, v11")
        A("v_cvt_pk_bf16_f32 v9, v10, v11")
        A(f"v_lshlrev_b32 {v(Z+m)}, 16, v9")
        A(f"v_and_b32 {v(Z+m+1)}, 0xffff0000, v9")
    A(f"v_max3_f32 v12, {v(Z)}, {v(Z+1)}, {v(Z+2)}")
    A(f"v_max_f32 v12, v12, {v(Z+3)}")
    dpp_steps(g, [12], "v_max_f32", ["row_ror:4", "row_ror:8"])
    swap_reduce(g, [12], [9], "v_max_f32", (16, 32))
    for m in range(4):
        A(f"v_sub_f32 {v(KR+m)}, {v(Z+m)}, v12")
        A(f"v_mul_f32 {v(KR+m)}, s44, {v(KR+m)}")
        A(f"v_exp_f32 {v(KR+m)}, {v(KR+m)}")
    A("s_nop 0")
    A(f"v_add_f32 v13, {v(KR)}, {v(KR+1)}")
    A(f"v_add_f32 v13, v13, {v(KR+2)}")
    A(f"v_add_f32 v13, v13, {v(KR+3)}")
    dpp_steps(g, [13], "v_add_f32", ["row_ror:4", "row_ror:8"])
    swap_reduce(g, [13], [9], "v_add_f32", (16, 32))
    A("s_lshl_b32 s33, s28, 5")
    A("v_lshlrev_b32 v9, 3, v3")
    A("v_add_u32 v9, s33, v9")
    A(f"ds_write_b64 v9, v[12:13] offset:{WST}")
    A("v_mov_b32 v10, 1")
    A("s_waitcnt lgkmcnt(0)")
    A(f"ds_add_u32 v164, v10 offset:{FLG+4}")
    A("s_mov_b32 s49, 2")
    stamp(g, 4, stamps)
    A("s_setpc_b64 s[54:55]")

    g.label("L_ctrl")
    if prio:
        A(f"s_setprio {prio}")
    stamp(g, 0, stamps)
    if cpf:
        A("s_getpc_b64 s[52:53]")
        g.label("L_pc1")
        A(f"s_sub_u32 s52, s52, L_pc1-{NAME}_kernel")
        A("s_subb_u32 s53, s53, 0")
        A("v_lshlrev_b32 v150, 7, v0")
        A(f"s_mov_b32 s33, L_end2-{NAME}_kernel")
        for i in range(cpf):
            A("v_min_u32 v149, s33, v150")
            A(f"global_load_dword {v(151+i)}, v149, s[52:53]")
            A("v_add_u32 v150, 8192, v150")
    Ln = g.newlabel("nonce")
    A("s_cmp_lg_u32 s2, 255")
    A(f"s_cbranch_scc1 {Ln}")
    A("s_memrealtime s[52:53]")
    A("s_waitcnt lgkmcnt(0)")
    A("s_or_b32 s52, s52, 1")
    A("v_mov_b32 v12, s52")
    A("v_mov_b32 v13, 0")
    A("v_mov_b32 v14, 0")
    A("s_mov_b64 exec, 0x1")
    A("global_atomic_cmpswap v14, v[12:13], s[24:25] sc1")
    A("s_mov_b64 exec, -1")
    g.label(Ln)
    A("v_lshlrev_b32 v1, 4, v0")
    A("v_mov_b32 v164, 0")
    A("v_mov_b32 v165, 0")
    A("v_mov_b32 v166, 0")
    A("v_mov_b32 v167, 0")
    A(f"ds_write_b128 v164, v[164:167] offset:{FLG}")
    A("s_waitcnt lgkmcnt(0)")
    if bare == 1:
        A("v_mov_b32 v165, 1")
        A(f"ds_write_b32 v164, v165 offset:{FLG}")
        A(f"ds_write_b32 v164, v165 offset:{FLG+8}")
        A("s_waitcnt lgkmcnt(0)")
        A("s_barrier")
        A("s_branch L_end")
    A("s_bfe_u32 s33, s2, 0x20003")
    A("s_lshl_b32 s34, s58, 2")
    A("s_add_u32 s36, s33, s34")
    A("s_bfe_u32 s37, s2, 0x20005")
    A("v_lshrrev_b32 v2, 4, v0")
    A("v_and_b32 v3, 15, v0")
    A("s_lshl_b32 s34, s29, 12")
    A("s_lshl_b32 s35, s30, 11")
    A("s_add_u32 s34, s34, s35")
    A("s_lshl_b32 s35, s59, 7")
    A("s_add_u32 s34, s34, s35")
    A(f"s_add_u32 s38, s34, {YP:#x}")
    WQR = 16

    def prefetch():
        A("s_lshr_b32 s33, s2, 3")
        A("v_lshrrev_b32 v140, 4, v0")
        A("s_cmp_lt_u32 s58, 4")
        A("s_cselect_b32 s34, 3, 2")
        A("v_min_u32 v140, s34, v140")
        A("v_lshlrev_b32 v140, 10, v140")
        A("v_and_b32 v141, 15, v0")
        A("v_mul_u32_u24 v141, 3584, v141")
        A("s_mul_i32 s34, s33, 57344")
        A("s_lshl_b32 s35, s58, 7")
        A("s_add_u32 s34, s34, s35")
        A("v_add3_u32 v140, v140, v141, s34")
        A("global_load_dword v142, v140, s[16:17]")
        A("global_load_dword v143, v140, s[18:19]")
        A("v_min_u32 v140, 55, v0")
        A("v_lshlrev_b32 v140, 10, v140")
        A("s_mul_i32 s34, s33, 57344")
        A("s_add_u32 s34, s34, s35")
        A("v_add_u32 v140, s34, v140")
        A("global_load_dword v144, v140, s[20:21]")

    def fills():
        for i in range(4):
            A(f"v_mov_b32 {v(16+i)}, -1")
        A("s_lshl_b32 s33, s32, 4")
        A("s_add_u32 s33, s33, s31")
        A("s_lshl_b32 s34, s33, 11")
        A(f"s_add_u32 s34, s34, {OP:#x}")
        A("v_add_u32 v160, s34, v1")
        A("global_store_dwordx4 v160, v[16:19], s[26:27] sc1")
        A("global_store_dwordx4 v160, v[16:19], s[26:27] offset:1024 sc1")
        A("v_add_u32 v161, s38, v1")
        A("s_mov_b64 exec, 0xff")
        A("global_store_dwordx4 v161, v[16:19], s[26:27] sc1")
        A("s_mov_b64 exec, -1")
        Lskip = g.newlabel("skip_acs")
        A("s_cmp_lg_u32 s51, 1")
        A(f"s_cbranch_scc1 {Lskip}")
        A("s_lshl_b32 s34, s50, 1")
        A(f"s_add_u32 s34, s34, {AC:#x}")
        A("v_lshrrev_b32 v162, 2, v0")
        A("v_mul_u32_u24 v162, 3584, v162")
        A("v_and_b32 v163, 3, v0")
        A("v_lshlrev_b32 v163, 4, v163")
        A("v_add3_u32 v162, v162, v163, s34")
        A("s_mov_b64 exec, 0xff")
        A("global_store_dwordx4 v162, v[16:19], s[26:27] sc1")
        A("s_mov_b64 exec, -1")
        g.label(Lskip)

    def nonce_loop(first_loaded):
        L = g.newlabel("nn")
        Ld = g.newlabel("nn_done")
        A(f"s_mov_b32 s46, {SPIN}")
        if first_loaded:
            A("s_waitcnt vmcnt(0)")
            A("v_readfirstlane_b32 s47, v5")
            A("s_cmp_lg_u32 s47, 0")
            A(f"s_cbranch_scc1 {Ld}")
        g.label(L)
        A("global_load_dword v5, v6, s[24:25] sc1")
        A("s_waitcnt vmcnt(0)")
        A("v_readfirstlane_b32 s47, v5")
        A("s_cmp_lg_u32 s47, 0")
        A(f"s_cbranch_scc1 {Ld}")
        if SLP:
            A(f"s_sleep {SLP}")
        A("s_sub_u32 s46, s46, 1")
        A("s_cmp_lg_u32 s46, 0")
        A(f"s_cbranch_scc1 {L}")
        g.label(Ld)

    Lnp = g.newlabel("noprod")
    Lnp2 = g.newlabel("front_done")
    A("s_cmp_ge_u32 s2, 128")
    A(f"s_cbranch_scc1 {Lnp}")
    A("global_load_dwordx4 v[4:7], v1, s[4:5]")
    A("global_load_dwordx4 v[8:11], v1, s[4:5] offset:1024")
    A("s_lshl_b32 s33, s37, 20")
    A("s_lshl_b32 s34, s36, 8")
    A("s_add_u32 s33, s33, s34")
    A("v_lshlrev_b32 v12, 13, v2")
    A("v_lshlrev_b32 v13, 4, v3")
    A("v_add3_u32 v12, v12, v13, s33")
    for i in range(32):
        if i:
            A("v_add_u32 v12, 0x8000, v12")
        A(f"global_load_dwordx4 {v(WQR+4*i,4)}, v12, s[10:11] nt")
    if b0 == 1:
        A("s_barrier")
    A("s_waitcnt vmcnt(32)")
    stamp(g, 13, stamps)
    A(f"ds_write_b128 v1, v[4:7] offset:{XL}")
    A(f"ds_write_b128 v1, v[8:11] offset:{XL+1024}")
    unpack8(g, 144, 4)
    unpack8(g, 152, 8)
    layernorm2(g, 144, 4, [12, 13, 14, 15] + list(range(160, 168)))
    A(f"ds_write_b128 v1, {v(4,4)} offset:{XN}")
    A(f"ds_write_b128 v1, {v(8,4)} offset:{XN+1024}")
    A("v_bfe_u32 v160, v0, 3, 1")
    A("v_lshlrev_b32 v160, 10, v160")
    A("v_lshlrev_b32 v161, 1, v2")
    A("s_lshl_b32 s33, s37, 8")
    A("v_add3_u32 v160, v160, v161, s33")
    A("s_waitcnt lgkmcnt(0)")
    A("v_and_b32 v5, 7, v0")
    A("v_mov_b32 v6, 0xffff")
    A("v_mov_b32 v7, 0xffff0000")
    for d in range(4):
        A(f"v_mov_b32 {v(8+d)}, 0")
        A(f"v_cmp_eq_u32 vcc, {2*d}, v5")
        A("s_nop 1")
        A(f"v_cndmask_b32 {v(8+d)}, {v(8+d)}, v6, vcc")
        A(f"v_cmp_eq_u32 vcc, {2*d+1}, v5")
        A("s_nop 1")
        A(f"v_cndmask_b32 {v(8+d)}, {v(8+d)}, v7, vcc")
    A("v_mov_b32 v6, 0")
    A("global_load_dword v5, v6, s[24:25] sc1")
    QD = 12
    for half in range(2):
        for i in range(16):
            A(f"ds_read_u16 {v(144+i)}, v160 offset:{XN+8*(16*half+i)}")
        A("s_waitcnt lgkmcnt(0)")
        if half == 0:
            A("s_waitcnt vmcnt(17)")
            if b0 == 2:
                A("s_barrier")
        else:
            A("s_waitcnt vmcnt(1)")
            if b0 == 3:
                A("s_barrier")
        stamp(g, 14 + half, stamps)
        for i in range(16):
            ii = 16 * half + i
            Bq = 160 + 4 * (i % 2)
            A(f"v_lshl_or_b32 {v(144+i)}, {v(144+i)}, 16, {v(144+i)}")
            for d in range(4):
                A(f"v_and_b32 {v(Bq+d)}, {v(144+i)}, {v(8+d)}")
            A("s_nop 1")
            c = "0" if ii == 0 else v(QD, 4)
            A(f"v_mfma_f32_16x16x32_bf16 {v(QD,4)}, {v(WQR+4*ii,4)}, {v(Bq,4)}, {c}")
        if half == 0:
            A("v_bfe_u32 v160, v0, 3, 1")
            A("v_lshlrev_b32 v160, 10, v160")
            A("v_lshlrev_b32 v161, 1, v2")
            A("v_add3_u32 v160, v160, v161, s33")
    stamp(g, 16, stamps)
    nonce_loop(True)
    stamp(g, 1, stamps)
    A("s_lshl_b32 s33, s37, 5")
    A("s_add_u32 s33, s33, s36")
    A("s_lshl_b32 s33, s33, 11")
    A("v_add_u32 v160, s33, v1")
    A(f"v_mov_b32 v20, {v(QD+3)}")
    A("v_mov_b32 v21, s47")
    A("v_mov_b32 v22, s47")
    A("v_mov_b32 v23, s47")
    A(f"v_mov_b32 {v(QD+3)}, s47")
    A(f"global_store_dwordx4 v160, {v(QD,4)}, s[26:27] offset:{QP} sc1")
    A(f"global_store_dwordx4 v160, v[20:23], s[26:27] offset:{QP+1024} sc1")
    if b0 == 4:
        A("s_barrier")
    fills()
    A(f"s_branch {Lnp2}")
    g.label(Lnp)
    if b0:
        A("s_barrier")
    A("global_load_dwordx4 v[8:11], v1, s[4:5]")
    A("global_load_dwordx4 v[12:15], v1, s[4:5] offset:1024")
    fills()
    A("v_mov_b32 v6, 0")
    nonce_loop(False)
    stamp(g, 1, stamps)
    A(f"ds_write_b128 v1, v[8:11] offset:{XL}")
    A(f"ds_write_b128 v1, v[12:15] offset:{XL+1024}")
    g.label(Lnp2)
    A("v_bfe_u32 v4, v0, 2, 2")
    A("v_and_b32 v5, 3, v0")
    A("v_lshlrev_b32 v4, 16, v4")
    A("v_lshlrev_b32 v5, 11, v5")
    A("s_lshl_b32 s33, s29, 13")
    A("v_add3_u32 v4, v4, v5, s33")
    poll_pipe(g, lambda r: f"global_load_dword {v(r)}, v4, s[26:27] offset:{QP+2044} sc1", 1, 100, 3, [0], 16, "ql", anyok=bool(qany))
    A("v_lshrrev_b32 v4, 5, v0")
    A("v_bfe_u32 v5, v0, 3, 2")
    A("v_and_b32 v6, 7, v0")
    A("s_lshl_b32 s34, s30, 7")
    A("s_add_u32 s33, s33, s34")
    A("v_lshlrev_b32 v7, 11, v4")
    A("v_lshlrev_b32 v8, 8, v5")
    A("v_lshlrev_b32 v9, 4, v6")
    A("v_add3_u32 v7, v7, v8, v9")
    A("v_add_u32 v7, s33, v7")
    for k in range(1, 8):
        A(f"v_add_u32 {v(7+k)}, {4096*(k%2) + 65536*(k//2)}, v7")
    loads = []
    for ks in range(4):
        for hp in range(2):
            for gr in range(2):
                loads.append(f"global_load_dwordx4 {v(24+16*ks+8*hp+4*gr,4)}, {v(7+2*ks+hp)}, s[26:27] offset:{QP+1024*gr} sc1")
    poll_tag(g, loads, [24 + 4 * k + 3 for k in range(16)], 16, "qg")
    stamp(g, 2, stamps)
    for ks in range(4):
        for hp in range(2):
            A(f"v_mov_b32 {v(24+16*ks+8*hp+3)}, {v(24+16*ks+8*hp+4)}")
    for ks in range(1, 4):
        for hp in range(2):
            for i in range(4):
                A(f"v_add_f32 {v(24+8*hp+i)}, {v(24+8*hp+i)}, {v(24+16*ks+8*hp+i)}")
    A("v_lshlrev_b32 v7, 8, v4")
    A("v_lshlrev_b32 v8, 6, v5")
    A("v_lshlrev_b32 v9, 1, v6")
    A("v_add3_u32 v7, v7, v8, v9")
    for hp in range(2):
        for r in range(4):
            A(f"v_cvt_pk_bf16_f32 {v(16+4*hp+r)}, {v(24+8*hp+r)}, {v(24+8*hp+r)}")
            A(f"ds_write_b16 v7, {v(16+4*hp+r)} offset:{QL+512*hp+16*r}")
    A("s_waitcnt lgkmcnt(0)")
    A("v_mov_b32 v164, 0")
    A("v_mov_b32 v165, 1")
    A(f"ds_write_b32 v164, v165 offset:{FLG}")
    stamp(g, 3, stamps)
    if pfp == 1:
        prefetch()
    if bare == 2:
        A(f"ds_write_b32 v164, v165 offset:{FLG+8}")
        A("s_branch L_end")
    A("v_and_b32 v4, 31, v0")
    A("v_lshlrev_b32 v4, 3, v4")
    A("s_lshl_b32 s33, s32, 10")
    A("s_lshl_b32 s34, s31, 6")
    A(f"s_add_u32 s33, s33, {ST:#x}")
    A("s_add_u32 s34, s34, s33")
    A("v_add_u32 v6, s34, v1")
    A("v_add_u32 v7, s33, v1")
    A("s_lshl_b32 s33, s2, 2")
    A(f"s_add_u32 s33, s33, {FL:#x}")
    A("v_mov_b32 v8, s33")
    A("v_mov_b32 v9, s47")
    L = g.newlabel("wc")
    Ld = g.newlabel("wc_done")
    A(f"s_mov_b32 s46, {SPIN*16}")
    g.label(L)
    A(f"ds_read_b32 v166, v164 offset:{FLG+4}")
    A("s_waitcnt lgkmcnt(0)")
    A("v_readfirstlane_b32 s48, v166")
    A("s_cmp_eq_u32 s48, 512")
    A(f"s_cbranch_scc1 {Ld}")
    A("s_sub_u32 s46, s46, 1")
    A("s_cmp_lg_u32 s46, 0")
    A(f"s_cbranch_scc1 {L}")
    g.label(Ld)
    stamp(g, 4, stamps)
    A(f"ds_read_b64 v[12:13], v4 offset:{WST}")
    A("s_waitcnt lgkmcnt(0)")
    A("v_mov_b32 v14, v12")

    def red_s4(reg, tmp, op, full):
        dpp_steps(g, [reg], op, ["row_ror:4", "row_ror:8"])
        swap_reduce(g, [reg], [tmp], op, (16, 32) if full else (16,))

    red_s4(14, 15, "v_max_f32", False)
    A("v_sub_f32 v12, v12, v14")
    A("v_mul_f32 v12, s44, v12")
    A("v_exp_f32 v12, v12")
    A("s_nop 0")
    A("v_mul_f32 v13, v13, v12")
    red_s4(13, 15, "v_add_f32", False)
    A("v_mov_b32 v12, v14")
    A("v_mov_b32 v14, s47")
    A("v_mov_b32 v15, s47")
    A("s_mov_b64 exec, 0xf")
    A("global_store_dwordx4 v6, v[12:15], s[26:27] sc1")
    A("s_mov_b64 exec, 0x1")
    A("global_store_dword v8, v9, s[26:27] sc1")
    A("s_mov_b64 exec, -1")
    poll_pipe(g, lambda r: f"global_load_dwordx4 {v(r,4)}, v7, s[26:27] sc1", 4, 100, stk, [3], 16, "st", dst=12, slp=bool(sts), force=True)
    stamp(g, 5, stamps)
    A("v_mov_b32 v14, v12")
    red_s4(14, 15, "v_max_f32", True)
    A("v_sub_f32 v12, v12, v14")
    A("v_mul_f32 v12, s44, v12")
    A("v_exp_f32 v12, v12")
    A("s_nop 0")
    A("v_mul_f32 v13, v13, v12")
    red_s4(13, 15, "v_add_f32", True)
    A("v_rcp_f32 v15, v13")
    A("s_nop 0")
    A("v_fma_f32 v12, -v13, v15, 1.0")
    A("v_fmac_f32 v15, v12, v15")
    A("v_mov_b32 v12, v14")
    A("v_mov_b32 v13, v15")
    A("v_and_b32 v4, 3, v0")
    A("v_lshlrev_b32 v4, 3, v4")
    A(f"ds_write_b64 v4, v[12:13] offset:{GST}")
    A("s_waitcnt lgkmcnt(0)")
    A(f"ds_write_b32 v164, v165 offset:{FLG+8}")
    stamp(g, 6, stamps)
    if pfp == 2:
        prefetch()
    if bare == 3:
        A("s_branch L_end")
    Lnof = g.newlabel("nofl")
    A("s_cmp_eq_u32 s51, 0")
    A(f"s_cbranch_scc1 {Lnof}")
    A(f"v_add_u32 v6, {FL:#x}, v1")
    poll_pipe(g, lambda r: f"global_load_dwordx4 {v(r,4)}, v6, s[26:27] sc1", 4, 100, 1, [0, 1, 2, 3], 16, "fl")
    g.label(Lnof)
    A("s_lshl_b32 s33, s32, 15")
    A("s_lshl_b32 s34, s31, 11")
    A("s_add_u32 s33, s33, s34")
    A(f"s_add_u32 s33, s33, {OP:#x}")
    A("v_add_u32 v6, s33, v1")
    A("s_lshl_b32 s33, s32, 8")
    A(f"s_add_u32 s33, s33, {F1:#x}")
    A("s_lshl_b32 s34, s31, 2")
    A("s_add_u32 s34, s34, s33")
    A("v_mov_b32 v8, s34")
    A("v_lshlrev_b32 v7, 2, v3")
    A("v_add_u32 v7, s33, v7")
    A("v_mov_b32 v9, s47")
    A("s_barrier")
    stamp(g, 7, stamps)
    for c in range(2):
        for w in range(8):
            A(f"ds_read_b128 {v(16+32*c+4*w,4)}, v1 offset:{RED+2048*w+1024*c}")
    for c in range(2):
        A(f"s_waitcnt lgkmcnt({8*(1-c)})")
        b = 16 + 32 * c
        for i in range(4):
            A(f"v_add_f32 {v(b+i)}, {v(b+i)}, {v(b+4+i)}")
            A(f"v_add_f32 {v(b+8+i)}, {v(b+8+i)}, {v(b+12+i)}")
            A(f"v_add_f32 {v(b+16+i)}, {v(b+16+i)}, {v(b+20+i)}")
            A(f"v_add_f32 {v(b+24+i)}, {v(b+24+i)}, {v(b+28+i)}")
        for i in range(4):
            A(f"v_add_f32 {v(b+i)}, {v(b+i)}, {v(b+8+i)}")
            A(f"v_add_f32 {v(b+16+i)}, {v(b+16+i)}, {v(b+24+i)}")
        for i in range(4):
            A(f"v_add_f32 {v(b+i)}, {v(b+i)}, {v(b+16+i)}")
            A(f"v_min_u32 {v(b+i)}, 0xfffffffe, {v(b+i)}")
        A(f"global_store_dwordx4 v6, {v(b,4)}, s[26:27] offset:{1024*c} sc1")
    A("s_mov_b64 exec, 0x1")
    A("global_store_dword v8, v9, s[26:27] sc1")
    A("s_mov_b64 exec, -1")
    if pfp == 3:
        prefetch()
    poll_pipe(g, lambda r: f"global_load_dword {v(r)}, v7, s[26:27] sc1", 1, 100, f1k, [0], 16, "f1", slp=bool(f1s), force=True)
    stamp(g, 8, stamps)
    A("s_barrier")
    if pfp == 4:
        prefetch()
    A("v_and_b32 v4, 31, v0")
    A("v_lshlrev_b32 v4, 2, v4")
    A("v_add_u32 v6, s38, v4")
    A("s_barrier")
    stamp(g, 9, stamps)
    for w in range(8):
        A(f"ds_read_b32 {v(16+w)}, v4 offset:{R2+128*w}")
    A("s_waitcnt lgkmcnt(0)")
    for w in range(0, 8, 2):
        A(f"v_add_f32 {v(16+w)}, {v(16+w)}, {v(17+w)}")
    A("v_add_f32 v16, v16, v18")
    A("v_add_f32 v20, v20, v22")
    A("v_add_f32 v16, v16, v20")
    A("v_min_u32 v16, 0xfffffffe, v16")
    A("s_mov_b32 exec_hi, 0")
    A("global_store_dword v6, v16, s[26:27] sc1")
    A("s_mov_b64 exec, -1")
    A("s_cmp_eq_u32 s51, 0")
    A("s_cbranch_scc1 L_end")
    A("s_cmp_eq_u32 s51, 2")
    A("s_cbranch_scc1 L_cdown")
    A("v_lshrrev_b32 v4, 5, v0")
    A("v_and_b32 v5, 31, v0")
    A("v_lshlrev_b32 v10, 8, v4")
    A("v_lshlrev_b32 v11, 2, v5")
    A("v_add_u32 v10, v10, v11")
    A("s_lshl_b32 s33, s50, 1")
    A(f"s_add_u32 s33, s33, {AC:#x}")
    A("v_mul_u32_u24 v6, 3584, v4")
    A("v_lshlrev_b32 v11, 1, v5")
    A("v_add3_u32 v6, v6, v11, s33")
    A("s_mov_b32 s39, 0x200")
    A("s_mov_b32 s52, 0x55555555")
    A("s_mov_b32 s53, 0x55555555")
    A("s_barrier")
    A("s_barrier")
    stamp(g, 11, stamps)
    for w in range(8):
        A(f"ds_read_b32 {v(16+w)}, v10 offset:{R4+512*w}")
        A(f"ds_read_b32 {v(24+w)}, v10 offset:{R4+512*w+128}")
    A("s_waitcnt lgkmcnt(0)")
    for base in (16, 24):
        for w in range(0, 8, 2):
            A(f"v_add_f32 {v(base+w)}, {v(base+w)}, {v(base+w+1)}")
        A(f"v_add_f32 {v(base)}, {v(base)}, {v(base+2)}")
        A(f"v_add_f32 {v(base+4)}, {v(base+4)}, {v(base+6)}")
        A(f"v_add_f32 {v(base)}, {v(base)}, {v(base+4)}")
    A("v_cvt_pk_bf16_f32 v18, v16, v24")
    A("v_lshlrev_b32 v16, 16, v18")
    A("v_and_b32 v24, 0xffff0000, v18")
    A("v_mul_f32 v18, s44, v16")
    A("v_exp_f32 v18, -v18")
    A("s_nop 0")
    A("v_add_f32 v18, 1.0, v18")
    A("v_rcp_f32 v20, v18")
    A("s_nop 0")
    A("v_mul_f32 v22, v16, v20")
    A("v_mov_b32 v21, v22")
    A("v_fma_f32 v23, -v22, v18, v16")
    A("v_fmac_f32 v22, v23, v20")
    A("v_cmp_class_f32 vcc, v18, s39")
    A("s_nop 1")
    A("v_cndmask_b32 v22, v22, v21, vcc")
    bf16r(g, 22, 22, 18)
    A("v_mul_f32 v22, v22, v24")
    A("v_cvt_pk_bf16_f32 v18, v22, v22")
    A("v_and_b32 v18, 0xffff, v18")
    A("s_nop 1")
    A(f"v_mov_b32_dpp v19, v18 quad_perm:[1,0,3,2] {DPP}")
    A("v_lshl_or_b32 v18, v19, 16, v18")
    A("v_min_u32 v18, 0xfffffffe, v18")
    A("s_mov_b64 exec, s[52:53]")
    A("global_store_dword v6, v18, s[26:27] sc1")
    A("s_mov_b64 exec, -1")
    A("s_branch L_end")
    g.label("L_cdown")
    A("v_lshrrev_b32 v4, 3, v0")
    A("v_bfe_u32 v5, v0, 2, 1")
    A("v_and_b32 v7, 3, v0")
    A("v_lshlrev_b32 v8, 12, v4")
    A("v_lshlrev_b32 v10, 11, v5")
    A("v_lshlrev_b32 v11, 4, v7")
    A("v_add3_u32 v8, v8, v10, v11")
    A("s_lshl_b32 s33, s50, 2")
    A(f"s_add_u32 s33, s33, {YP:#x}")
    A("v_add_u32 v8, s33, v8")
    A("v_lshlrev_b32 v10, 10, v5")
    A("v_lshlrev_b32 v11, 3, v7")
    A("s_lshl_b32 s33, s50, 1")
    A("v_add3_u32 v10, v10, v11, s33")
    A(f"ds_read_b64 v[40:41], v10 offset:{XL}")
    A("v_lshlrev_b32 v11, 6, v5")
    A("v_lshlrev_b32 v12, 4, v7")
    A("v_add_u32 v11, v11, v12")
    poll_loop(g, ["global_load_dwordx4 v[16:19], v8, s[26:27] sc1"], [16, 17, 18, 19], 12, "hy", slp=True)
    dpp_steps(g, [16, 17, 18, 19], "v_add_f32", ["row_ror:8"])
    swap_reduce(g, [16, 17, 18, 19], [20, 21, 22, 23], "v_add_f32", (16, 32))
    A("s_waitcnt lgkmcnt(0)")
    A("v_lshlrev_b32 v36, 16, v40")
    A("v_and_b32 v37, 0xffff0000, v40")
    A("v_lshlrev_b32 v38, 16, v41")
    A("v_and_b32 v39, 0xffff0000, v41")
    for i in (0, 2):
        A(f"v_cvt_pk_bf16_f32 v20, {v(16+i)}, {v(17+i)}")
        A(f"v_lshlrev_b32 {v(16+i)}, 16, v20")
        A(f"v_and_b32 {v(17+i)}, 0xffff0000, v20")
        A(f"v_add_f32 {v(16+i)}, {v(16+i)}, {v(36+i)}")
        A(f"v_add_f32 {v(17+i)}, {v(17+i)}, {v(37+i)}")
        A(f"v_cvt_pk_bf16_f32 v20, {v(16+i)}, {v(17+i)}")
        A(f"v_lshlrev_b32 {v(36+i)}, 16, v20")
        A(f"v_and_b32 {v(37+i)}, 0xffff0000, v20")
    A("s_barrier")
    stamp(g, 17, stamps)
    for w in range(8):
        A(f"ds_read_b128 {v(48+4*w,4)}, v11 offset:{R5+128*w}")
    A("s_waitcnt lgkmcnt(0)")
    for i in range(4):
        for w in range(0, 8, 2):
            A(f"v_add_f32 {v(48+4*w+i)}, {v(48+4*w+i)}, {v(52+4*w+i)}")
        A(f"v_add_f32 {v(48+i)}, {v(48+i)}, {v(56+i)}")
        A(f"v_add_f32 {v(64+i)}, {v(64+i)}, {v(72+i)}")
        A(f"v_add_f32 {v(48+i)}, {v(48+i)}, {v(64+i)}")
    for i in (0, 2):
        A(f"v_cvt_pk_bf16_f32 v20, {v(48+i)}, {v(49+i)}")
        A(f"v_lshlrev_b32 {v(48+i)}, 16, v20")
        A(f"v_and_b32 {v(49+i)}, 0xffff0000, v20")
        A(f"v_add_f32 {v(48+i)}, {v(48+i)}, {v(36+i)}")
        A(f"v_add_f32 {v(49+i)}, {v(49+i)}, {v(37+i)}")
        A(f"v_cvt_pk_bf16_f32 {v(16+i//2)}, {v(48+i)}, {v(49+i)}")
    A("s_mov_b64 exec, 0xff")
    A("global_store_dwordx2 v10, v[16:17], s[22:23]")
    A("s_mov_b64 exec, -1")
    g.label("L_end")
    if stamps:
        A("s_waitcnt vmcnt(0)")
        stamp(g, 31, True)
        A("v_mov_b32 v166, s62")
        for i in range(32):
            A(f"v_mov_b32 v167, s{64+i}")
            A(f"global_store_dword v166, v167, s[26:27] offset:{4*i}")
    g.label("L_end2")
    A("s_endpgm")

    tail = []
    tail.append('.section .rodata,"a"')
    tail.append(".p2align 6")
    tail.append(f".amdhsa_kernel {NAME}_kernel")
    tail.append("  .amdhsa_next_free_vgpr 168")
    tail.append("  .amdhsa_next_free_sgpr 102")
    tail.append("  .amdhsa_accum_offset 168")
    tail.append("  .amdhsa_group_segment_fixed_size 0")
    tail.append("  .amdhsa_kernarg_size 96")
    tail.append("  .amdhsa_user_sgpr_count 2")
    tail.append("  .amdhsa_user_sgpr_kernarg_segment_ptr 1")
    tail.append("  .amdhsa_system_sgpr_workgroup_id_x 1")
    tail.append(".end_amdhsa_kernel")
    return "\n".join(hdr + g.L + tail) + "\n"


if __name__ == "__main__":
    import argparse
    ap = argparse.ArgumentParser()
    ap.add_argument("-o", default="k.s")
    ap.add_argument("--depth", type=int, default=3)
    ap.add_argument("--n1", type=int, default=3)
    ap.add_argument("--n2", type=int, default=10)
    ap.add_argument("--wnt", type=int, default=1)
    ap.add_argument("--stamps", type=int, default=0)
    ap.add_argument("--b0", type=int, default=1)
    ap.add_argument("--rp", type=int, default=1)
    ap.add_argument("--qany", type=int, default=1)
    ap.add_argument("--rpos", type=int, default=0)
    ap.add_argument("--now", type=int, default=0)
    ap.add_argument("--bare", type=int, default=0)
    ap.add_argument("--rpg", type=int, default=1)
    ap.add_argument("--rpd", type=int, default=1)
    ap.add_argument("--gnt", type=int, default=0)
    ap.add_argument("--wpos", type=int, default=0)
    ap.add_argument("--dsw", type=int, default=99)
    ap.add_argument("--mp", type=int, default=0)
    ap.add_argument("--tpos", type=int, default=0)
    ap.add_argument("--pfp", type=int, default=0)
    ap.add_argument("--tg1", type=int, default=3)
    ap.add_argument("--nb0", type=int, default=0)
    ap.add_argument("--f1k", type=int, default=1)
    ap.add_argument("--cpf", type=int, default=0)
    ap.add_argument("--prio", type=int, default=0)
    ap.add_argument("--rw", type=int, default=1)
    ap.add_argument("--dyn", type=int, default=0)
    ap.add_argument("--f1s", type=int, default=1)
    ap.add_argument("--stk", type=int, default=1)
    ap.add_argument("--sts", type=int, default=1)
    ap.add_argument("--td1", type=int, default=2)
    ap.add_argument("--depth2", type=int, default=3)
    ap.add_argument("--pk", type=int, default=3)
    ap.add_argument("--slp", type=int, default=0)
    ap.add_argument("--slp2", type=int, default=0)
    a = ap.parse_args()
    PK = a.pk
    SLP = a.slp
    SLP2 = a.slp2
    open(a.o, "w").write(gen(a.depth, a.n1, a.n2, bool(a.wnt), bool(a.stamps), a.b0, a.rp, a.qany, a.rpos, a.now, a.bare, a.rpg, a.rpd, a.gnt, a.wpos, a.dsw, a.depth2, a.mp, a.tpos, a.pfp, a.tg1, a.td1, a.nb0, a.f1k, a.f1s, a.stk, a.sts, a.cpf, a.prio, a.rw, a.dyn))
```
